```python
import torch

def _softmax(x, axis=-1):
    return torch.softmax(x, dim=axis)
def _gelu(x):
    return torch.nn.functional.gelu(x, approximate="tanh")
def _silu(x):
    return torch.nn.functional.silu(x)
def _sigmoid(x):
    return torch.sigmoid(x)
def _layernorm(x, axis=-1, eps=1e-5):
    m = x.mean(dim=axis, keepdim=True)
    v = x.var(dim=axis, keepdim=True, unbiased=False)
    return (x - m) / torch.sqrt(v + eps)
def _scatter_add(tgt, idx, src, axis=0):
    return tgt.clone().index_add_(axis, idx, src)
def _segment_sum(src, seg, n):
    out = torch.zeros((n,) + src.shape[1:], dtype=src.dtype)
    return out.index_add_(0, seg, src)
def _pad(x, pw):
    flat = tuple(v for pair in reversed(pw) for v in pair)
    return torch.nn.functional.pad(x, flat)

kernel_name = 'sequential_preLN__softmax_full_mha__mixer_token_mlp__prompt'

def setup_inputs():

    _w = (lambda a: (lambda t: t.to(torch.bfloat16) if t.is_floating_point() else t)(torch.as_tensor(a)))
    def _A_setup():
        B, S, D = 1, 2048, 448
        return {
            "x": _w((lambda *s: torch.randn(*s, dtype=torch.bfloat16) * 0.05)(B, S, D)),
            "wqkv": _w((lambda *s: torch.randn(*s, dtype=torch.bfloat16) * 0.05)(D, 3 * D)),
            "wo": _w((lambda *s: torch.randn(*s, dtype=torch.bfloat16) * 0.05)(D, D)),
        }
    _A_in = _A_setup()

    def _B_setup():
        B, S, D, F = 1, 2048, 448, 1792
        return {
            "x": _w((lambda *s: torch.randn(*s, dtype=torch.bfloat16) * 0.05)(B, S, D)),
            "w1": _w((lambda *s: torch.randn(*s, dtype=torch.bfloat16) * 0.8)(S, F) * (S ** -0.5)),
            "b1": _w((lambda *s: torch.randn(*s, dtype=torch.bfloat16) * 12.8)(F) * 0.02),
            "w2": _w((lambda *s: torch.randn(*s, dtype=torch.bfloat16) * 0.2)(F, S) * (F ** -0.5)),
            "b2": _w((lambda *s: torch.randn(*s, dtype=torch.bfloat16) * 1.6)(S) * 0.02),
        }
    _B_in = _B_setup()

    return {
        "A_x": _A_in["x"],
        "A_wqkv": _A_in["wqkv"],
        "A_wo": _A_in["wo"],
        "B_x": _B_in["x"],
        "B_w1": _B_in["w1"],
        "B_b1": _B_in["b1"],
        "B_w2": _B_in["w2"],
        "B_b2": _B_in["b2"],
    }

def reference(A_x, A_wqkv, A_wo, B_x, B_w1, B_b1, B_w2, B_b2):
    def _A_ref(x, wqkv, wo):
        B, S, D = x.shape
        H = 16; Dh = D // H
        qkv = (lambda x, *d: x.permute(*d))((x @ wqkv).reshape(B, S, 3, H, Dh), 2, 0, 3, 1, 4)
        q, k, v = qkv[0], qkv[1], qkv[2]
        scale = Dh ** -0.5
        scores = torch.einsum("bhqd,bhkd->bhqk", q, k) * scale
        p = _softmax(scores, axis=-1)
        o = torch.einsum("bhqk,bhkd->bhqd", p, v)
        return (lambda x, *d: x.permute(*d))(o, 0, 2, 1, 3).reshape(B, S, D) @ wo

    def _B_ref(x, w1, b1, w2, b2):
        B, S, D = x.shape
        h = _layernorm(x, axis=-1)
        u = torch.einsum("bsd,sf->bdf", h, w1) + b1
        u = _gelu(u)
        y = torch.einsum("bdf,fs->bds", u, w2) + b2
        return (lambda x, *d: x.permute(*d))(y, 0, 2, 1)

    x = A_x
    h = x + _A_ref(_layernorm(x, axis=-1), A_wqkv, A_wo)
    h2 = h + _B_ref(_layernorm(h, axis=-1), B_w1, B_b1, B_w2, B_b2)
    return h2
```

```python
import re, struct

def f2u(x):
    return struct.unpack("<I", struct.pack("<f", x))[0]
def fhex(x):
    return "0x%08x" % f2u(x)

TRANS = ("v_exp_f32", "v_log_f32", "v_rcp_f32", "v_rsq_f32", "v_sqrt_f32", "v_sin_f32", "v_cos_f32", "v_rcp_iflag_f32", "v_exp_f16")

def regs_of(tok):
    tok = tok.strip()
    tok = tok.lstrip("-")
    m = re.fullmatch(r"\|(.*)\|", tok)
    if m: tok = m.group(1)
    m = re.fullmatch(r"abs\((.*)\)", tok)
    if m: tok = m.group(1)
    m = re.fullmatch(r"([vas])(\d+)", tok)
    if m: return {(m.group(1), int(m.group(2)))}
    m = re.fullmatch(r"([vas])\[(\d+):(\d+)\]", tok)
    if m: return {(m.group(1), k) for k in range(int(m.group(2)), int(m.group(3)) + 1)}
    if tok == "vcc": return {("s", "vcc")}
    if tok in ("vcc_lo", "vcc_hi"): return {("s", "vcc")}
    if tok in ("exec", "exec_lo", "exec_hi"): return {("s", "exec")}
    if tok == "m0": return {("s", "m0")}
    return set()

class Ins:
    def __init__(self, text):
        self.text = text
        t = text.split(";")[0].strip()
        self.label = None
        self.op = None
        self.w = set(); self.r = set()
        self.kind = None
        self.target = None
        if t.endswith(":"):
            self.label = t[:-1]; self.kind = "label"; return
        if t.startswith(".") or not t:
            self.kind = "dir"; return
        parts = t.split(None, 1)
        op = self.op = parts[0]
        rest = parts[1] if len(parts) > 1 else ""
        toks = [x.strip() for x in rest.split(",")] if rest else []
        mods = ""
        if toks:
            sp = toks[-1].split(None, 1)
            toks[-1] = sp[0]
            mods = sp[1] if len(sp) > 1 else ""
        self.mods = mods
        R = [regs_of(x) for x in toks]
        u = lambda l: set().union(*l) if l else set()
        self.srcc = set(); self.ab = set(); self.passes = 0
        self.dpp = ("row_" in mods or "quad_perm" in mods or "wave_" in mods or "_dpp" in op)
        if op.startswith("v_mfma"):
            self.kind = "mfma"; self.w = R[0]; self.ab = R[1] | R[2]; self.srcc = R[3]; self.r = self.ab | self.srcc
            self.passes = 8 if "32x32x16" in op else 4 if "16x16x32" in op else None
            assert self.passes
        elif op.startswith("v_"):
            self.kind = "valu"
            if op.startswith("v_cmpx"):
                self.w = R[0] | {("s", "exec")}; self.r = u(R[1:])
            elif op.startswith("v_permlane") and "swap" in op:
                self.w = R[0] | R[1]; self.r = R[0] | R[1]
            elif "_co_" in op:
                self.w = R[0] | R[1]; self.r = u(R[2:])
            elif op.startswith("v_nop"):
                pass
            else:
                self.w = R[0]; self.r = u(R[1:])
                if op.startswith(("v_fmac", "v_dot2c", "v_writelane", "v_pk_fmac")) or "UNUSED_PRESERVE" in mods or self.dpp:
                    self.r |= R[0]
                if op.startswith("v_cndmask") and len(toks) == 3:
                    self.r |= {("s", "vcc")}
        elif op.startswith("ds_"):
            self.kind = "ds"
            if op.startswith(("ds_read", "ds_bpermute", "ds_permute", "ds_swizzle")) or "_rtn" in op:
                self.w = R[0]; self.r = u(R[1:])
            else:
                self.r = u(R)
        elif op.startswith(("buffer_", "global_")):
            self.kind = "vmem"
            islds = re.search(r"\blds\b", mods) is not None or "_lds_" in op
            if op.startswith(("buffer_inv", "buffer_wbl2")):
                pass
            elif "load" in op and not islds:
                self.w = R[0]; self.r = u(R[1:])
            else:
                self.r = u(R)
                if islds: self.r |= {("s", "m0")}
                if "atomic" in op and "sc0" in mods: self.w = R[0]
            self.widestore = ("store" in op and ("x3" in op or "x4" in op))
            self.sdata = (R[0] if op.startswith("buffer_") else R[1]) if self.widestore else set()
        elif op.startswith("s_"):
            self.kind = "salu"
            if op.startswith(("s_cbranch", "s_branch")):
                self.kind = "branch"; self.target = toks[0]
                if "vcc" in op: self.r = {("s", "vcc")}
                if "exec" in op: self.r = {("s", "exec")}
            elif op.startswith(("s_cmp", "s_waitcnt", "s_barrier", "s_nop", "s_endpgm", "s_sleep", "s_setprio", "s_bitcmp")):
                self.r = u(R)
            elif "saveexec" in op:
                self.w = R[0] | {("s", "exec")}; self.r = u(R[1:]) | {("s", "exec")}
            else:
                self.w = R[0] if R else set(); self.r = u(R[1:])
        else:
            raise ValueError(text)
    def states(self):
        if self.kind in ("label", "dir"): return 0
        if self.op == "s_nop": return int(self.text.split(";")[0].split()[1], 0) + 1
        return 1

def vg(s): return {x for x in s if x[0] in "va"}
def sg(s): return {x for x in s if x[0] == "s"}

def need(p, c):
    n = 0
    if p.kind == "valu":
        isdl = p.op.startswith("v_dot")
        if c.kind == "mfma" and vg(p.w) & c.r: n = max(n, 3 if isdl else 2)
        if c.kind == "mfma" and ("s", "exec") in p.w: n = max(n, 4)
        if c.kind == "valu":
            if p.op.startswith(TRANS) and vg(p.w) & (c.r) and not c.op.startswith(TRANS): n = max(n, 1)
            if p.op.startswith(TRANS) and vg(p.w) & (c.r): n = max(n, 1)
            if c.op.startswith("v_permlane") and vg(p.w) & c.r: n = max(n, 2)
            if c.dpp and vg(p.w) & c.r: n = max(n, 2)
            if c.dpp and ("s", "exec") in p.w: n = max(n, 5)
            if c.op.startswith(("v_readlane", "v_readfirstlane")) and vg(p.w) & c.r: n = max(n, 1)
            if sg(p.w) & c.r:
                n = max(n, 4 if c.op.startswith(("v_readlane", "v_writelane", "v_div_fmas")) else 2)
            if ("s", "exec") in p.w and c.op.startswith(("v_readlane", "v_readfirstlane", "v_writelane", "v_permlane")): n = max(n, 4)
            if ("sdwa" in p.op or "op_sel" in p.mods) and vg(p.w) & (c.r | c.w): n = max(n, 1)
            if isdl and vg(p.w) & (c.r | c.w):
                if c.op != p.op: n = max(n, 3)
                else:
                    toks = [x.strip() for x in c.text.split(";")[0].split(None, 1)[1].split(",")]
                    ab = regs_of(toks[1]) | regs_of(toks[2].split()[0])
                    if vg(p.w) & ab: n = max(n, 3)
        if isdl and c.kind in ("ds", "vmem") and vg(p.w) & (c.r | c.w): n = max(n, 3)
        if c.kind == "vmem" and sg(p.w) & c.r: n = max(n, 5)
        if c.kind == "branch" and sg(p.w) & c.r: n = max(n, 5)
        if c.kind == "salu" and sg(p.w) & c.r: n = max(n, 2)
    if p.kind == "salu":
        if ("s", "m0") in p.w and c.kind in ("vmem", "ds") and ("s", "m0") in c.r: n = max(n, 1)
    if p.kind == "vmem" and getattr(p, "widestore", False):
        if p.sdata & c.w: n = max(n, 2 if c.kind in ("valu", "mfma") else 1)
    if p.kind == "mfma":
        big = {4: 8, 8: 12}[p.passes]
        if c.kind == "mfma":
            if p.w & c.ab: n = max(n, big)
            if p.w & c.srcc:
                if p.w == c.srcc and p.passes == c.passes: pass
                else: n = max(n, big - 2)
            elif p.w & c.w:
                n = max(n, 0 if p.passes == c.passes and p.w == c.w else big - 2)
        elif c.kind in ("valu", "ds", "vmem"):
            if p.w & (c.r | c.w): n = max(n, big)
            if c.kind == "valu" and p.srcc & c.w: n = max(n, {4: 3, 8: 7}[p.passes])
    return n

class Asm:
    def __init__(self):
        self.L = []
        self.uid = 0
    def __call__(self, text):
        for ln in text.split("\n"):
            ln = ln.strip()
            if ln: self.L.append(Ins(ln))
    def lab(self, base):
        self.uid += 1
        return f"L_{base}_{self.uid}"
    def hazard_pass(self, verbose=False):
        MAXN = 12
        inserted = 0
        changed = True
        while changed:
            changed = False
            L = self.L
            labels = {x.label: i for i, x in enumerate(L) if x.kind == "label"}
            srcs = {}
            for i, x in enumerate(L):
                if x.kind == "branch": srcs.setdefault(labels[x.target], []).append(i)
            out = []
            fix = {}
            for i, c in enumerate(L):
                if c.kind in ("label", "dir"): continue
                worst = 0
                stack = [(i - 1, 0)]
                seen = {}
                while stack:
                    j, d = stack.pop()
                    if j < 0 or d >= MAXN: continue
                    if seen.get(j, 99) <= d: continue
                    seen[j] = d
                    p = L[j]
                    if p.kind == "label":
                        for b in srcs.get(j, []): stack.append((b, d))
                        k = j - 1
                        while k >= 0 and L[k].kind == "dir": k -= 1
                        if k >= 0 and not (L[k].op in ("s_branch", "s_endpgm")): stack.append((j - 1, d))
                        continue
                    if p.kind == "dir":
                        stack.append((j - 1, d)); continue
                    n = need(p, c)
                    if n - d > worst: worst = n - d; why = p
                    stack.append((j - 1, d + p.states() + fix.get(j, 0)))
                if worst > 0:
                    fix[i] = worst
                    if verbose: print(f"; hazard: +{worst} before '{c.text}' after '{why.text}'")
            if fix:
                for i, c in enumerate(L):
                    if i in fix:
                        out.append(Ins(f"s_nop {fix[i]-1}")); inserted += fix[i]
                    out.append(c)
                self.L = out
                changed = True
        return inserted
    def text(self):
        o = []
        for x in self.L:
            o.append(x.text if x.kind in ("label", "dir") else "  " + x.text)
        return "\n".join(o) + "\n"

def kernel_head(name):
    return f".text\n.globl {name}\n.p2align 8\n.type {name},@function\n{name}:\n"
def kernel_desc(name, vgpr, agpr, sgpr=102):
    acc = (vgpr + 3) // 4 * 4
    return f""".section .rodata,"a"
.p2align 6
.amdhsa_kernel {name}
  .amdhsa_next_free_vgpr {acc + agpr if agpr else vgpr}
  .amdhsa_next_free_sgpr {sgpr}
  .amdhsa_accum_offset {acc}
  .amdhsa_group_segment_fixed_size 0
  .amdhsa_kernarg_size 88
  .amdhsa_user_sgpr_count 2
  .amdhsa_user_sgpr_kernarg_segment_ptr 1
  .amdhsa_system_sgpr_workgroup_id_x 1
.end_amdhsa_kernel
"""
```

```python
import sys, math
from g import *

NAME = "sequential_preLN__softmax_full_mha__mixer_token_mlp__prompt"
S, D, H, DH, F = 2048, 448, 16, 28, 1792
KV   = 0x0000000
QB   = 0x0400000
OB   = 0x0600000
ST   = 0x0800000
HN   = 0x0900000
UB   = 0x0B00000
HB   = 0x0D00000
PROF = 0x1200000

sW, sRB, sH, sDB, sSB, sFB = "s4", "s5", "s6", "s7", "s8", "s9"
WS, RX, RWQ, RWO, RW1, RW2, RB1, RB2, ROUT = ("s[12:15]", "s[16:19]", "s[20:23]", "s[24:27]", "s[28:31]", "s[32:35]", "s[36:39]", "s[40:43]", "s[44:47]")
vL = "v1"

def vr(b, n=1): return f"v{b}" if n == 1 else f"v[{b}:{b+n-1}]"
def ar(b, n=1): return f"a{b}" if n == 1 else f"a[{b}:{b+n-1}]"
def mfma(a, d, A, B, C=None):
    a(f"v_mfma_f32_32x32x16_bf16 {d}, {A}, {B}, {d if C is None else C}")

def prologue(a, need, endlab):
    a(f"s_cmp_ge_u32 s2, 256")
    a(f"s_cbranch_scc1 {endlab}")
    a("s_load_dwordx16 s[64:79], s[0:1], 0")
    a("s_load_dwordx4 s[80:83], s[0:1], 64")
    a("s_load_dwordx2 s[84:85], s[0:1], 80")
    a("v_lshrrev_b32 v2, 6, v0")
    a(f"v_and_b32 {vL}, 63, v0")
    a(f"v_readfirstlane_b32 {sW}, v2")
    a("s_and_b32 s52, s2, 7")
    a("s_lshr_b32 s53, s2, 3")
    a("s_and_b32 s54, s53, 3")
    a("s_lshr_b32 s55, s53, 2")
    a("s_lshr_b32 s56, s52, 1")
    a(f"s_lshl2_add_u32 {sH}, s56, s54")
    a("s_and_b32 s56, s52, 1")
    a(f"s_lshl3_add_u32 {sRB}, s56, s55")
    a("s_lshr_b32 s56, s52, 2")
    a(f"s_lshl2_add_u32 {sDB}, s56, s54")
    a("s_and_b32 s56, s52, 3")
    a(f"s_lshl3_add_u32 {sSB}, s56, s55")
    a(f"s_sub_u32 {sFB}, {sSB}, s56")
    a("s_waitcnt lgkmcnt(0)")
    tbl = {"ws": (12, 84, 1 << 28), "x": (16, 64, S*D*2), "wq": (20, 66, D*3*D*2), "wo": (24, 68, D*D*2),
           "w1": (28, 72, S*F*2), "w2": (32, 76, S*F*2), "b1": (36, 74, F*2), "b2": (40, 78, S*2), "out": (44, 80, S*D*2)}
    for n in need:
        b, p, sz = tbl[n]
        a(f"s_mov_b32 s{b}, s{p}\ns_mov_b32 s{b+1}, s{p+1}\ns_mov_b32 s{b+2}, {sz}\ns_mov_b32 s{b+3}, 0x20000")

def dma(a, vaddr, srd, soff, m0expr, off=0):
    sg_, c = m0expr
    if sg_ is None: a(f"s_mov_b32 m0, {c}")
    else: a(f"s_add_u32 m0, {sg_}, {c}")
    a(f"buffer_load_dwordx4 {vaddr}, {srd}, {soff} offen" + (f" offset:{off}" if off else "") + " lds")

def swz128(a, dst, stride, t1="v2", t2="v3"):
    a(f"v_lshrrev_b32 {t1}, 3, {vL}")
    a(f"v_mul_u32_u24 {dst}, {stride}, {t1}")
    a(f"v_lshrrev_b32 {t1}, 2, {vL}")
    a(f"v_and_b32 {t1}, 4, {t1}")
    a(f"v_and_b32 {t2}, 7, {vL}")
    a(f"v_xor_b32 {t1}, {t1}, {t2}")
    a(f"v_lshl_add_u32 {dst}, {t1}, 4, {dst}")

def xhalf_sum(a, v, t):
    a(f"v_mov_b32 {t}, {v}")
    a(f"v_permlane32_swap_b32 {t}, {v}")
    a(f"v_add_f32 {v}, {t}, {v}")

def p1(a):
    WB = 0; XB = 57344
    XF, ACA, ACB, CSA, CSB, WF = 16, 128, 144, 160, 176, 192
    ONES = 224
    vX = [228, 229, 230, 231]; vW = 232; vWQ = 233
    vXR = [234, 235, 236, 237]; vWA, vWBB = 238, 239; vQR0, vQR1 = 240, 241
    SUM, SQ = 242, 243
    sXB = "s57"; sWo = "s58"; sT = "s59"; sWm = "s60"
    a(f"s_lshl_b32 s3, {sRB}, 2\ns_add_u32 s3, s3, {sW}\ns_mul_i32 s3, s3, {32*896}")
    a(f"v_lshrrev_b32 v2, 3, {vL}\nv_mul_u32_u24 v2, 896, v2\nv_add_u32 v2, s3, v2")
    a(f"v_lshrrev_b32 v3, 4, {vL}\nv_and_b32 v4, 7, {vL}\nv_xor_b32 v3, v3, v4")
    a(f"v_lshl_add_u32 {vr(vX[0])}, v3, 4, v2")
    a(f"v_xor_b32 v3, 4, v3\nv_lshl_add_u32 v3, v3, 4, v2\nv_add_u32 {vr(vX[1])}, {8*896}, v3")
    a(f"v_add_u32 {vr(vX[2])}, {16*896}, {vr(vX[0])}\nv_add_u32 {vr(vX[3])}, {16*896}, {vr(vX[1])}")
    a(f"s_mul_i32 {sXB}, {sW}, 24576\ns_add_u32 {sXB}, {sXB}, {XB}")
    swz128(a, vr(vW), 2688)
    a(f"s_mul_i32 {sWo}, {sH}, 112\ns_mul_i32 s3, {sW}, {16*2688}\ns_add_u32 {sWo}, {sWo}, s3\ns_add_u32 {sWo}, {sWo}, 896")
    a(f"s_lshl_b32 {sWm}, {sW}, 11")
    def xdma(c, slot):
        for o in range(4):
            dma(a, vr(vX[o]), RX, "0", (sXB, slot*4096 + o*1024 - c*128), off=c*128)
    def wdma(c):
        for u in range(2):
            a(f"s_add_u32 {sT}, {sWo}, {(c*8+u)*8*2688}")
            dma(a, vr(vW), RWQ, sT, (sWm, WB + (c*8+u)*1024))
    for c in range(6):
        xdma(c, c); wdma(c)
    wdma(6)
    a(f"v_and_b32 v2, 31, {vL}\nv_lshlrev_b32 v3, 7, v2\nv_add_u32 v3, {sXB}, v3")
    a(f"v_lshrrev_b32 v4, 1, v2\nv_and_b32 v4, 7, v4\nv_lshrrev_b32 v5, 5, {vL}\nv_xor_b32 v4, v4, v5")
    for q in range(4):
        a(f"v_xor_b32 v6, {2*q}, v4\nv_lshl_add_u32 {vr(vXR[q])}, v6, 4, v3")
    a(f"v_bfe_u32 v2, {vL}, 2, 2")
    a(f"v_lshl_add_u32 v3, v5, 3, v2")
    a(f"v_bfe_u32 v4, {vL}, 4, 1\nv_lshlrev_b32 v4, 5, v4\nv_and_b32 v6, 3, {vL}\nv_lshl_add_u32 v4, v6, 3, v4")
    a(f"v_lshrrev_b32 v2, 1, v2\nv_lshlrev_b32 v2, 6, v2")
    a(f"v_xor_b32 v6, v4, v2\nv_lshl_add_u32 {vr(vWA)}, v3, 7, v6")
    a(f"v_add_u32 v6, 56, v4\nv_xor_b32 v6, v6, v2\nv_lshl_add_u32 {vr(vWBB)}, v3, 7, v6")
    a(f"v_lshl_add_u32 {vr(vQR0)}, v3, 6, v4\nv_add_u32 {vr(vQR0)}, {XB + 4096}, {vr(vQR0)}\nv_add_u32 {vr(vQR1)}, {2*24576}, {vr(vQR0)}")
    a(f"v_lshrrev_b32 v2, 2, {vL}\nv_mul_u32_u24 v2, 2688, v2\nv_and_b32 v3, 3, {vL}\nv_lshl_add_u32 {vr(vWQ)}, v3, 4, v2")
    for i in range(4): a(f"v_mov_b32 {vr(ONES+i)}, 0x3f803f80")
    a(f"v_mov_b32 {vr(SUM)}, 0\nv_mov_b32 {vr(SQ)}, 0")
    waits = [32, 30, 24, 25, 19, 13, 7]
    for c in range(7):
        slot = c % 6
        a(f"s_waitcnt vmcnt({waits[c]})\ns_barrier")
        for q in range(4):
            ks = 4*c + q
            a(f"ds_read_b128 {vr(XF+4*ks,4)}, {vr(vXR[q])} offset:{slot*4096}")
            for hd, va in enumerate((vWA, vWBB)):
                for e in range(2):
                    a(f"ds_read_b64_tr_b16 {vr(WF+8*q+4*hd+2*e,2)}, {vr(va)} offset:{WB+ks*2048+e*512}")
            if q == 2:
                pass
        for q in range(4):
            ks = 4*c + q
            a(f"s_waitcnt lgkmcnt({min(15, 5*(3-q))})")
            first = "0" if ks == 0 else None
            x4 = vr(XF+4*ks, 4)
            mfma(a, vr(ACA,16), vr(WF+8*q,4), x4, first)
            for i in range(2): a(f"v_dot2_f32_bf16 {vr(SUM)}, {vr(XF+4*ks+i)}, {vr(ONES)}, {vr(SUM)}")
            mfma(a, vr(ACB,16), vr(WF+8*q+4,4), x4, first)
            for i in range(2,4): a(f"v_dot2_f32_bf16 {vr(SUM)}, {vr(XF+4*ks+i)}, {vr(ONES)}, {vr(SUM)}")
            mfma(a, vr(CSA,16), vr(WF+8*q,4), vr(ONES,4), first)
            for i in range(2): a(f"v_dot2_f32_bf16 {vr(SQ)}, {vr(XF+4*ks+i)}, {vr(XF+4*ks+i)}, {vr(SQ)}")
            mfma(a, vr(CSB,16), vr(WF+8*q+4,4), vr(ONES,4), first)
            for i in range(2,4): a(f"v_dot2_f32_bf16 {vr(SQ)}, {vr(XF+4*ks+i)}, {vr(XF+4*ks+i)}, {vr(SQ)}")
        if c == 0:
            xdma(6, 0)
        if c == 2:
            a(f"s_mul_i32 {sT}, {sH}, 56\ns_mul_i32 s3, {sW}, {7*16*2688}\ns_add_u32 {sT}, {sT}, s3")
            for i in range(7):
                dma(a, vr(vWQ), RWQ, sT, (sXB, 4096 + i*1024))
                if i < 6: a(f"s_add_u32 {sT}, {sT}, {16*2688}")
    MU, RS = 244, 245
    xhalf_sum(a, vr(SUM), "v2"); xhalf_sum(a, vr(SQ), "v3")
    a(f"v_mul_f32 {vr(MU)}, {fhex(-1.0/D)}, {vr(SUM)}")
    a(f"v_mul_f32 v2, {fhex(1.0/D)}, {vr(SQ)}")
    a(f"v_fma_f32 v2, -{vr(MU)}, {vr(MU)}, v2")
    a(f"v_max_f32 v2, 0, v2\nv_add_f32 v2, {fhex(1e-5)}, v2\nv_rsq_f32 {vr(RS)}, v2")
    a(f"v_cmp_lt_u32 vcc, 31, {vL}")
    PK = WF
    def finish(acc, cs, pk, rs):
        for i in range(16):
            a(f"v_fmac_f32 {vr(acc+i)}, {vr(MU)}, {vr(cs+i)}")
        for i in range(16):
            a(f"v_mul_f32 {vr(acc+i)}, {vr(rs)}, {vr(acc+i)}")
        for i in range(8):
            a(f"v_cvt_pk_bf16_f32 {vr(pk+i)}, {vr(acc+2*i)}, {vr(acc+2*i+1)}")
    finish(ACA, CSA, PK, RS); finish(ACB, CSB, PK+8, RS)
    a(f"s_and_b32 s3, {sH}, 7\ns_lshl_b32 s3, s3, 7\ns_lshl2_add_u32 s3, {sRB}, s3\ns_add_u32 s3, s3, {sW}\ns_lshl_b32 {sT}, s3, 12")
    a(f"v_lshlrev_b32 v7, 4, {vL}")
    lv = a.lab("v"); lq = a.lab("q")
    a(f"s_cmp_ge_u32 {sH}, 8\ns_cbranch_scc1 {lv}")
    a(f"v_mov_b32 v2, 0x3f80")
    for hd in range(2):
        a(f"v_cndmask_b32 {vr(PK+8*hd+6)}, {vr(PK+8*hd+6)}, {vr(ONES)}, vcc")
        a(f"v_cndmask_b32 {vr(PK+8*hd+7)}, {vr(PK+8*hd+7)}, v2, vcc")
    for hd in range(2):
        if hd: a(f"s_add_u32 {sT}, {sT}, {64*4096}")
        a(f"buffer_store_dwordx4 {vr(PK+8*hd,4)}, v7, {WS}, {sT} offen sc1")
        a(f"buffer_store_dwordx4 {vr(PK+8*hd+4,4)}, v7, {WS}, {sT} offen offset:1024 sc1")
    a(f"s_branch {lq}")
    a(f"{lv}:")
    a(f"v_mov_b32 v2, 0x3f80\nv_mov_b32 v3, 0")
    for hd in range(2):
        a(f"v_cndmask_b32 {vr(PK+8*hd+6)}, {vr(PK+8*hd+6)}, v2, vcc")
        a(f"v_cndmask_b32 {vr(PK+8*hd+7)}, {vr(PK+8*hd+7)}, v3, vcc")
    a(f"v_and_b32 v2, 31, {vL}\nv_mul_u32_u24 v2, 72, v2\nv_lshrrev_b32 v3, 5, {vL}\nv_lshl_add_u32 v2, v3, 3, v2\nv_add_u32 v2, {sXB}, v2")
    for hd in range(2):
        for i in range(4):
            a(f"ds_write_b64 v2, {vr(PK+8*hd+2*i,2)} offset:{3*4096 + hd*4096 + i*16}")
    a(f"v_bfe_u32 v4, {vL}, 2, 2\nv_lshl_add_u32 v4, v3, 2, v4\nv_mul_u32_u24 v4, 72, v4")
    a(f"v_bfe_u32 v5, {vL}, 4, 1\nv_lshl_add_u32 v4, v5, 5, v4\nv_and_b32 v5, 3, {vL}\nv_lshl_add_u32 v4, v5, 3, v4\nv_add_u32 v4, {sXB}, v4")
    a("s_waitcnt lgkmcnt(0)")
    for hd in range(2):
        for j in range(2):
            for e in range(2):
                a(f"ds_read_b64_tr_b16 {vr(PK+16+8*hd+4*j+2*e,2)}, v4 offset:{3*4096 + hd*4096 + (16*j+8*e)*72}")
    a("s_waitcnt lgkmcnt(0)")
    for hd in range(2):
        if hd: a(f"s_add_u32 {sT}, {sT}, {64*4096}")
        a(f"buffer_store_dwordx4 {vr(PK+16+8*hd,4)}, v7, {WS}, {sT} offen offset:2048 sc1")
        a(f"buffer_store_dwordx4 {vr(PK+16+8*hd+4,4)}, v7, {WS}, {sT} offen offset:3072 sc1")
    a(f"{lq}:")
    a("s_waitcnt vmcnt(4)\ns_barrier")
    QF = CSB
    bufs = [ACB, ACB+4, ACB+8, ACB+12, CSB, CSB+4, CSB+8]
    for grp in range(4):
        va = vQR0 if grp < 2 else vQR1
        for i in range(7):
            for e in range(2):
                a(f"ds_read_b64_tr_b16 {vr(bufs[i]+2*e,2)}, {vr(va)} offset:{(grp&1)*24576 + i*1024 + e*256}")
        for i in range(7):
            ks = 7*grp + i
            a(f"s_waitcnt lgkmcnt({2*(6-i)})")
            first = "0" if ks == 0 else None
            mfma(a, vr(ACA,16), vr(bufs[i],4), vr(XF+4*ks,4), first)
            mfma(a, vr(CSA,16), vr(bufs[i],4), vr(ONES,4), first)
    a(f"v_mul_f32 {vr(RS)}, {fhex(DH**-0.5 * math.log2(math.e))}, {vr(RS)}")
    QP = 246
    finish(ACA, CSA, QP, RS)
    a("v_mov_b32 v3, 0")
    a(f"v_cndmask_b32 {vr(QP+6)}, {vr(QP+6)}, v3, vcc\nv_cndmask_b32 {vr(QP+7)}, {vr(QP+7)}, v3, vcc")
    a(f"s_lshl_b32 s3, {sH}, 6\ns_lshl2_add_u32 s3, {sRB}, s3\ns_add_u32 s3, s3, {sW}\ns_lshl_b32 s3, s3, 11\ns_add_u32 s3, s3, {QB}")
    a(f"buffer_store_dwordx4 {vr(QP,4)}, v7, {WS}, s3 offen")
    a(f"buffer_store_dwordx4 {vr(QP+4,4)}, v7, {WS}, s3 offen offset:1024")
    a(f"v_mov_b32 v3, -1\nv_lshlrev_b32 v2, 2, v0\ns_lshl_b32 s3, s2, 10\ns_add_u32 s3, s3, {ST}")
    a(f"buffer_store_dword v3, v2, {WS}, s3 offen")

def p2(a):
    Q, O, SS, P, KVB = 16, 48, 112, 144, 152
    RKV = "s[48:51]"; sO = "s57"; sC = "s58"
    a(f"v_lshlrev_b32 v7, 4, {vL}")
    for j in range(4):
        a(f"s_add_u32 s3, {sW}, {j+1}\ns_and_b32 s3, s3, 3\ns_lshl2_add_u32 s3, {sRB}, s3\ns_lshl_b32 s59, {sH}, 6\ns_add_u32 s3, s3, s59\ns_lshl_b32 s3, s3, 11\ns_add_u32 s3, s3, {QB}")
        a(f"buffer_load_dwordx4 {vr(Q+8*j,4)}, v7, {WS}, s3 offen")
        a(f"buffer_load_dwordx4 {vr(Q+8*j+4,4)}, v7, {WS}, s3 offen offset:1024")
    a(f"s_lshl2_add_u32 {sO}, {sH}, {sW}\ns_lshl_b32 {sO}, {sO}, 16")
    a(f"s_mov_b32 s48, s12\ns_mov_b32 s49, s13\ns_add_u32 s50, {sO}, 65536\ns_mov_b32 s51, 0x20000")
    def ld(buf, part):
        a(f"buffer_load_dwordx4 {vr(KVB+16*buf+4*part,4)}, v7, {RKV}, {sO} offen offset:{part*1024} sc1")
    for t in range(3):
        for p_ in range(4): ld(t, p_)
        a(f"s_add_u32 {sO}, {sO}, 4096")
    for i in range(64): a(f"v_mov_b32 {vr(O+i)}, 0")
    for i in range(4): a(f"v_mov_b32 {vr(P+4+i)}, 0\nv_mov_b32 {vr(KVB+48+12+i)}, 0")
    a(f"s_mov_b32 {sC}, 4")
    a("s_waitcnt vmcnt(8)")
    mfma(a, vr(SS,16), vr(KVB,4), vr(Q,4), "0")
    mfma(a, vr(SS,16), vr(KVB+4,4), vr(Q+4,4))
    a("s_nop 11")
    lp = a.lab("att")
    a(".p2align 6")
    a(f"{lp}:")
    for u in range(16):
        kt, j = u >> 2, u & 3
        n = (u + 1) & 15; nkt, nj = n >> 2, n & 3
        pv = (u - 1) & 15; pkt, pj = pv >> 2, pv & 3
        sc, sn = SS + 16*(u & 1), SS + 16*(n & 1)
        def valu(g):
            for i in range(4): a(f"v_exp_f32 {vr(sc+4*g+i)}, {vr(sc+4*g+i)}")
            for i in range(2): a(f"v_cvt_pk_bf16_f32 {vr(P+2*g+i)}, {vr(sc+4*g+2*i)}, {vr(sc+4*g+2*i+1)}")
        mfma(a, vr(sn,16), vr(KVB+16*nkt,4), vr(Q+8*nj,4), "0")
        if u == 15: a(f"s_sub_u32 {sC}, {sC}, 1")
        valu(0)
        mfma(a, vr(O+16*pj,16), vr(KVB+16*pkt+12,4), vr(P+4,4))
        ld((kt + 3) & 3, j)
        valu(1)
        mfma(a, vr(sn,16), vr(KVB+16*nkt+4,4), vr(Q+8*nj+4,4))
        if j == 3: a(f"s_add_u32 {sO}, {sO}, 4096")
        valu(2)
        mfma(a, vr(O+16*j,16), vr(KVB+16*kt+8,4), vr(P,4))
        if j == 2: a("s_waitcnt vmcnt(7)")
        if u == 15: a(f"s_cmp_lg_u32 {sC}, 0")
        valu(3)
    a(f"s_cbranch_scc1 {lp}")
    mfma(a, vr(O+48,16), vr(KVB+48+12,4), vr(P+4,4))
    for j in range(3):
        a(f"s_add_u32 s3, {sW}, {j+1}\ns_and_b32 s3, s3, 3\ns_mul_i32 s3, s3, 12288\nv_add_u32 v2, s3, v7")
        for i in range(4):
            a(f"ds_write_b128 v2, {vr(O+16*j+4*i,4)} offset:{j*4096+i*1024}")
    a(f"s_mul_i32 s3, {sW}, 12288\nv_add_u32 v2, s3, v7")
    a("s_waitcnt lgkmcnt(0)\ns_barrier")
    for i in range(12):
        a(f"ds_read_b128 {vr(O+4*i,4)}, v2 offset:{i*1024}")
    for j in range(3):
        a(f"s_waitcnt lgkmcnt({8-4*j})")
        for i in range(16): a(f"v_add_f32 {vr(O+48+i)}, {vr(O+48+i)}, {vr(O+16*j+i)}")
    a(f"v_mov_b32 v2, {vr(O+48+12)}\nv_mov_b32 v3, {vr(O+48+12)}\nv_permlane32_swap_b32 v2, v3\nv_rcp_f32 v3, v3")
    a(f"v_cmp_lt_u32 vcc, 31, {vL}\nv_mov_b32 v4, 0")
    for i in range(16): a(f"v_mul_f32 {vr(O+48+i)}, v3, {vr(O+48+i)}")
    for i in range(8): a(f"v_cvt_pk_bf16_f32 {vr(P+i)}, {vr(O+48+2*i)}, {vr(O+48+2*i+1)}")
    a(f"v_cndmask_b32 {vr(P+6)}, {vr(P+6)}, v4, vcc\nv_cndmask_b32 {vr(P+7)}, {vr(P+7)}, v4, vcc")
    a(f"s_lshl2_add_u32 s3, {sRB}, {sW}\ns_lshl4_add_u32 s3, s3, {sH}\ns_lshl_b32 s3, s3, 11\ns_add_u32 s3, s3, {OB}")
    a(f"buffer_store_dwordx4 {vr(P,4)}, v7, {WS}, s3 offen sc1")
    a(f"buffer_store_dwordx4 {vr(P+4,4)}, v7, {WS}, s3 offen offset:1024 sc1")

def trbase(a, dst, hfmul, rowbytes_shift, colexpr_reg, t1="v2", t2="v3"):
    a(f"v_bfe_u32 {t1}, {vL}, 2, 2")
    a(f"v_lshrrev_b32 {t2}, 5, {vL}")
    a(f"v_lshl_add_u32 {t2}, {t2}, {int(math.log2(hfmul))}, {t1}")
    a(f"v_lshrrev_b32 {t1}, 1, {t1}\nv_lshlrev_b32 {t1}, 6, {t1}")
    a(f"v_xor_b32 {t1}, {t1}, {colexpr_reg}")
    a(f"v_lshl_add_u32 {dst}, {t2}, 7, {t1}")

def p3(a, endlab):
    a(f"s_cmp_ge_u32 {sDB}, 7\ns_cbranch_scc1 {endlab}")
    OF, AC, WF, XR, HH = 16, 80, 112, 144, 80
    vW, vT0, vT1 = 160, 161, 162
    sST, sKH, sT, sTile = "s57", "s58", "s59", "s60"
    WOB, EX, TRB = 0, 59392, 59392 + 16384
    a(f"s_and_b32 {sST}, {sW}, 1\ns_lshr_b32 {sKH}, {sW}, 1\ns_lshl1_add_u32 {sTile}, {sSB}, {sST}")
    a(f"v_lshlrev_b32 v7, 4, {vL}")
    swz128(a, vr(vW), 896)
    a(f"s_mul_i32 s3, {sW}, {14*8*896}\ns_lshl_b32 {sT}, {sDB}, 7\ns_add_u32 {sT}, {sT}, s3\ns_mul_i32 s61, {sW}, {14*1024}")
    for n in range(15):
        dma(a, vr(vW), RWO, sT, ("s61", WOB + n*1024))
        if n < 14: a(f"s_add_u32 {sT}, {sT}, {8*896}")
    a(f"v_and_b32 v2, 31, {vL}\nv_mul_u32_u24 v2, 896, v2\nv_lshrrev_b32 v3, 5, {vL}\nv_lshl_add_u32 v2, v3, 3, v2")
    a(f"s_mul_i32 s3, {sTile}, {32*896}\ns_lshl_b32 {sT}, {sDB}, 7\ns_add_u32 s3, s3, {sT}\ns_lshl_b32 {sT}, {sKH}, 5\ns_add_u32 s3, s3, {sT}")
    for t in range(2):
        for i in range(2):
            a(f"buffer_load_dwordx2 {vr(XR+4*t+2*i,2)}, v2, {RX}, s3 offen offset:{t*64+i*16}")
    a(f"s_lshl1_add_u32 s3, {sTile}, {sKH}\ns_lshl_b32 s3, s3, 14\ns_add_u32 s3, s3, {OB}")
    for k in range(16):
        if k and k % 4 == 0: a("s_add_u32 s3, s3, 4096")
        a(f"buffer_load_dwordx4 {vr(OF+4*k,4)}, v7, {WS}, s3 offen offset:{(k%4)*1024} sc1")
    a(f"v_bfe_u32 v4, {vL}, 4, 1\nv_xor_b32 v4, {sKH}, v4\nv_lshlrev_b32 v4, 5, v4\nv_and_b32 v5, 3, {vL}\nv_lshl_add_u32 v4, v5, 3, v4")
    trbase(a, vr(vT0), 4, 7, "v4")
    a(f"s_mul_i32 s3, {sKH}, {224*128}\nv_add_u32 {vr(vT0)}, s3, {vr(vT0)}\nv_xor_b32 {vr(vT1)}, 64, {vr(vT0)}")
    a("s_waitcnt vmcnt(20)\ns_barrier")
    def rd(k):
        hh, j = k >> 1, k & 1
        b = WF + 8*(k & 3)
        for t, va in enumerate((vT0, vT1)):
            for e in range(2):
                a(f"ds_read_b64_tr_b16 {vr(b+4*t+2*e,2)}, {vr(va)} offset:{WOB+(28*hh+16*j+8*e)*128}")
    rd(0); rd(1); rd(2)
    for k in range(16):
        if k + 3 < 16: rd(k+3)
        rem = min(3, 15-k)
        a(f"s_waitcnt vmcnt({15-k}) lgkmcnt({4*rem})")
        b = WF + 8*(k & 3)
        for t in range(2):
            mfma(a, vr(AC+16*t,16), vr(b+4*t,4), vr(OF+4*k,4), "0" if k == 0 else None)
    a(f"s_lshl_b32 s3, {sW}, 12\nv_add_u32 v2, s3, v7\nv_xor_b32 v3, 8192, v2")
    for t in range(2):
        for i in range(2):
            a(f"ds_write_b128 v2, {vr(AC+16*t+8+4*i,4)} offset:{EX+(2*t+i)*1024}")
    a("s_waitcnt lgkmcnt(0)\ns_barrier")
    for t in range(2):
        for i in range(2):
            a(f"ds_read_b128 {vr(AC+16*t+8+4*i,4)}, v3 offset:{EX+(2*t+i)*1024}")
    hreg = lambda t, i: AC + 16*t + i
    for t in range(2):
        for i in range(4):
            a(f"v_lshlrev_b32 v4, 16, {vr(XR+4*t+i)}\nv_and_b32 v5, 0xffff0000, {vr(XR+4*t+i)}")
            a(f"v_add_f32 {vr(hreg(t,2*i))}, v4, {vr(hreg(t,2*i))}\nv_add_f32 {vr(hreg(t,2*i+1))}, v5, {vr(hreg(t,2*i+1))}")
    a("s_waitcnt lgkmcnt(0)")
    for t in range(2):
        for i in range(8): a(f"v_add_f32 {vr(hreg(t,i))}, {vr(hreg(t,i))}, {vr(hreg(t,8+i))}")
    a(f"v_add_f32 v8, {vr(hreg(0,0))}, {vr(hreg(1,0))}\nv_mul_f32 v9, {vr(hreg(0,0))}, {vr(hreg(0,0))}\nv_fmac_f32 v9, {vr(hreg(1,0))}, {vr(hreg(1,0))}")
    for t in range(2):
        for i in range(1, 8):
            a(f"v_add_f32 v8, v8, {vr(hreg(t,i))}\nv_fmac_f32 v9, {vr(hreg(t,i))}, {vr(hreg(t,i))}")
    xhalf_sum(a, "v8", "v2"); xhalf_sum(a, "v9", "v3")
    a("v_min_u32 v9, -2, v9")
    a(f"v_lshlrev_b32 v6, 3, {vL}")
    a(f"s_lshl_b32 s62, {sTile}, 12\ns_add_u32 s62, s62, {ST}\ns_lshl1_add_u32 s3, {sDB}, {sKH}\ns_lshl_b32 s3, s3, 8\ns_add_u32 s3, s3, s62")
    a("s_mov_b32 exec_hi, 0")
    a(f"buffer_store_dwordx2 v[8:9], v6, {WS}, s3 offen sc1")
    a("s_mov_b32 exec_hi, -1")
    a(f"s_lshl2_add_u32 s3, s2, {sW}\ns_lshl_b32 s3, s3, 12\ns_add_u32 s3, s3, {HB}")
    for t in range(2):
        for i in range(2):
            a(f"buffer_store_dwordx4 {vr(hreg(t,4*i),4)}, v7, {WS}, s3 offen offset:{(2*t+i)*1024}")
    lp = a.lab("st"); le = a.lab("ste")
    a("s_mov_b32 s63, 0x4000000")
    a(f"{lp}:")
    for i in range(7):
        a(f"buffer_load_dwordx2 {vr(OF+2*i,2)}, v6, {WS}, s62 offen offset:{i*512} sc1")
    a(f"s_sub_u32 s63, s63, 1\ns_cmp_eq_u32 s63, 0")
    a("s_waitcnt vmcnt(0)")
    a(f"s_cbranch_scc1 {le}")
    a(f"v_max3_u32 v2, {vr(OF+1)}, {vr(OF+3)}, {vr(OF+5)}\nv_max3_u32 v2, v2, {vr(OF+7)}, {vr(OF+9)}\nv_max3_u32 v2, v2, {vr(OF+11)}, {vr(OF+13)}")
    a(f"v_cmp_eq_u32 vcc, -1, v2\ns_cbranch_vccnz {lp}")
    a(f"{le}:")
    for i in range(1, 7):
        a(f"v_add_f32 {vr(OF)}, {vr(OF)}, {vr(OF+2*i)}\nv_add_f32 {vr(OF+1)}, {vr(OF+1)}, {vr(OF+2*i+1)}")
    xhalf_sum(a, vr(OF), "v2"); xhalf_sum(a, vr(OF+1), "v3")
    a(f"v_mul_f32 v8, {fhex(-1.0/D)}, {vr(OF)}\nv_mul_f32 v2, {fhex(1.0/D)}, {vr(OF+1)}\nv_fma_f32 v2, -v8, v8, v2\nv_max_f32 v2, 0, v2")
    a(f"v_add_f32 v3, {fhex(1e-5)}, v2\nv_rsq_f32 v9, v3\nv_mul_f32 v2, v2, v9\nv_mul_f32 v2, v2, v9\nv_add_f32 v2, {fhex(1e-5)}, v2\nv_rsq_f32 v2, v2\nv_mul_f32 v9, v9, v2")
    a("v_mul_f32 v8, v8, v9")
    for t in range(2):
        for i in range(8): a(f"v_fma_f32 {vr(hreg(t,8+i))}, {vr(hreg(t,i))}, v9, v8")
        for i in range(4): a(f"v_cvt_pk_bf16_f32 {vr(OF+4*t+i)}, {vr(hreg(t,8+2*i))}, {vr(hreg(t,8+2*i+1))}")
    a(f"s_mul_i32 s3, {sW}, 2304\nv_and_b32 v2, 31, {vL}\nv_mul_u32_u24 v2, 72, v2\nv_lshrrev_b32 v3, 5, {vL}\nv_lshl_add_u32 v2, v3, 3, v2\nv_add_u32 v2, s3, v2\nv_add_u32 v2, {TRB}, v2")
    for t in range(2):
        for i in range(2):
            a(f"ds_write_b64 v2, {vr(OF+4*t+2*i,2)} offset:{t*32+i*16}")
    a(f"v_bfe_u32 v4, {vL}, 2, 2\nv_lshl_add_u32 v4, v3, 3, v4\nv_mul_u32_u24 v4, 72, v4\nv_bfe_u32 v5, {vL}, 4, 1\nv_lshl_add_u32 v4, v5, 5, v4\nv_and_b32 v6, 3, {vL}\nv_lshl_add_u32 v4, v6, 3, v4\nv_add_u32 v4, s3, v4\nv_add_u32 v4, {TRB}, v4")
    a(f"v_lshlrev_b32 v5, 17, v5\nv_lshl_add_u32 v5, v3, 9, v5\nv_and_b32 v6, 15, {vL}\nv_lshl_add_u32 v5, v6, 4, v5")
    a(f"s_lshl_b32 s3, {sDB}, 18\ns_lshl_b32 {sT}, {sTile}, 11\ns_add_u32 s3, s3, {sT}\ns_lshl_b32 {sT}, {sKH}, 8\ns_add_u32 s3, s3, {sT}\ns_add_u32 s3, s3, {HN}")
    a("s_waitcnt lgkmcnt(0)")
    for j in range(2):
        for e in range(2):
            a(f"ds_read_b64_tr_b16 {vr(OF+8+4*j+2*e,2)}, v4 offset:{(16*j+4*e)*72}")
    a("s_waitcnt lgkmcnt(0)")
    for j in range(2):
        a(f"buffer_store_dwordx4 {vr(OF+8+4*j,4)}, v5, {WS}, s3 offen offset:{j*1024} sc1")

def stage_w(a, srd, stride, nks, soff_expr, vcol0, hfmul, emul):
    vW, vT0, vT1 = 10, 11, 12
    swz128(a, vr(vW), stride)
    trbase(a, vr(vT0), hfmul, 7, vcol0)
    a(f"s_lshl_b32 s61, {sW}, 15\nv_add_u32 {vr(vT0)}, s61, {vr(vT0)}\nv_xor_b32 {vr(vT1)}, 64, {vr(vT0)}")
    half = nks // 2
    for rnd in range(2):
        for n in range(2*half):
            dma(a, vr(vW), srd, soff_expr, ("s61", n*1024))
            a(f"s_add_u32 {soff_expr}, {soff_expr}, {8*stride}")
        for k in range(half):
            if k % 2 == 0: a(f"s_waitcnt vmcnt({max(0, 2*half - 2*k - 4)})")
            ks = rnd*half + k
            for sl, va in enumerate((vT0, vT1)):
                for e in range(2):
                    a(f"ds_read_b64_tr_b16 {ar(8*ks+4*sl+2*e,2)}, {vr(va)} offset:{k*2048+e*emul*128}")
        a("s_waitcnt lgkmcnt(0)")

def gemm_sub(a, nks, acc, vaddr, sbase, weight_is_A):
    RB = 16; DEP = 16
    def ld(k):
        if k and k % 4 == 0: a(f"s_add_u32 {sbase}, {sbase}, 4096")
        a(f"buffer_load_dwordx4 {vr(RB+4*(k%DEP),4)}, {vaddr}, {WS}, {sbase} offen offset:{(k%4)*1024} sc1")
    for k in range(DEP): ld(k)
    for k in range(nks):
        a(f"s_waitcnt vmcnt({min(DEP-1, nks-1-k)})")
        for sl in range(2):
            wv, av = ar(8*k+4*sl,4), vr(RB+4*(k%DEP),4)
            A_, B_ = (wv, av) if weight_is_A else (av, wv)
            mfma(a, vr(acc+16*sl,16), A_, B_, "0" if k == 0 else None)
        if k + DEP < nks: ld(k + DEP)

def reduce4(a, acc, xorbits, base):
    for p_ in range(1, 4):
        a(f"s_xor_b32 s3, {sW}, {xorbits[p_]}\ns_mul_i32 s3, s3, 6144\nv_add_u32 v2, s3, v7")
        for i in range(2):
            a(f"ds_write_b128 v2, {vr(acc+8*p_+4*i,4)} offset:{base+(p_-1)*2048+i*1024}")
    a(f"s_mul_i32 s3, {sW}, 6144\nv_add_u32 v2, s3, v7")
    a("s_waitcnt lgkmcnt(0)\ns_barrier")
    for i in range(6):
        a(f"ds_read_b128 {vr(acc+8+4*i,4)}, v2 offset:{base+i*1024}")
    for p_ in range(1, 4):
        a(f"s_waitcnt lgkmcnt({6-2*p_})")
        for i in range(8): a(f"v_add_f32 {vr(acc+i)}, {vr(acc+i)}, {vr(acc+8*p_+i)}")

def p4(a, endlab):
    a(f"s_cmp_ge_u32 {sDB}, 7\ns_cbranch_scc1 {endlab}\ns_cmp_ge_u32 s55, 7\ns_cbranch_scc1 {endlab}")
    a(f"v_lshlrev_b32 v7, 4, {vL}")
    BI = 100; AC = [112, 144]
    a(f"v_lshrrev_b32 v2, 5, {vL}\nv_lshlrev_b32 v2, 3, v2\ns_lshl2_add_u32 s3, {sFB}, {sW}\ns_lshl_b32 s3, s3, 5")
    for i in range(2): a(f"buffer_load_dwordx2 {vr(BI+8+2*i,2)}, v2, {RB1}, s3 offen offset:{i*16}")
    a(f"v_bfe_u32 v4, {vL}, 4, 1\nv_xor_b32 v4, {sW}, v4\nv_lshlrev_b32 v4, 5, v4\nv_and_b32 v5, 3, {vL}\nv_lshl_add_u32 v4, v5, 3, v4")
    a(f"s_mul_i32 s60, {sW}, {512*3584}\ns_lshl_b32 s3, {sFB}, 7\ns_add_u32 s60, s60, s3")
    stage_w(a, RW1, 3584, 32, "s60", "v4", 8, 4)
    for i in range(4):
        a(f"v_lshlrev_b32 {vr(BI+2*i)}, 16, {vr(BI+8+i)}\nv_and_b32 {vr(BI+2*i+1)}, 0xffff0000, {vr(BI+8+i)}")
    a("s_barrier")
    c0 = -2.0*math.sqrt(2.0/math.pi)*math.log2(math.e); c1 = c0*0.044715
    for t in range(2):
        a(f"s_lshl1_add_u32 s60, {sDB}, {t}\ns_lshl2_add_u32 s60, s60, {sW}\ns_lshl_b32 s60, s60, 15\ns_add_u32 s60, s60, {HN}")
        gemm_sub(a, 32, AC[t], "v7", "s60", True)
        reduce4(a, AC[t], [0, 1, 2, 3], t*24576)
        x = AC[t]
        a(f"v_mov_b32 v3, {fhex(c0)}")
        for i in range(8): a(f"v_add_f32 {vr(x+i)}, {vr(x+i)}, {vr(BI+i)}")
        for i in range(8): a(f"v_mul_f32 {vr(x+8+i)}, {vr(x+i)}, {vr(x+i)}")
        for i in range(8): a(f"v_fmamk_f32 {vr(x+8+i)}, {vr(x+8+i)}, {fhex(c1)}, v3")
        for i in range(8): a(f"v_mul_f32 {vr(x+8+i)}, {vr(x+8+i)}, {vr(x+i)}")
        for i in range(8): a(f"v_exp_f32 {vr(x+8+i)}, {vr(x+8+i)}")
        for i in range(8): a(f"v_add_f32 {vr(x+8+i)}, 1.0, {vr(x+8+i)}")
        for i in range(8): a(f"v_rcp_f32 {vr(x+8+i)}, {vr(x+8+i)}")
        for i in range(8): a(f"v_mul_f32 {vr(x+i)}, {vr(x+i)}, {vr(x+8+i)}")
        for i in range(4): a(f"v_cvt_pk_bf16_f32 {vr(x+16+i)}, {vr(x+2*i)}, {vr(x+2*i+1)}")
        a(f"s_lshl1_add_u32 s3, {sDB}, {t}\ns_mul_i32 s3, s3, 112\ns_lshl2_add_u32 s59, {sFB}, {sW}\ns_add_u32 s3, s3, s59\ns_lshl_b32 s3, s3, 10\ns_add_u32 s3, s3, {UB}")
        a(f"buffer_store_dwordx4 {vr(x+16,4)}, v7, {WS}, s3 offen sc1")

def p5(a, endlab):
    a(f"s_cmp_ge_u32 {sDB}, 7\ns_cbranch_scc1 {endlab}")
    sST, sKH, sTile = "s57", "s58", "s62"
    a(f"s_and_b32 {sST}, {sW}, 1\ns_lshr_b32 {sKH}, {sW}, 1\ns_lshl1_add_u32 {sTile}, {sSB}, {sST}")
    a(f"v_lshlrev_b32 v7, 4, {vL}")
    HH = 84; B2 = 100; AC = [112, 144]
    a(f"s_lshl2_add_u32 s3, s2, {sW}\ns_lshl_b32 s3, s3, 12\ns_add_u32 s3, s3, {HB}")
    for i in range(4): a(f"buffer_load_dwordx4 {vr(HH+4*i,4)}, v7, {WS}, s3 offen offset:{i*1024}")
    a(f"v_and_b32 v2, 31, {vL}\nv_lshlrev_b32 v2, 1, v2\ns_lshl_b32 s3, {sTile}, 6")
    a(f"buffer_load_ushort {vr(B2)}, v2, {RB2}, s3 offen")
    a(f"v_bfe_u32 v4, {vL}, 4, 1\nv_lshlrev_b32 v4, 5, v4\nv_and_b32 v5, 3, {vL}\nv_lshl_add_u32 v4, v5, 3, v4\ns_lshl_b32 s3, {sST}, 6\nv_add_u32 v4, s3, v4")
    a(f"s_mul_i32 s60, {sW}, {448*4096}\ns_lshl_b32 s3, {sSB}, 7\ns_add_u32 s60, s60, s3")
    stage_w(a, RW2, 4096, 28, "s60", "v4", 4, 8)
    a(f"v_lshlrev_b32 {vr(B2)}, 16, {vr(B2)}")
    a(f"s_lshl_b32 s3, {sKH}, 8\nv_xor_b32 v8, s3, v7")
    a(f"v_and_b32 v2, 31, {vL}\nv_mul_u32_u24 v9, 896, v2\nv_lshrrev_b32 v3, 5, {vL}\nv_lshl_add_u32 v9, v3, 4, v9")
    a(f"s_mul_i32 s63, {sTile}, {32*896}\ns_lshl_b32 s3, {sDB}, 7\ns_add_u32 s63, s63, s3\ns_lshl_b32 s3, {sKH}, 5\ns_add_u32 s63, s63, s3")
    a("s_barrier")
    for t in range(2):
        a(f"s_lshl1_add_u32 s60, {sDB}, {t}\ns_lshl2_add_u32 s60, s60, {sW}\ns_mul_i32 s60, s60, {28*1024}\ns_add_u32 s60, s60, {UB}")
        gemm_sub(a, 28, AC[t], "v8", "s60", False)
        reduce4(a, AC[t], [0, 2, 1, 3], t*24576)
        x = AC[t]
        for i in range(8): a(f"v_add_f32 {vr(x+i)}, {vr(x+i)}, {vr(B2)}")
        for i in range(8): a(f"v_add_f32 {vr(x+i)}, {vr(x+i)}, {vr(HH+8*t+i)}")
        for i in range(4): a(f"v_cvt_pk_bf16_f32 {vr(x+16+i)}, {vr(x+2*i)}, {vr(x+2*i+1)}")
        a(f"v_permlane32_swap_b32 {vr(x+16)}, {vr(x+18)}\nv_permlane32_swap_b32 {vr(x+17)}, {vr(x+19)}")
        a(f"buffer_store_dwordx4 {vr(x+16,4)}, v9, {ROUT}, s63 offen offset:{t*64}")

def build(extra_empty=0):
    ks = [("qkv_kernel", lambda a, e: p1(a), ["ws", "x", "wq"], 155648, 256, 0),
          ("attn_kernel", lambda a, e: p2(a), ["ws"], 49152, 256, 0),
          ("proj_kernel", p3, ["ws", "x", "wo"], 59392 + 16384 + 4*2304, 256, 0),
          ("mlp1_kernel", p4, ["ws", "w1", "b1"], 131072, 256, 256),
          ("mlp2_kernel", p5, ["ws", "w2", "b2", "out"], 131072, 256, 256)]
    hdr = open("cdna_kernels/" + NAME + ".s.ref").read().split("; Override launch")[0]
    out = hdr
    for n, f, need, lds, v, ag in ks:
        out += f"; @launch kernel={n} grid=(256,1,1) block=(256,1,1) lds={lds}\n"
    for i in range(extra_empty):
        out += f"; @launch kernel=empty_kernel grid=(256,1,1) block=(256,1,1) lds=0\n"
    out += '.amdgcn_target "amdgcn-amd-amdhsa--gfx950"\n'
    for n, f, need, lds, v, ag in ks:
        a = Asm(); a.uid = (1 + [k[0] for k in ks].index(n)) * 1000
        e = f"L_end_{n}"
        prologue(a, need, e)
        f(a, e)
        a(f"{e}:\ns_endpgm")
        nn = a.hazard_pass(verbose=("-v" in sys.argv))
        out += kernel_head(n) + a.text() + kernel_desc(n, v, ag)
    if extra_empty:
        out += kernel_head("empty_kernel") + "  s_endpgm\n" + kernel_desc("empty_kernel", 8, 0)
    return out

if __name__ == "__main__":
    ex = int(sys.argv[2]) if len(sys.argv) > 2 and sys.argv[2].isdigit() else 0
    open(sys.argv[1], "w").write(build(ex))
```

```python
import sys, math
from g import *

NAME = "sequential_preLN__softmax_full_mha__mixer_token_mlp__prompt"
S, D, H, DH, F = 2048, 448, 16, 28, 1792
KV   = 0x0000000
QB   = 0x0400000
OB   = 0x0600000
ST   = 0x0800000
HN   = 0x0900000
UB   = 0x0B00000
HB   = 0x0D00000
PROF = 0x1200000

sW, sRB, sH, sDB, sSB, sFB = "s4", "s5", "s6", "s7", "s8", "s9"
WS, RX, RWQ, RWO, RW1, RW2, RB1, RB2, ROUT = ("s[12:15]", "s[16:19]", "s[20:23]", "s[24:27]", "s[28:31]", "s[32:35]", "s[36:39]", "s[40:43]", "s[44:47]")
vL = "v1"

def vr(b, n=1): return f"v{b}" if n == 1 else f"v[{b}:{b+n-1}]"
def ar(b, n=1): return f"a{b}" if n == 1 else f"a[{b}:{b+n-1}]"
def mfma(a, d, A, B, C=None):
    a(f"v_mfma_f32_32x32x16_bf16 {d}, {A}, {B}, {d if C is None else C}")

def prologue(a, need, endlab):
    a(f"s_cmp_ge_u32 s2, 256")
    a(f"s_cbranch_scc1 {endlab}")
    a("s_load_dwordx16 s[64:79], s[0:1], 0")
    a("s_load_dwordx4 s[80:83], s[0:1], 64")
    a("s_load_dwordx2 s[84:85], s[0:1], 80")
    a("v_lshrrev_b32 v2, 6, v0")
    a(f"v_and_b32 {vL}, 63, v0")
    a(f"v_readfirstlane_b32 {sW}, v2")
    a("s_and_b32 s52, s2, 7")
    a("s_lshr_b32 s53, s2, 3")
    a("s_and_b32 s54, s53, 3")
    a("s_lshr_b32 s55, s53, 2")
    a("s_lshr_b32 s56, s52, 1")
    a(f"s_lshl2_add_u32 {sH}, s56, s54")
    a("s_and_b32 s56, s52, 1")
    a(f"s_lshl3_add_u32 {sRB}, s56, s55")
    a("s_lshr_b32 s56, s52, 2")
    a(f"s_lshl2_add_u32 {sDB}, s56, s54")
    a("s_and_b32 s56, s52, 3")
    a(f"s_lshl3_add_u32 {sSB}, s56, s55")
    a(f"s_sub_u32 {sFB}, {sSB}, s56")
    a("s_waitcnt lgkmcnt(0)")
    tbl = {"ws": (12, 84, 1 << 28), "x": (16, 64, S*D*2), "wq": (20, 66, D*3*D*2), "wo": (24, 68, D*D*2),
           "w1": (28, 72, S*F*2), "w2": (32, 76, S*F*2), "b1": (36, 74, F*2), "b2": (40, 78, S*2), "out": (44, 80, S*D*2)}
    for n in need:
        b, p, sz = tbl[n]
        a(f"s_mov_b32 s{b}, s{p}\ns_mov_b32 s{b+1}, s{p+1}\ns_mov_b32 s{b+2}, {sz}\ns_mov_b32 s{b+3}, 0x20000")

PROFILE = "prof" in sys.argv
STAMPS = []
def stamp(a, name):
    if not PROFILE: return
    i = len(STAMPS); STAMPS.append(name)
    a(f"s_memrealtime s[88:89]\ns_memtime s[92:93]\ns_waitcnt lgkmcnt(0)\nv_writelane_b32 v255, s88, {i}\nv_writelane_b32 v255, s92, {32+i}")
def stamp_flush(a, lo):
    if not PROFILE: return
    hi = len(STAMPS)
    mask = ((1 << hi) - 1) & ~((1 << lo) - 1)
    a(f"s_lshl2_add_u32 s3, s2, {sW}\ns_lshl_b32 s3, s3, 8\ns_add_u32 s3, s3, {PROF}\nv_lshlrev_b32 v2, 2, {vL}")
    a(f"s_mov_b32 exec_lo, {mask}\ns_mov_b32 exec_hi, {mask}\nbuffer_store_dword v255, v2, {WS}, s3 offen")
def show_prof(acc):
    import numpy as np
    names = open("stamps.txt").read().split()
    for r, p in enumerate(acc):
        if r < 5: continue
        fill = (r + 1) * 0x01010101
        t0 = p[:, :, 0].min()
        print("run", r)
        for i, n in enumerate(names):
            v = p[:, :, i]; ok = v != fill; v = v[ok] - t0
            ex = ""
            if i and not n.endswith("entry"):
                ok2 = ok & (p[:, :, i-1] != fill)
                dc = ((p[:, :, 32+i] - p[:, :, 31+i]) & 0xffffffff)[ok2]; dt = (p[:, :, i] - p[:, :, i-1])[ok2]
                ex = f" dcyc med {np.median(dc):7.0f} max {dc.max():7.0f}  GHz {dc.sum()/max(1,dt.sum())/10:5.2f}"
            print(f"  {n:12s} min {v.min()/100:7.2f} med {np.median(v)/100:7.2f} max {v.max()/100:7.2f}  n={v.size}{ex}")

def dma(a, vaddr, srd, soff, m0expr, off=0):
    sg_, c = m0expr
    if sg_ is None: a(f"s_mov_b32 m0, {c}")
    else: a(f"s_add_u32 m0, {sg_}, {c}")
    a(f"buffer_load_dwordx4 {vaddr}, {srd}, {soff} offen" + (f" offset:{off}" if off else "") + " lds")

def swz128(a, dst, stride, t1="v2", t2="v3"):
    a(f"v_lshrrev_b32 {t1}, 3, {vL}")
    a(f"v_mul_u32_u24 {dst}, {stride}, {t1}")
    a(f"v_lshrrev_b32 {t1}, 2, {vL}")
    a(f"v_and_b32 {t1}, 4, {t1}")
    a(f"v_and_b32 {t2}, 7, {vL}")
    a(f"v_xor_b32 {t1}, {t1}, {t2}")
    a(f"v_lshl_add_u32 {dst}, {t1}, 4, {dst}")

def xhalf_sum(a, v, t):
    a(f"v_mov_b32 {t}, {v}")
    a(f"v_permlane32_swap_b32 {t}, {v}")
    a(f"v_add_f32 {v}, {t}, {v}")

def p1(a):
    WB = 0; XB = 57344
    XF, ACA, ACB, CSA, CSB, WF = 16, 128, 144, 160, 176, 192
    ONES = 224
    vX = [228, 229, 230, 231]; vW = 232; vWQ = 233
    vXR = [234, 235, 236, 237]; vWA, vWBB = 238, 239; vQR0, vQR1 = 240, 241
    SUM, SQ = 242, 243
    sXB = "s57"; sWo = "s58"; sT = "s59"; sWm = "s60"
    a(f"s_lshl_b32 s3, {sRB}, 2\ns_add_u32 s3, s3, {sW}\ns_mul_i32 s3, s3, {32*896}")
    a(f"v_lshrrev_b32 v2, 3, {vL}\nv_mul_u32_u24 v2, 896, v2\nv_add_u32 v2, s3, v2")
    a(f"v_lshrrev_b32 v3, 4, {vL}\nv_and_b32 v4, 7, {vL}\nv_xor_b32 v3, v3, v4")
    a(f"v_lshl_add_u32 {vr(vX[0])}, v3, 4, v2")
    a(f"v_xor_b32 v3, 4, v3\nv_lshl_add_u32 v3, v3, 4, v2\nv_add_u32 {vr(vX[1])}, {8*896}, v3")
    a(f"v_add_u32 {vr(vX[2])}, {16*896}, {vr(vX[0])}\nv_add_u32 {vr(vX[3])}, {16*896}, {vr(vX[1])}")
    a(f"s_mul_i32 {sXB}, {sW}, 24576\ns_add_u32 {sXB}, {sXB}, {XB}")
    swz128(a, vr(vW), 2688)
    a(f"s_mul_i32 {sWo}, {sH}, 112\ns_mul_i32 s3, {sW}, {16*2688}\ns_add_u32 {sWo}, {sWo}, s3\ns_add_u32 {sWo}, {sWo}, 896")
    a(f"s_lshl_b32 {sWm}, {sW}, 11")
    def xdma(c, slot):
        for o in range(4):
            dma(a, vr(vX[o]), RX, "0", (sXB, slot*4096 + o*1024 - c*128), off=c*128)
    def wdma(c):
        for u in range(2):
            a(f"s_add_u32 {sT}, {sWo}, {(c*8+u)*8*2688}")
            dma(a, vr(vW), RWQ, sT, (sWm, WB + (c*8+u)*1024))
    for c in range(6):
        xdma(c, c); wdma(c)
    wdma(6)
    a(f"v_and_b32 v2, 31, {vL}\nv_lshlrev_b32 v3, 7, v2\nv_add_u32 v3, {sXB}, v3")
    a(f"v_lshrrev_b32 v4, 1, v2\nv_and_b32 v4, 7, v4\nv_lshrrev_b32 v5, 5, {vL}\nv_xor_b32 v4, v4, v5")
    for q in range(4):
        a(f"v_xor_b32 v6, {2*q}, v4\nv_lshl_add_u32 {vr(vXR[q])}, v6, 4, v3")
    a(f"v_bfe_u32 v2, {vL}, 2, 2")
    a(f"v_lshl_add_u32 v3, v5, 3, v2")
    a(f"v_bfe_u32 v4, {vL}, 4, 1\nv_lshlrev_b32 v4, 5, v4\nv_and_b32 v6, 3, {vL}\nv_lshl_add_u32 v4, v6, 3, v4")
    a(f"v_lshrrev_b32 v2, 1, v2\nv_lshlrev_b32 v2, 6, v2")
    a(f"v_xor_b32 v6, v4, v2\nv_lshl_add_u32 {vr(vWA)}, v3, 7, v6")
    a(f"v_add_u32 v6, 56, v4\nv_xor_b32 v6, v6, v2\nv_lshl_add_u32 {vr(vWBB)}, v3, 7, v6")
    a(f"v_lshl_add_u32 {vr(vQR0)}, v3, 6, v4\nv_add_u32 {vr(vQR0)}, {XB + 4096}, {vr(vQR0)}\nv_add_u32 {vr(vQR1)}, {2*24576}, {vr(vQR0)}")
    a(f"v_lshrrev_b32 v2, 2, {vL}\nv_mul_u32_u24 v2, 2688, v2\nv_and_b32 v3, 3, {vL}\nv_lshl_add_u32 {vr(vWQ)}, v3, 4, v2")
    for i in range(4): a(f"v_mov_b32 {vr(ONES+i)}, 0x3f803f80")
    a(f"v_mov_b32 {vr(SUM)}, 0\nv_mov_b32 {vr(SQ)}, 0")
    waits = [32, 30, 24, 25, 19, 13, 7]
    for c in range(7):
        slot = c % 6
        a(f"s_waitcnt vmcnt({waits[c]})\ns_barrier")
        if c in (0, 6): stamp(a, f"p1_c{c}")
        for q in range(4):
            ks = 4*c + q
            a(f"ds_read_b128 {vr(XF+4*ks,4)}, {vr(vXR[q])} offset:{slot*4096}")
            for hd, va in enumerate((vWA, vWBB)):
                for e in range(2):
                    a(f"ds_read_b64_tr_b16 {vr(WF+8*q+4*hd+2*e,2)}, {vr(va)} offset:{WB+ks*2048+e*512}")
            if q == 2:
                pass
        for q in range(4):
            ks = 4*c + q
            a(f"s_waitcnt lgkmcnt({min(15, 5*(3-q))})")
            first = "0" if ks == 0 else None
            x4 = vr(XF+4*ks, 4)
            mfma(a, vr(ACA,16), vr(WF+8*q,4), x4, first)
            for i in range(2): a(f"v_dot2_f32_bf16 {vr(SUM)}, {vr(XF+4*ks+i)}, {vr(ONES)}, {vr(SUM)}")
            mfma(a, vr(ACB,16), vr(WF+8*q+4,4), x4, first)
            for i in range(2,4): a(f"v_dot2_f32_bf16 {vr(SUM)}, {vr(XF+4*ks+i)}, {vr(ONES)}, {vr(SUM)}")
            mfma(a, vr(CSA,16), vr(WF+8*q,4), vr(ONES,4), first)
            for i in range(2): a(f"v_dot2_f32_bf16 {vr(SQ)}, {vr(XF+4*ks+i)}, {vr(XF+4*ks+i)}, {vr(SQ)}")
            mfma(a, vr(CSB,16), vr(WF+8*q+4,4), vr(ONES,4), first)
            for i in range(2,4): a(f"v_dot2_f32_bf16 {vr(SQ)}, {vr(XF+4*ks+i)}, {vr(XF+4*ks+i)}, {vr(SQ)}")
        if c == 0:
            xdma(6, 0)
        if c == 2:
            a(f"s_mul_i32 {sT}, {sH}, 56\ns_mul_i32 s3, {sW}, {7*16*2688}\ns_add_u32 {sT}, {sT}, s3")
            for i in range(7):
                dma(a, vr(vWQ), RWQ, sT, (sXB, 4096 + i*1024))
                if i < 6: a(f"s_add_u32 {sT}, {sT}, {16*2688}")
    MU, RS = 244, 245
    xhalf_sum(a, vr(SUM), "v2"); xhalf_sum(a, vr(SQ), "v3")
    a(f"v_mul_f32 {vr(MU)}, {fhex(-1.0/D)}, {vr(SUM)}")
    a(f"v_mul_f32 v2, {fhex(1.0/D)}, {vr(SQ)}")
    a(f"v_fma_f32 v2, -{vr(MU)}, {vr(MU)}, v2")
    a(f"v_max_f32 v2, 0, v2\nv_add_f32 v2, {fhex(1e-5)}, v2\nv_rsq_f32 {vr(RS)}, v2")
    a(f"v_cmp_lt_u32 vcc, 31, {vL}")
    PK = WF
    def finish(acc, cs, pk, rs):
        for i in range(16):
            a(f"v_fmac_f32 {vr(acc+i)}, {vr(MU)}, {vr(cs+i)}")
        for i in range(16):
            a(f"v_mul_f32 {vr(acc+i)}, {vr(rs)}, {vr(acc+i)}")
        for i in range(8):
            a(f"v_cvt_pk_bf16_f32 {vr(pk+i)}, {vr(acc+2*i)}, {vr(acc+2*i+1)}")
    finish(ACA, CSA, PK, RS); finish(ACB, CSB, PK+8, RS)
    a(f"s_and_b32 s3, {sH}, 7\ns_lshl_b32 s3, s3, 7\ns_lshl2_add_u32 s3, {sRB}, s3\ns_add_u32 s3, s3, {sW}\ns_lshl_b32 {sT}, s3, 12")
    a(f"v_lshlrev_b32 v7, 4, {vL}")
    lv = a.lab("v"); lq = a.lab("q")
    a(f"s_cmp_ge_u32 {sH}, 8\ns_cbranch_scc1 {lv}")
    a(f"v_mov_b32 v2, 0x3f80")
    for hd in range(2):
        a(f"v_cndmask_b32 {vr(PK+8*hd+6)}, {vr(PK+8*hd+6)}, {vr(ONES)}, vcc")
        a(f"v_cndmask_b32 {vr(PK+8*hd+7)}, {vr(PK+8*hd+7)}, v2, vcc")
    for hd in range(2):
        if hd: a(f"s_add_u32 {sT}, {sT}, {64*4096}")
        a(f"buffer_store_dwordx4 {vr(PK+8*hd,4)}, v7, {WS}, {sT} offen sc1")
        a(f"buffer_store_dwordx4 {vr(PK+8*hd+4,4)}, v7, {WS}, {sT} offen offset:1024 sc1")
    a(f"s_branch {lq}")
    a(f"{lv}:")
    a(f"v_mov_b32 v2, 0x3f80\nv_mov_b32 v3, 0")
    for hd in range(2):
        a(f"v_cndmask_b32 {vr(PK+8*hd+6)}, {vr(PK+8*hd+6)}, v2, vcc")
        a(f"v_cndmask_b32 {vr(PK+8*hd+7)}, {vr(PK+8*hd+7)}, v3, vcc")
    a(f"v_and_b32 v2, 31, {vL}\nv_mul_u32_u24 v2, 72, v2\nv_lshrrev_b32 v3, 5, {vL}\nv_lshl_add_u32 v2, v3, 3, v2\nv_add_u32 v2, {sXB}, v2")
    for hd in range(2):
        for i in range(4):
            a(f"ds_write_b64 v2, {vr(PK+8*hd+2*i,2)} offset:{3*4096 + hd*4096 + i*16}")
    a(f"v_bfe_u32 v4, {vL}, 2, 2\nv_lshl_add_u32 v4, v3, 2, v4\nv_mul_u32_u24 v4, 72, v4")
    a(f"v_bfe_u32 v5, {vL}, 4, 1\nv_lshl_add_u32 v4, v5, 5, v4\nv_and_b32 v5, 3, {vL}\nv_lshl_add_u32 v4, v5, 3, v4\nv_add_u32 v4, {sXB}, v4")
    a("s_waitcnt lgkmcnt(0)")
    for hd in range(2):
        for j in range(2):
            for e in range(2):
                a(f"ds_read_b64_tr_b16 {vr(PK+16+8*hd+4*j+2*e,2)}, v4 offset:{3*4096 + hd*4096 + (16*j+8*e)*72}")
    a("s_waitcnt lgkmcnt(0)")
    for hd in range(2):
        if hd: a(f"s_add_u32 {sT}, {sT}, {64*4096}")
        a(f"buffer_store_dwordx4 {vr(PK+16+8*hd,4)}, v7, {WS}, {sT} offen offset:2048 sc1")
        a(f"buffer_store_dwordx4 {vr(PK+16+8*hd+4,4)}, v7, {WS}, {sT} offen offset:3072 sc1")
    a(f"{lq}:")
    a("s_waitcnt vmcnt(4)\ns_barrier")
    QF = CSB
    bufs = [ACB, ACB+4, ACB+8, ACB+12, CSB, CSB+4, CSB+8]
    for grp in range(4):
        va = vQR0 if grp < 2 else vQR1
        for i in range(7):
            for e in range(2):
                a(f"ds_read_b64_tr_b16 {vr(bufs[i]+2*e,2)}, {vr(va)} offset:{(grp&1)*24576 + i*1024 + e*256}")
        for i in range(7):
            ks = 7*grp + i
            a(f"s_waitcnt lgkmcnt({2*(6-i)})")
            first = "0" if ks == 0 else None
            mfma(a, vr(ACA,16), vr(bufs[i],4), vr(XF+4*ks,4), first)
            mfma(a, vr(CSA,16), vr(bufs[i],4), vr(ONES,4), first)
    a(f"v_mul_f32 {vr(RS)}, {fhex(DH**-0.5 * math.log2(math.e))}, {vr(RS)}")
    QP = 246
    finish(ACA, CSA, QP, RS)
    a("v_mov_b32 v3, 0")
    a(f"v_cndmask_b32 {vr(QP+6)}, {vr(QP+6)}, v3, vcc\nv_cndmask_b32 {vr(QP+7)}, {vr(QP+7)}, v3, vcc")
    a(f"s_lshl_b32 s3, {sH}, 6\ns_lshl2_add_u32 s3, {sRB}, s3\ns_add_u32 s3, s3, {sW}\ns_lshl_b32 s3, s3, 11\ns_add_u32 s3, s3, {QB}")
    a(f"buffer_store_dwordx4 {vr(QP,4)}, v7, {WS}, s3 offen")
    a(f"buffer_store_dwordx4 {vr(QP+4,4)}, v7, {WS}, s3 offen offset:1024")
    a(f"v_mov_b32 v3, -1\nv_lshlrev_b32 v2, 2, v0\ns_lshl_b32 s3, s2, 10\ns_add_u32 s3, s3, {ST}")
    a(f"buffer_store_dword v3, v2, {WS}, s3 offen")

def p2(a):
    Q, O, SS, P, KVB = 16, 48, 112, 144, 152
    RKV = "s[48:51]"; sO = "s57"; sC = "s58"
    a(f"v_lshlrev_b32 v7, 4, {vL}")
    for j in range(4):
        a(f"s_add_u32 s3, {sW}, {j+1}\ns_and_b32 s3, s3, 3\ns_lshl2_add_u32 s3, {sRB}, s3\ns_lshl_b32 s59, {sH}, 6\ns_add_u32 s3, s3, s59\ns_lshl_b32 s3, s3, 11\ns_add_u32 s3, s3, {QB}")
        a(f"buffer_load_dwordx4 {vr(Q+8*j,4)}, v7, {WS}, s3 offen")
        a(f"buffer_load_dwordx4 {vr(Q+8*j+4,4)}, v7, {WS}, s3 offen offset:1024")
    a(f"s_lshl2_add_u32 {sO}, {sH}, {sW}\ns_lshl_b32 {sO}, {sO}, 16")
    a(f"s_mov_b32 s48, s12\ns_mov_b32 s49, s13\ns_add_u32 s50, {sO}, 65536\ns_mov_b32 s51, 0x20000")
    def ld(buf, part):
        a(f"buffer_load_dwordx4 {vr(KVB+16*buf+4*part,4)}, v7, {RKV}, {sO} offen offset:{part*1024} sc1")
    for t in range(3):
        for p_ in range(4): ld(t, p_)
        a(f"s_add_u32 {sO}, {sO}, 4096")
    for i in range(64): a(f"v_mov_b32 {vr(O+i)}, 0")
    for i in range(4): a(f"v_mov_b32 {vr(P+4+i)}, 0\nv_mov_b32 {vr(KVB+48+12+i)}, 0")
    a(f"s_mov_b32 {sC}, 4")
    a("s_waitcnt vmcnt(8)")
    mfma(a, vr(SS,16), vr(KVB,4), vr(Q,4), "0")
    mfma(a, vr(SS,16), vr(KVB+4,4), vr(Q+4,4))
    a("s_nop 11")
    stamp(a, "p2_loop")
    lp = a.lab("att")
    a(".p2align 6")
    a(f"{lp}:")
    for u in range(16):
        kt, j = u >> 2, u & 3
        n = (u + 1) & 15; nkt, nj = n >> 2, n & 3
        pv = (u - 1) & 15; pkt, pj = pv >> 2, pv & 3
        sc, sn = SS + 16*(u & 1), SS + 16*(n & 1)
        def valu(g):
            for i in range(4): a(f"v_exp_f32 {vr(sc+4*g+i)}, {vr(sc+4*g+i)}")
            for i in range(2): a(f"v_cvt_pk_bf16_f32 {vr(P+2*g+i)}, {vr(sc+4*g+2*i)}, {vr(sc+4*g+2*i+1)}")
        mfma(a, vr(sn,16), vr(KVB+16*nkt,4), vr(Q+8*nj,4), "0")
        if u == 15: a(f"s_sub_u32 {sC}, {sC}, 1")
        valu(0)
        mfma(a, vr(O+16*pj,16), vr(KVB+16*pkt+12,4), vr(P+4,4))
        ld((kt + 3) & 3, j)
        valu(1)
        mfma(a, vr(sn,16), vr(KVB+16*nkt+4,4), vr(Q+8*nj+4,4))
        if j == 3: a(f"s_add_u32 {sO}, {sO}, 4096")
        valu(2)
        mfma(a, vr(O+16*j,16), vr(KVB+16*kt+8,4), vr(P,4))
        if j == 2: a("s_waitcnt vmcnt(7)")
        if u == 15: a(f"s_cmp_lg_u32 {sC}, 0")
        valu(3)
    a(f"s_cbranch_scc1 {lp}")
    mfma(a, vr(O+48,16), vr(KVB+48+12,4), vr(P+4,4))
    stamp(a, "p2_loopend")
    for j in range(3):
        a(f"s_add_u32 s3, {sW}, {j+1}\ns_and_b32 s3, s3, 3\ns_mul_i32 s3, s3, 12288\nv_add_u32 v2, s3, v7")
        for i in range(4):
            a(f"ds_write_b128 v2, {vr(O+16*j+4*i,4)} offset:{j*4096+i*1024}")
    a(f"s_mul_i32 s3, {sW}, 12288\nv_add_u32 v2, s3, v7")
    a("s_waitcnt lgkmcnt(0)\ns_barrier")
    for i in range(12):
        a(f"ds_read_b128 {vr(O+4*i,4)}, v2 offset:{i*1024}")
    for j in range(3):
        a(f"s_waitcnt lgkmcnt({8-4*j})")
        for i in range(16): a(f"v_add_f32 {vr(O+48+i)}, {vr(O+48+i)}, {vr(O+16*j+i)}")
    a(f"v_mov_b32 v2, {vr(O+48+12)}\nv_mov_b32 v3, {vr(O+48+12)}\nv_permlane32_swap_b32 v2, v3\nv_rcp_f32 v3, v3")
    a(f"v_cmp_lt_u32 vcc, 31, {vL}\nv_mov_b32 v4, 0")
    for i in range(16): a(f"v_mul_f32 {vr(O+48+i)}, v3, {vr(O+48+i)}")
    for i in range(8): a(f"v_cvt_pk_bf16_f32 {vr(P+i)}, {vr(O+48+2*i)}, {vr(O+48+2*i+1)}")
    a(f"v_cndmask_b32 {vr(P+6)}, {vr(P+6)}, v4, vcc\nv_cndmask_b32 {vr(P+7)}, {vr(P+7)}, v4, vcc")
    a(f"s_lshl2_add_u32 s3, {sRB}, {sW}\ns_lshl4_add_u32 s3, s3, {sH}\ns_lshl_b32 s3, s3, 11\ns_add_u32 s3, s3, {OB}")
    a(f"buffer_store_dwordx4 {vr(P,4)}, v7, {WS}, s3 offen sc1")
    a(f"buffer_store_dwordx4 {vr(P+4,4)}, v7, {WS}, s3 offen offset:1024 sc1")

def trbase(a, dst, hfmul, rowbytes_shift, colexpr_reg, t1="v2", t2="v3"):
    a(f"v_bfe_u32 {t1}, {vL}, 2, 2")
    a(f"v_lshrrev_b32 {t2}, 5, {vL}")
    a(f"v_lshl_add_u32 {t2}, {t2}, {int(math.log2(hfmul))}, {t1}")
    a(f"v_lshrrev_b32 {t1}, 1, {t1}\nv_lshlrev_b32 {t1}, 6, {t1}")
    a(f"v_xor_b32 {t1}, {t1}, {colexpr_reg}")
    a(f"v_lshl_add_u32 {dst}, {t2}, 7, {t1}")

def p3(a, endlab):
    a(f"s_cmp_ge_u32 {sDB}, 7\ns_cbranch_scc1 {endlab}")
    OF, AC, WF, XR, HH = 16, 80, 112, 144, 80
    vW, vT0, vT1 = 160, 161, 162
    sST, sKH, sT, sTile = "s57", "s58", "s59", "s60"
    WOB, EX, TRB = 0, 59392, 59392 + 16384
    a(f"s_and_b32 {sST}, {sW}, 1\ns_lshr_b32 {sKH}, {sW}, 1\ns_lshl1_add_u32 {sTile}, {sSB}, {sST}")
    a(f"v_lshlrev_b32 v7, 4, {vL}")
    swz128(a, vr(vW), 896)
    a(f"s_mul_i32 s3, {sW}, {14*8*896}\ns_lshl_b32 {sT}, {sDB}, 7\ns_add_u32 {sT}, {sT}, s3\ns_mul_i32 s61, {sW}, {14*1024}")
    for n in range(15):
        dma(a, vr(vW), RWO, sT, ("s61", WOB + n*1024))
        if n < 14: a(f"s_add_u32 {sT}, {sT}, {8*896}")
    a(f"v_and_b32 v2, 31, {vL}\nv_mul_u32_u24 v2, 896, v2\nv_lshrrev_b32 v3, 5, {vL}\nv_lshl_add_u32 v2, v3, 3, v2")
    a(f"s_mul_i32 s3, {sTile}, {32*896}\ns_lshl_b32 {sT}, {sDB}, 7\ns_add_u32 s3, s3, {sT}\ns_lshl_b32 {sT}, {sKH}, 5\ns_add_u32 s3, s3, {sT}")
    for t in range(2):
        for i in range(2):
            a(f"buffer_load_dwordx2 {vr(XR+4*t+2*i,2)}, v2, {RX}, s3 offen offset:{t*64+i*16}")
    a(f"s_lshl1_add_u32 s3, {sTile}, {sKH}\ns_lshl_b32 s3, s3, 14\ns_add_u32 s3, s3, {OB}")
    for k in range(16):
        if k and k % 4 == 0: a("s_add_u32 s3, s3, 4096")
        a(f"buffer_load_dwordx4 {vr(OF+4*k,4)}, v7, {WS}, s3 offen offset:{(k%4)*1024} sc1")
    a(f"v_bfe_u32 v4, {vL}, 4, 1\nv_xor_b32 v4, {sKH}, v4\nv_lshlrev_b32 v4, 5, v4\nv_and_b32 v5, 3, {vL}\nv_lshl_add_u32 v4, v5, 3, v4")
    trbase(a, vr(vT0), 4, 7, "v4")
    a(f"s_mul_i32 s3, {sKH}, {224*128}\nv_add_u32 {vr(vT0)}, s3, {vr(vT0)}\nv_xor_b32 {vr(vT1)}, 64, {vr(vT0)}")
    a("s_waitcnt vmcnt(20)\ns_barrier")
    def rd(k):
        hh, j = k >> 1, k & 1
        b = WF + 8*(k & 3)
        for t, va in enumerate((vT0, vT1)):
            for e in range(2):
                a(f"ds_read_b64_tr_b16 {vr(b+4*t+2*e,2)}, {vr(va)} offset:{WOB+(28*hh+16*j+8*e)*128}")
    rd(0); rd(1); rd(2)
    for k in range(16):
        if k + 3 < 16: rd(k+3)
        rem = min(3, 15-k)
        a(f"s_waitcnt vmcnt({15-k}) lgkmcnt({4*rem})")
        b = WF + 8*(k & 3)
        for t in range(2):
            mfma(a, vr(AC+16*t,16), vr(b+4*t,4), vr(OF+4*k,4), "0" if k == 0 else None)
    stamp(a, "p3_mm")
    a(f"s_lshl_b32 s3, {sW}, 12\nv_add_u32 v2, s3, v7\nv_xor_b32 v3, 8192, v2")
    for t in range(2):
        for i in range(2):
            a(f"ds_write_b128 v2, {vr(AC+16*t+8+4*i,4)} offset:{EX+(2*t+i)*1024}")
    a("s_waitcnt lgkmcnt(0)\ns_barrier")
    for t in range(2):
        for i in range(2):
            a(f"ds_read_b128 {vr(AC+16*t+8+4*i,4)}, v3 offset:{EX+(2*t+i)*1024}")
    hreg = lambda t, i: AC + 16*t + i
    for t in range(2):
        for i in range(4):
            a(f"v_lshlrev_b32 v4, 16, {vr(XR+4*t+i)}\nv_and_b32 v5, 0xffff0000, {vr(XR+4*t+i)}")
            a(f"v_add_f32 {vr(hreg(t,2*i))}, v4, {vr(hreg(t,2*i))}\nv_add_f32 {vr(hreg(t,2*i+1))}, v5, {vr(hreg(t,2*i+1))}")
    a("s_waitcnt lgkmcnt(0)")
    for t in range(2):
        for i in range(8): a(f"v_add_f32 {vr(hreg(t,i))}, {vr(hreg(t,i))}, {vr(hreg(t,8+i))}")
    a(f"v_add_f32 v8, {vr(hreg(0,0))}, {vr(hreg(1,0))}\nv_mul_f32 v9, {vr(hreg(0,0))}, {vr(hreg(0,0))}\nv_fmac_f32 v9, {vr(hreg(1,0))}, {vr(hreg(1,0))}")
    for t in range(2):
        for i in range(1, 8):
            a(f"v_add_f32 v8, v8, {vr(hreg(t,i))}\nv_fmac_f32 v9, {vr(hreg(t,i))}, {vr(hreg(t,i))}")
    xhalf_sum(a, "v8", "v2"); xhalf_sum(a, "v9", "v3")
    a("v_min_u32 v9, -2, v9")
    a(f"v_lshlrev_b32 v6, 3, {vL}")
    a(f"s_lshl_b32 s62, {sTile}, 12\ns_add_u32 s62, s62, {ST}\ns_lshl1_add_u32 s3, {sDB}, {sKH}\ns_lshl_b32 s3, s3, 8\ns_add_u32 s3, s3, s62")
    a("s_mov_b32 exec_hi, 0")
    a(f"buffer_store_dwordx2 v[8:9], v6, {WS}, s3 offen sc1")
    a("s_mov_b32 exec_hi, -1")
    a(f"s_lshl2_add_u32 s3, s2, {sW}\ns_lshl_b32 s3, s3, 12\ns_add_u32 s3, s3, {HB}")
    for t in range(2):
        for i in range(2):
            a(f"buffer_store_dwordx4 {vr(hreg(t,4*i),4)}, v7, {WS}, s3 offen offset:{(2*t+i)*1024}")
    lp = a.lab("st"); le = a.lab("ste")
    a("s_mov_b32 s63, 0x4000000")
    a(f"{lp}:")
    for i in range(7):
        a(f"buffer_load_dwordx2 {vr(OF+2*i,2)}, v6, {WS}, s62 offen offset:{i*512} sc1")
    a(f"s_sub_u32 s63, s63, 1\ns_cmp_eq_u32 s63, 0")
    a("s_waitcnt vmcnt(0)")
    a(f"s_cbranch_scc1 {le}")
    a(f"v_max3_u32 v2, {vr(OF+1)}, {vr(OF+3)}, {vr(OF+5)}\nv_max3_u32 v2, v2, {vr(OF+7)}, {vr(OF+9)}\nv_max3_u32 v2, v2, {vr(OF+11)}, {vr(OF+13)}")
    a(f"v_cmp_eq_u32 vcc, -1, v2\ns_cbranch_vccnz {lp}")
    a(f"{le}:")
    stamp(a, "p3_stats")
    for i in range(1, 7):
        a(f"v_add_f32 {vr(OF)}, {vr(OF)}, {vr(OF+2*i)}\nv_add_f32 {vr(OF+1)}, {vr(OF+1)}, {vr(OF+2*i+1)}")
    xhalf_sum(a, vr(OF), "v2"); xhalf_sum(a, vr(OF+1), "v3")
    a(f"v_mul_f32 v8, {fhex(-1.0/D)}, {vr(OF)}\nv_mul_f32 v2, {fhex(1.0/D)}, {vr(OF+1)}\nv_fma_f32 v2, -v8, v8, v2\nv_max_f32 v2, 0, v2")
    a(f"v_add_f32 v3, {fhex(1e-5)}, v2\nv_rsq_f32 v9, v3\nv_mul_f32 v2, v2, v9\nv_mul_f32 v2, v2, v9\nv_add_f32 v2, {fhex(1e-5)}, v2\nv_rsq_f32 v2, v2\nv_mul_f32 v9, v9, v2")
    a("v_mul_f32 v8, v8, v9")
    for t in range(2):
        for i in range(8): a(f"v_fma_f32 {vr(hreg(t,8+i))}, {vr(hreg(t,i))}, v9, v8")
        for i in range(4): a(f"v_cvt_pk_bf16_f32 {vr(OF+4*t+i)}, {vr(hreg(t,8+2*i))}, {vr(hreg(t,8+2*i+1))}")
    a(f"s_mul_i32 s3, {sW}, 2304\nv_and_b32 v2, 31, {vL}\nv_mul_u32_u24 v2, 72, v2\nv_lshrrev_b32 v3, 5, {vL}\nv_lshl_add_u32 v2, v3, 3, v2\nv_add_u32 v2, s3, v2\nv_add_u32 v2, {TRB}, v2")
    for t in range(2):
        for i in range(2):
            a(f"ds_write_b64 v2, {vr(OF+4*t+2*i,2)} offset:{t*32+i*16}")
    a(f"v_bfe_u32 v4, {vL}, 2, 2\nv_lshl_add_u32 v4, v3, 3, v4\nv_mul_u32_u24 v4, 72, v4\nv_bfe_u32 v5, {vL}, 4, 1\nv_lshl_add_u32 v4, v5, 5, v4\nv_and_b32 v6, 3, {vL}\nv_lshl_add_u32 v4, v6, 3, v4\nv_add_u32 v4, s3, v4\nv_add_u32 v4, {TRB}, v4")
    a(f"v_lshlrev_b32 v5, 17, v5\nv_lshl_add_u32 v5, v3, 9, v5\nv_and_b32 v6, 15, {vL}\nv_lshl_add_u32 v5, v6, 4, v5")
    a(f"s_lshl_b32 s3, {sDB}, 18\ns_lshl_b32 {sT}, {sTile}, 11\ns_add_u32 s3, s3, {sT}\ns_lshl_b32 {sT}, {sKH}, 8\ns_add_u32 s3, s3, {sT}\ns_add_u32 s3, s3, {HN}")
    a("s_waitcnt lgkmcnt(0)")
    for j in range(2):
        for e in range(2):
            a(f"ds_read_b64_tr_b16 {vr(OF+8+4*j+2*e,2)}, v4 offset:{(16*j+4*e)*72}")
    a("s_waitcnt lgkmcnt(0)")
    for j in range(2):
        a(f"buffer_store_dwordx4 {vr(OF+8+4*j,4)}, v5, {WS}, s3 offen offset:{j*1024} sc1")

def stage_w(a, srd, stride, nks, soff_expr, vcol0, hfmul, emul):
    vW, vT0, vT1 = 10, 11, 12
    swz128(a, vr(vW), stride)
    trbase(a, vr(vT0), hfmul, 7, vcol0)
    a(f"s_lshl_b32 s61, {sW}, 15\nv_add_u32 {vr(vT0)}, s61, {vr(vT0)}\nv_xor_b32 {vr(vT1)}, 64, {vr(vT0)}")
    half = nks // 2
    for rnd in range(2):
        for n in range(2*half):
            dma(a, vr(vW), srd, soff_expr, ("s61", n*1024))
            a(f"s_add_u32 {soff_expr}, {soff_expr}, {8*stride}")
        for k in range(half):
            if k % 2 == 0: a(f"s_waitcnt vmcnt({max(0, 2*half - 2*k - 4)})")
            ks = rnd*half + k
            for sl, va in enumerate((vT0, vT1)):
                for e in range(2):
                    a(f"ds_read_b64_tr_b16 {ar(8*ks+4*sl+2*e,2)}, {vr(va)} offset:{k*2048+e*emul*128}")
        a("s_waitcnt lgkmcnt(0)")

def gemm_sub(a, nks, acc, vaddr, sbase, weight_is_A):
    RB = 16; DEP = 16
    def ld(k):
        if k and k % 4 == 0: a(f"s_add_u32 {sbase}, {sbase}, 4096")
        a(f"buffer_load_dwordx4 {vr(RB+4*(k%DEP),4)}, {vaddr}, {WS}, {sbase} offen offset:{(k%4)*1024} sc1")
    for k in range(DEP): ld(k)
    for k in range(nks):
        a(f"s_waitcnt vmcnt({min(DEP-1, nks-1-k)})")
        for sl in range(2):
            wv, av = ar(8*k+4*sl,4), vr(RB+4*(k%DEP),4)
            A_, B_ = (wv, av) if weight_is_A else (av, wv)
            mfma(a, vr(acc+16*sl,16), A_, B_, "0" if k == 0 else None)
        if k + DEP < nks: ld(k + DEP)

def reduce4(a, acc, xorbits, base):
    for p_ in range(1, 4):
        a(f"s_xor_b32 s3, {sW}, {xorbits[p_]}\ns_mul_i32 s3, s3, 6144\nv_add_u32 v2, s3, v7")
        for i in range(2):
            a(f"ds_write_b128 v2, {vr(acc+8*p_+4*i,4)} offset:{base+(p_-1)*2048+i*1024}")
    a(f"s_mul_i32 s3, {sW}, 6144\nv_add_u32 v2, s3, v7")
    a("s_waitcnt lgkmcnt(0)\ns_barrier")
    for i in range(6):
        a(f"ds_read_b128 {vr(acc+8+4*i,4)}, v2 offset:{base+i*1024}")
    for p_ in range(1, 4):
        a(f"s_waitcnt lgkmcnt({6-2*p_})")
        for i in range(8): a(f"v_add_f32 {vr(acc+i)}, {vr(acc+i)}, {vr(acc+8*p_+i)}")

def p4(a, endlab):
    a(f"s_cmp_ge_u32 {sDB}, 7\ns_cbranch_scc1 {endlab}\ns_cmp_ge_u32 s55, 7\ns_cbranch_scc1 {endlab}")
    a(f"v_lshlrev_b32 v7, 4, {vL}")
    BI = 100; AC = [112, 144]
    a(f"v_lshrrev_b32 v2, 5, {vL}\nv_lshlrev_b32 v2, 3, v2\ns_lshl2_add_u32 s3, {sFB}, {sW}\ns_lshl_b32 s3, s3, 5")
    for i in range(2): a(f"buffer_load_dwordx2 {vr(BI+8+2*i,2)}, v2, {RB1}, s3 offen offset:{i*16}")
    a(f"v_bfe_u32 v4, {vL}, 4, 1\nv_xor_b32 v4, {sW}, v4\nv_lshlrev_b32 v4, 5, v4\nv_and_b32 v5, 3, {vL}\nv_lshl_add_u32 v4, v5, 3, v4")
    a(f"s_mul_i32 s60, {sW}, {512*3584}\ns_lshl_b32 s3, {sFB}, 7\ns_add_u32 s60, s60, s3")
    stage_w(a, RW1, 3584, 32, "s60", "v4", 8, 4)
    for i in range(4):
        a(f"v_lshlrev_b32 {vr(BI+2*i)}, 16, {vr(BI+8+i)}\nv_and_b32 {vr(BI+2*i+1)}, 0xffff0000, {vr(BI+8+i)}")
    a("s_barrier")
    stamp(a, "p4_staged")
    c0 = -2.0*math.sqrt(2.0/math.pi)*math.log2(math.e); c1 = c0*0.044715
    for t in range(2):
        a(f"s_lshl1_add_u32 s60, {sDB}, {t}\ns_lshl2_add_u32 s60, s60, {sW}\ns_lshl_b32 s60, s60, 15\ns_add_u32 s60, s60, {HN}")
        gemm_sub(a, 32, AC[t], "v7", "s60", True)
        reduce4(a, AC[t], [0, 1, 2, 3], t*24576)
        x = AC[t]
        a(f"v_mov_b32 v3, {fhex(c0)}")
        for i in range(8): a(f"v_add_f32 {vr(x+i)}, {vr(x+i)}, {vr(BI+i)}")
        for i in range(8): a(f"v_mul_f32 {vr(x+8+i)}, {vr(x+i)}, {vr(x+i)}")
        for i in range(8): a(f"v_fmamk_f32 {vr(x+8+i)}, {vr(x+8+i)}, {fhex(c1)}, v3")
        for i in range(8): a(f"v_mul_f32 {vr(x+8+i)}, {vr(x+8+i)}, {vr(x+i)}")
        for i in range(8): a(f"v_exp_f32 {vr(x+8+i)}, {vr(x+8+i)}")
        for i in range(8): a(f"v_add_f32 {vr(x+8+i)}, 1.0, {vr(x+8+i)}")
        for i in range(8): a(f"v_rcp_f32 {vr(x+8+i)}, {vr(x+8+i)}")
        for i in range(8): a(f"v_mul_f32 {vr(x+i)}, {vr(x+i)}, {vr(x+8+i)}")
        for i in range(4): a(f"v_cvt_pk_bf16_f32 {vr(x+16+i)}, {vr(x+2*i)}, {vr(x+2*i+1)}")
        a(f"s_lshl1_add_u32 s3, {sDB}, {t}\ns_mul_i32 s3, s3, 112\ns_lshl2_add_u32 s59, {sFB}, {sW}\ns_add_u32 s3, s3, s59\ns_lshl_b32 s3, s3, 10\ns_add_u32 s3, s3, {UB}")
        a(f"buffer_store_dwordx4 {vr(x+16,4)}, v7, {WS}, s3 offen sc1")

def p5(a, endlab):
    a(f"s_cmp_ge_u32 {sDB}, 7\ns_cbranch_scc1 {endlab}")
    sST, sKH, sTile = "s57", "s58", "s62"
    a(f"s_and_b32 {sST}, {sW}, 1\ns_lshr_b32 {sKH}, {sW}, 1\ns_lshl1_add_u32 {sTile}, {sSB}, {sST}")
    a(f"v_lshlrev_b32 v7, 4, {vL}")
    HH = 84; B2 = 100; AC = [112, 144]
    a(f"s_lshl2_add_u32 s3, s2, {sW}\ns_lshl_b32 s3, s3, 12\ns_add_u32 s3, s3, {HB}")
    for i in range(4): a(f"buffer_load_dwordx4 {vr(HH+4*i,4)}, v7, {WS}, s3 offen offset:{i*1024}")
    a(f"v_and_b32 v2, 31, {vL}\nv_lshlrev_b32 v2, 1, v2\ns_lshl_b32 s3, {sTile}, 6")
    a(f"buffer_load_ushort {vr(B2)}, v2, {RB2}, s3 offen")
    a(f"v_bfe_u32 v4, {vL}, 4, 1\nv_lshlrev_b32 v4, 5, v4\nv_and_b32 v5, 3, {vL}\nv_lshl_add_u32 v4, v5, 3, v4\ns_lshl_b32 s3, {sST}, 6\nv_add_u32 v4, s3, v4")
    a(f"s_mul_i32 s60, {sW}, {448*4096}\ns_lshl_b32 s3, {sSB}, 7\ns_add_u32 s60, s60, s3")
    stage_w(a, RW2, 4096, 28, "s60", "v4", 4, 8)
    a(f"v_lshlrev_b32 {vr(B2)}, 16, {vr(B2)}")
    a(f"s_lshl_b32 s3, {sKH}, 8\nv_xor_b32 v8, s3, v7")
    a(f"v_and_b32 v2, 31, {vL}\nv_mul_u32_u24 v9, 896, v2\nv_lshrrev_b32 v3, 5, {vL}\nv_lshl_add_u32 v9, v3, 4, v9")
    a(f"s_mul_i32 s63, {sTile}, {32*896}\ns_lshl_b32 s3, {sDB}, 7\ns_add_u32 s63, s63, s3\ns_lshl_b32 s3, {sKH}, 5\ns_add_u32 s63, s63, s3")
    a("s_barrier")
    stamp(a, "p5_staged")
    for t in range(2):
        a(f"s_lshl1_add_u32 s60, {sDB}, {t}\ns_lshl2_add_u32 s60, s60, {sW}\ns_mul_i32 s60, s60, {28*1024}\ns_add_u32 s60, s60, {UB}")
        gemm_sub(a, 28, AC[t], "v8", "s60", False)
        reduce4(a, AC[t], [0, 2, 1, 3], t*24576)
        x = AC[t]
        for i in range(8): a(f"v_add_f32 {vr(x+i)}, {vr(x+i)}, {vr(B2)}")
        for i in range(8): a(f"v_add_f32 {vr(x+i)}, {vr(x+i)}, {vr(HH+8*t+i)}")
        for i in range(4): a(f"v_cvt_pk_bf16_f32 {vr(x+16+i)}, {vr(x+2*i)}, {vr(x+2*i+1)}")
        a(f"v_permlane32_swap_b32 {vr(x+16)}, {vr(x+18)}\nv_permlane32_swap_b32 {vr(x+17)}, {vr(x+19)}")
        a(f"buffer_store_dwordx4 {vr(x+16,4)}, v9, {ROUT}, s63 offen offset:{t*64}")

def build(extra_empty=0):
    ks = [("qkv_kernel", lambda a, e: p1(a), ["ws", "x", "wq"], 155648, 256, 0),
          ("attn_kernel", lambda a, e: p2(a), ["ws"], 49152, 256, 0),
          ("proj_kernel", p3, ["ws", "x", "wo"], 59392 + 16384 + 4*2304, 256, 0),
          ("mlp1_kernel", p4, ["ws", "w1", "b1"], 131072, 256, 256),
          ("mlp2_kernel", p5, ["ws", "w2", "b2", "out"], 131072, 256, 256)]
    hdr = open("cdna_kernels/" + NAME + ".s.ref").read().split("; Override launch")[0]
    out = hdr
    for n, f, need, lds, v, ag in ks:
        out += f"; @launch kernel={n} grid=(256,1,1) block=(256,1,1) lds={lds}\n"
    for i in range(extra_empty):
        out += f"; @launch kernel=empty_kernel grid=(256,1,1) block=(256,1,1) lds=0\n"
    out += '.amdgcn_target "amdgcn-amd-amdhsa--gfx950"\n'
    for n, f, need, lds, v, ag in ks:
        a = Asm(); a.uid = (1 + [k[0] for k in ks].index(n)) * 1000
        e = f"L_end_{n}"
        lo = len(STAMPS)
        if PROFILE: a("s_memrealtime s[90:91]\ns_memtime s[94:95]")
        prologue(a, need, e)
        if PROFILE:
            a(f"v_writelane_b32 v255, s90, {len(STAMPS)}\nv_writelane_b32 v255, s94, {32+len(STAMPS)}"); STAMPS.append(n[:4] + "_entry")
        stamp(a, n[:4] + "_start")
        f(a, e)
        stamp(a, n[:4] + "_issued")
        if PROFILE: a("s_waitcnt vmcnt(0)")
        stamp(a, n[:4] + "_end")
        stamp_flush(a, lo)
        if PROFILE and "dbg" in sys.argv and n == "mlp2_kernel":
            sel = [0, 2, 3, 5, 6, 8, 9, 11, 12, 17, 18, 20, 22, 23, 25, 27]
            a(f"s_cmp_lg_u32 s2, 0\ns_cbranch_scc1 {e}\ns_cmp_lg_u32 {sW}, 0\ns_cbranch_scc1 {e}")
            a("s_mov_b64 exec, -1\ns_waitcnt vmcnt(0)")
            a(f"s_mov_b32 s3, {PROF}\nbuffer_load_dword v3, v2, {WS}, s3 offen sc1\ns_waitcnt vmcnt(0)\nv_readlane_b32 s60, v3, 0\nv_mov_b32 v4, 0")
            for i, x in enumerate(sel):
                a(f"v_readlane_b32 s61, v3, {x}\ns_sub_u32 s61, s61, s60\nv_writelane_b32 v4, s61, {i}")
            a("s_sub_u32 s48, s82, 2048\ns_subb_u32 s49, s83, 0\ns_mov_b32 s50, 64\ns_mov_b32 s51, 0x20000")
            a("buffer_store_dword v4, v2, s[48:51], 0 offen")
            a("s_mov_b32 s48, s82\ns_mov_b32 s49, s83")
            a("buffer_store_dword v4, v2, s[48:51], 0 offen")
        a(f"{e}:\ns_endpgm")
        nn = a.hazard_pass(verbose=("-v" in sys.argv))
        out += kernel_head(n) + a.text() + kernel_desc(n, v, ag)
    if extra_empty:
        out += kernel_head("empty_kernel") + "  s_endpgm\n" + kernel_desc("empty_kernel", 8, 0)
    return out

if __name__ == "__main__":
    ex = int(sys.argv[2]) if len(sys.argv) > 2 and sys.argv[2].isdigit() else 0
    open(sys.argv[1], "w").write(build(ex))
    if PROFILE: open("stamps.txt", "w").write(" ".join(STAMPS))
```

```python
import sys, math
from g import *

NAME = "sequential_preLN__softmax_full_mha__mixer_token_mlp__prompt"
S, D, H, DH, F = 2048, 448, 16, 28, 1792
KV   = 0x0000000
QB   = 0x0400000
OB   = 0x0600000
ST   = 0x0800000
HN   = 0x0900000
UB   = 0x0B00000
HB   = 0x0D00000
PROF = 0x1200000

sW, sRB, sH, sDB, sSB, sFB = "s4", "s5", "s6", "s7", "s8", "s9"
WS, RX, RWQ, RWO, RW1, RW2, RB1, RB2, ROUT = ("s[12:15]", "s[16:19]", "s[20:23]", "s[24:27]", "s[28:31]", "s[32:35]", "s[36:39]", "s[40:43]", "s[44:47]")
vL = "v1"

def vr(b, n=1): return f"v{b}" if n == 1 else f"v[{b}:{b+n-1}]"
def ar(b, n=1): return f"a{b}" if n == 1 else f"a[{b}:{b+n-1}]"
def mfma(a, d, A, B, C=None):
    a(f"v_mfma_f32_32x32x16_bf16 {d}, {A}, {B}, {d if C is None else C}")

def prologue(a, need, endlab):
    a(f"s_cmp_ge_u32 s2, 256")
    a(f"s_cbranch_scc1 {endlab}")
    a("s_load_dwordx16 s[64:79], s[0:1], 0")
    a("s_load_dwordx4 s[80:83], s[0:1], 64")
    a("s_load_dwordx2 s[84:85], s[0:1], 80")
    a("v_lshrrev_b32 v2, 6, v0")
    a(f"v_and_b32 {vL}, 63, v0")
    a(f"v_readfirstlane_b32 {sW}, v2")
    a("s_and_b32 s52, s2, 7")
    a("s_lshr_b32 s53, s2, 3")
    a("s_and_b32 s54, s53, 3")
    a("s_lshr_b32 s55, s53, 2")
    a("s_lshr_b32 s56, s52, 1")
    a(f"s_lshl2_add_u32 {sH}, s56, s54")
    a("s_and_b32 s56, s52, 1")
    a(f"s_lshl3_add_u32 {sRB}, s56, s55")
    a("s_lshr_b32 s56, s52, 2")
    a(f"s_lshl2_add_u32 {sDB}, s56, s54")
    a("s_and_b32 s56, s52, 3")
    a(f"s_lshl3_add_u32 {sSB}, s56, s55")
    a(f"s_sub_u32 {sFB}, {sSB}, s56")
    a("s_waitcnt lgkmcnt(0)")
    tbl = {"ws": (12, 84, 1 << 28), "x": (16, 64, S*D*2), "wq": (20, 66, D*3*D*2), "wo": (24, 68, D*D*2),
           "w1": (28, 72, S*F*2), "w2": (32, 76, S*F*2), "b1": (36, 74, F*2), "b2": (40, 78, S*2), "out": (44, 80, S*D*2)}
    for n in need:
        b, p, sz = tbl[n]
        a(f"s_mov_b32 s{b}, s{p}\ns_mov_b32 s{b+1}, s{p+1}\ns_mov_b32 s{b+2}, {sz}\ns_mov_b32 s{b+3}, 0x20000")

PROFILE = "prof" in sys.argv
STAMPS = []
def stamp(a, name):
    if not PROFILE: return
    i = len(STAMPS); STAMPS.append(name)
    a(f"s_memrealtime s[88:89]\ns_memtime s[92:93]\ns_waitcnt lgkmcnt(0)\nv_writelane_b32 v255, s88, {i}\nv_writelane_b32 v255, s92, {32+i}")
def stamp_flush(a, lo):
    if not PROFILE: return
    hi = len(STAMPS)
    mask = ((1 << hi) - 1) & ~((1 << lo) - 1)
    a(f"s_lshl2_add_u32 s3, s2, {sW}\ns_lshl_b32 s3, s3, 8\ns_add_u32 s3, s3, {PROF}\nv_lshlrev_b32 v2, 2, {vL}")
    a(f"s_mov_b32 exec_lo, {mask}\ns_mov_b32 exec_hi, {mask}\nbuffer_store_dword v255, v2, {WS}, s3 offen")
def show_prof(acc):
    import numpy as np
    names = open("stamps.txt").read().split()
    for r, p in enumerate(acc):
        if r < 5: continue
        fill = (r + 1) * 0x01010101
        t0 = p[:, :, 0].min()
        print("run", r)
        for i, n in enumerate(names):
            v = p[:, :, i]; ok = v != fill; v = v[ok] - t0
            ex = ""
            if i and not n.endswith("entry"):
                ok2 = ok & (p[:, :, i-1] != fill)
                dc = ((p[:, :, 32+i] - p[:, :, 31+i]) & 0xffffffff)[ok2]; dt = (p[:, :, i] - p[:, :, i-1])[ok2]
                ex = f" dcyc med {np.median(dc):7.0f} max {dc.max():7.0f}  GHz {dc.sum()/max(1,dt.sum())/10:5.2f}"
            print(f"  {n:12s} min {v.min()/100:7.2f} med {np.median(v)/100:7.2f} max {v.max()/100:7.2f}  n={v.size}{ex}")

def dma(a, vaddr, srd, soff, m0expr, off=0):
    sg_, c = m0expr
    if sg_ is None: a(f"s_mov_b32 m0, {c}")
    else: a(f"s_add_u32 m0, {sg_}, {c}")
    a(f"buffer_load_dwordx4 {vaddr}, {srd}, {soff} offen" + (f" offset:{off}" if off else "") + " lds")

def swz128(a, dst, stride, t1="v2", t2="v3"):
    a(f"v_lshrrev_b32 {t1}, 3, {vL}")
    a(f"v_mul_u32_u24 {dst}, {stride}, {t1}")
    a(f"v_lshrrev_b32 {t1}, 2, {vL}")
    a(f"v_and_b32 {t1}, 4, {t1}")
    a(f"v_and_b32 {t2}, 7, {vL}")
    a(f"v_xor_b32 {t1}, {t1}, {t2}")
    a(f"v_lshl_add_u32 {dst}, {t1}, 4, {dst}")

def xhalf_sum(a, v, t):
    a(f"v_mov_b32 {t}, {v}")
    a(f"v_permlane32_swap_b32 {t}, {v}")
    a(f"v_add_f32 {v}, {t}, {v}")

def p1(a):
    WB = 0; XB = 57344
    XF, ACA, ACB, CSA, CSB, WF = 16, 128, 144, 160, 176, 192
    ONES = 224
    vX = [228, 229, 230, 231]; vW = 232; vWQ = 233
    vXR = [234, 235, 236, 237]; vWA, vWBB = 238, 239; vQR0, vQR1 = 240, 241
    SUM, SQ = 242, 243
    sXB = "s57"; sWo = "s58"; sT = "s59"; sWm = "s60"
    a(f"s_lshl_b32 s3, {sRB}, 2\ns_add_u32 s3, s3, {sW}\ns_mul_i32 s3, s3, {32*896}")
    a(f"v_lshrrev_b32 v2, 3, {vL}\nv_mul_u32_u24 v2, 896, v2\nv_add_u32 v2, s3, v2")
    a(f"v_lshrrev_b32 v3, 4, {vL}\nv_and_b32 v4, 7, {vL}\nv_xor_b32 v3, v3, v4")
    a(f"v_lshl_add_u32 {vr(vX[0])}, v3, 4, v2")
    a(f"v_xor_b32 v3, 4, v3\nv_lshl_add_u32 v3, v3, 4, v2\nv_add_u32 {vr(vX[1])}, {8*896}, v3")
    a(f"v_add_u32 {vr(vX[2])}, {16*896}, {vr(vX[0])}\nv_add_u32 {vr(vX[3])}, {16*896}, {vr(vX[1])}")
    a(f"s_mul_i32 {sXB}, {sW}, 24576\ns_add_u32 {sXB}, {sXB}, {XB}")
    swz128(a, vr(vW), 2688)
    a(f"s_mul_i32 {sWo}, {sH}, 112\ns_mul_i32 s3, {sW}, {16*2688}\ns_add_u32 {sWo}, {sWo}, s3\ns_add_u32 {sWo}, {sWo}, 896")
    a(f"s_lshl_b32 {sWm}, {sW}, 11")
    def xdma(c, slot):
        for o in range(4):
            dma(a, vr(vX[o]), RX, "0", (sXB, slot*4096 + o*1024 - c*128), off=c*128)
    def wdma(c):
        for u in range(2):
            a(f"s_add_u32 {sT}, {sWo}, {(c*8+u)*8*2688}")
            dma(a, vr(vW), RWQ, sT, (sWm, WB + (c*8+u)*1024))
    for c in range(6):
        xdma(c, c); wdma(c)
    wdma(6)
    a(f"v_and_b32 v2, 31, {vL}\nv_lshlrev_b32 v3, 7, v2\nv_add_u32 v3, {sXB}, v3")
    a(f"v_lshrrev_b32 v4, 1, v2\nv_and_b32 v4, 7, v4\nv_lshrrev_b32 v5, 5, {vL}\nv_xor_b32 v4, v4, v5")
    for q in range(4):
        a(f"v_xor_b32 v6, {2*q}, v4\nv_lshl_add_u32 {vr(vXR[q])}, v6, 4, v3")
    a(f"v_bfe_u32 v2, {vL}, 2, 2")
    a(f"v_lshl_add_u32 v3, v5, 3, v2")
    a(f"v_bfe_u32 v4, {vL}, 4, 1\nv_lshlrev_b32 v4, 5, v4\nv_and_b32 v6, 3, {vL}\nv_lshl_add_u32 v4, v6, 3, v4")
    a(f"v_lshrrev_b32 v2, 1, v2\nv_lshlrev_b32 v2, 6, v2")
    a(f"v_xor_b32 v6, v4, v2\nv_lshl_add_u32 {vr(vWA)}, v3, 7, v6")
    a(f"v_add_u32 v6, 56, v4\nv_xor_b32 v6, v6, v2\nv_lshl_add_u32 {vr(vWBB)}, v3, 7, v6")
    a(f"v_lshl_add_u32 {vr(vQR0)}, v3, 6, v4\nv_add_u32 {vr(vQR0)}, {XB + 4096}, {vr(vQR0)}\nv_add_u32 {vr(vQR1)}, {2*24576}, {vr(vQR0)}")
    a(f"v_lshrrev_b32 v2, 2, {vL}\nv_mul_u32_u24 v2, 2688, v2\nv_and_b32 v3, 3, {vL}\nv_lshl_add_u32 {vr(vWQ)}, v3, 4, v2")
    for i in range(4): a(f"v_mov_b32 {vr(ONES+i)}, 0x3f803f80")
    a(f"v_mov_b32 {vr(SUM)}, 0\nv_mov_b32 {vr(SQ)}, 0")
    waits = [32, 30, 24, 25, 19, 13, 7]
    for c in range(7):
        slot = c % 6
        a(f"s_waitcnt vmcnt({waits[c]})\ns_barrier")
        if c in (0, 6): stamp(a, f"p1_c{c}")
        for q in range(4):
            ks = 4*c + q
            a(f"ds_read_b128 {vr(XF+4*ks,4)}, {vr(vXR[q])} offset:{slot*4096}")
            for hd, va in enumerate((vWA, vWBB)):
                for e in range(2):
                    a(f"ds_read_b64_tr_b16 {vr(WF+8*q+4*hd+2*e,2)}, {vr(va)} offset:{WB+ks*2048+e*512}")
            if q == 2:
                pass
        for q in range(4):
            ks = 4*c + q
            a(f"s_waitcnt lgkmcnt({min(15, 5*(3-q))})")
            first = "0" if ks == 0 else None
            x4 = vr(XF+4*ks, 4)
            mfma(a, vr(ACA,16), vr(WF+8*q,4), x4, first)
            for i in range(2): a(f"v_dot2_f32_bf16 {vr(SUM)}, {vr(XF+4*ks+i)}, {vr(ONES)}, {vr(SUM)}")
            mfma(a, vr(ACB,16), vr(WF+8*q+4,4), x4, first)
            for i in range(2,4): a(f"v_dot2_f32_bf16 {vr(SUM)}, {vr(XF+4*ks+i)}, {vr(ONES)}, {vr(SUM)}")
            mfma(a, vr(CSA,16), vr(WF+8*q,4), vr(ONES,4), first)
            for i in range(2): a(f"v_dot2_f32_bf16 {vr(SQ)}, {vr(XF+4*ks+i)}, {vr(XF+4*ks+i)}, {vr(SQ)}")
            mfma(a, vr(CSB,16), vr(WF+8*q+4,4), vr(ONES,4), first)
            for i in range(2,4): a(f"v_dot2_f32_bf16 {vr(SQ)}, {vr(XF+4*ks+i)}, {vr(XF+4*ks+i)}, {vr(SQ)}")
        if c == 0:
            xdma(6, 0)
        if c == 2:
            a(f"s_mul_i32 {sT}, {sH}, 56\ns_mul_i32 s3, {sW}, {7*16*2688}\ns_add_u32 {sT}, {sT}, s3")
            for i in range(7):
                dma(a, vr(vWQ), RWQ, sT, (sXB, 4096 + i*1024))
                if i < 6: a(f"s_add_u32 {sT}, {sT}, {16*2688}")
    MU, RS = 244, 245
    xhalf_sum(a, vr(SUM), "v2"); xhalf_sum(a, vr(SQ), "v3")
    a(f"v_mul_f32 {vr(MU)}, {fhex(-1.0/D)}, {vr(SUM)}")
    a(f"v_mul_f32 v2, {fhex(1.0/D)}, {vr(SQ)}")
    a(f"v_fma_f32 v2, -{vr(MU)}, {vr(MU)}, v2")
    a(f"v_max_f32 v2, 0, v2\nv_add_f32 v2, {fhex(1e-5)}, v2\nv_rsq_f32 {vr(RS)}, v2")
    a(f"v_cmp_lt_u32 vcc, 31, {vL}")
    PK = WF
    def finish(acc, cs, pk, rs):
        for i in range(16):
            a(f"v_fmac_f32 {vr(acc+i)}, {vr(MU)}, {vr(cs+i)}")
        for i in range(16):
            a(f"v_mul_f32 {vr(acc+i)}, {vr(rs)}, {vr(acc+i)}")
        for i in range(8):
            a(f"v_cvt_pk_bf16_f32 {vr(pk+i)}, {vr(acc+2*i)}, {vr(acc+2*i+1)}")
    finish(ACA, CSA, PK, RS); finish(ACB, CSB, PK+8, RS)
    a(f"s_and_b32 s3, {sH}, 7\ns_lshl_b32 s3, s3, 7\ns_lshl2_add_u32 s3, {sRB}, s3\ns_add_u32 s3, s3, {sW}\ns_lshl_b32 {sT}, s3, 12")
    a(f"v_lshlrev_b32 v7, 4, {vL}")
    lv = a.lab("v"); lq = a.lab("q")
    a(f"s_cmp_ge_u32 {sH}, 8\ns_cbranch_scc1 {lv}")
    a(f"v_mov_b32 v2, 0x3f80")
    for hd in range(2):
        a(f"v_cndmask_b32 {vr(PK+8*hd+6)}, {vr(PK+8*hd+6)}, {vr(ONES)}, vcc")
        a(f"v_cndmask_b32 {vr(PK+8*hd+7)}, {vr(PK+8*hd+7)}, v2, vcc")
    for hd in range(2):
        if hd: a(f"s_add_u32 {sT}, {sT}, {64*4096}")
        a(f"buffer_store_dwordx4 {vr(PK+8*hd,4)}, v7, {WS}, {sT} offen sc1")
        a(f"buffer_store_dwordx4 {vr(PK+8*hd+4,4)}, v7, {WS}, {sT} offen offset:1024 sc1")
    a(f"s_branch {lq}")
    a(f"{lv}:")
    a(f"v_mov_b32 v2, 0x3f80\nv_mov_b32 v3, 0")
    for hd in range(2):
        a(f"v_cndmask_b32 {vr(PK+8*hd+6)}, {vr(PK+8*hd+6)}, v2, vcc")
        a(f"v_cndmask_b32 {vr(PK+8*hd+7)}, {vr(PK+8*hd+7)}, v3, vcc")
    a(f"v_and_b32 v2, 31, {vL}\nv_mul_u32_u24 v2, 72, v2\nv_lshrrev_b32 v3, 5, {vL}\nv_lshl_add_u32 v2, v3, 3, v2\nv_add_u32 v2, {sXB}, v2")
    for hd in range(2):
        for i in range(4):
            a(f"ds_write_b64 v2, {vr(PK+8*hd+2*i,2)} offset:{3*4096 + hd*4096 + i*16}")
    a(f"v_bfe_u32 v4, {vL}, 2, 2\nv_lshl_add_u32 v4, v3, 2, v4\nv_mul_u32_u24 v4, 72, v4")
    a(f"v_bfe_u32 v5, {vL}, 4, 1\nv_lshl_add_u32 v4, v5, 5, v4\nv_and_b32 v5, 3, {vL}\nv_lshl_add_u32 v4, v5, 3, v4\nv_add_u32 v4, {sXB}, v4")
    a("s_waitcnt lgkmcnt(0)")
    for hd in range(2):
        for j in range(2):
            for e in range(2):
                a(f"ds_read_b64_tr_b16 {vr(PK+16+8*hd+4*j+2*e,2)}, v4 offset:{3*4096 + hd*4096 + (16*j+8*e)*72}")
    a("s_waitcnt lgkmcnt(0)")
    for hd in range(2):
        if hd: a(f"s_add_u32 {sT}, {sT}, {64*4096}")
        a(f"buffer_store_dwordx4 {vr(PK+16+8*hd,4)}, v7, {WS}, {sT} offen offset:2048 sc1")
        a(f"buffer_store_dwordx4 {vr(PK+16+8*hd+4,4)}, v7, {WS}, {sT} offen offset:3072 sc1")
    a(f"{lq}:")
    a("s_waitcnt vmcnt(4)\ns_barrier")
    QF = CSB
    bufs = [ACB, ACB+4, ACB+8, ACB+12, CSB, CSB+4, CSB+8]
    for grp in range(4):
        va = vQR0 if grp < 2 else vQR1
        for i in range(7):
            for e in range(2):
                a(f"ds_read_b64_tr_b16 {vr(bufs[i]+2*e,2)}, {vr(va)} offset:{(grp&1)*24576 + i*1024 + e*256}")
        for i in range(7):
            ks = 7*grp + i
            a(f"s_waitcnt lgkmcnt({2*(6-i)})")
            first = "0" if ks == 0 else None
            mfma(a, vr(ACA,16), vr(bufs[i],4), vr(XF+4*ks,4), first)
            mfma(a, vr(CSA,16), vr(bufs[i],4), vr(ONES,4), first)
    a(f"v_mul_f32 {vr(RS)}, {fhex(DH**-0.5 * math.log2(math.e))}, {vr(RS)}")
    QP = 246
    finish(ACA, CSA, QP, RS)
    a("v_mov_b32 v3, 0")
    a(f"v_cndmask_b32 {vr(QP+6)}, {vr(QP+6)}, v3, vcc\nv_cndmask_b32 {vr(QP+7)}, {vr(QP+7)}, v3, vcc")
    a(f"s_lshl_b32 s3, {sH}, 6\ns_lshl2_add_u32 s3, {sRB}, s3\ns_add_u32 s3, s3, {sW}\ns_lshl_b32 s3, s3, 11\ns_add_u32 s3, s3, {QB}")
    a(f"buffer_store_dwordx4 {vr(QP,4)}, v7, {WS}, s3 offen")
    a(f"buffer_store_dwordx4 {vr(QP+4,4)}, v7, {WS}, s3 offen offset:1024")
    a(f"v_mov_b32 v3, -1\nv_lshlrev_b32 v2, 2, v0\ns_lshl_b32 s3, s2, 10\ns_add_u32 s3, s3, {ST}")
    a(f"buffer_store_dword v3, v2, {WS}, s3 offen")

def p2(a):
    Q, O, SS, P, KVB = 16, 48, 112, 144, 152
    RKV = "s[48:51]"; sO = "s57"; sC = "s58"
    a(f"v_lshlrev_b32 v7, 4, {vL}")
    for j in range(4):
        a(f"s_add_u32 s3, {sW}, {j+1}\ns_and_b32 s3, s3, 3\ns_lshl2_add_u32 s3, {sRB}, s3\ns_lshl_b32 s59, {sH}, 6\ns_add_u32 s3, s3, s59\ns_lshl_b32 s3, s3, 11\ns_add_u32 s3, s3, {QB}")
        a(f"buffer_load_dwordx4 {vr(Q+8*j,4)}, v7, {WS}, s3 offen")
        a(f"buffer_load_dwordx4 {vr(Q+8*j+4,4)}, v7, {WS}, s3 offen offset:1024")
    a(f"s_lshl2_add_u32 {sO}, {sH}, {sW}\ns_lshl_b32 {sO}, {sO}, 16")
    a(f"s_mov_b32 s48, s12\ns_mov_b32 s49, s13\ns_add_u32 s50, {sO}, 65536\ns_mov_b32 s51, 0x20000")
    def ld(buf, part):
        a(f"buffer_load_dwordx4 {vr(KVB+16*buf+4*part,4)}, v7, {RKV}, {sO} offen offset:{part*1024} sc1")
    for t in range(3):
        for p_ in range(4): ld(t, p_)
        a(f"s_add_u32 {sO}, {sO}, 4096")
    for i in range(64): a(f"v_mov_b32 {vr(O+i)}, 0")
    for i in range(4): a(f"v_mov_b32 {vr(P+4+i)}, 0\nv_mov_b32 {vr(KVB+48+12+i)}, 0")
    a(f"s_mov_b32 {sC}, 4")
    a("s_waitcnt vmcnt(8)")
    mfma(a, vr(SS,16), vr(KVB,4), vr(Q,4), "0")
    mfma(a, vr(SS,16), vr(KVB+4,4), vr(Q+4,4))
    a("s_nop 11")
    stamp(a, "p2_loop")
    lp = a.lab("att")
    a(".p2align 6")
    a(f"{lp}:")
    for u in range(16):
        kt, j = u >> 2, u & 3
        n = (u + 1) & 15; nkt, nj = n >> 2, n & 3
        pv = (u - 1) & 15; pkt, pj = pv >> 2, pv & 3
        sc, sn = SS + 16*(u & 1), SS + 16*(n & 1)
        def valu(g):
            for i in range(4): a(f"v_exp_f32 {vr(sc+4*g+i)}, {vr(sc+4*g+i)}")
            for i in range(2): a(f"v_cvt_pk_bf16_f32 {vr(P+2*g+i)}, {vr(sc+4*g+2*i)}, {vr(sc+4*g+2*i+1)}")
        mfma(a, vr(sn,16), vr(KVB+16*nkt,4), vr(Q+8*nj,4), "0")
        if u == 15: a(f"s_sub_u32 {sC}, {sC}, 1")
        valu(0)
        mfma(a, vr(O+16*pj,16), vr(KVB+16*pkt+12,4), vr(P+4,4))
        ld((kt + 3) & 3, j)
        valu(1)
        mfma(a, vr(sn,16), vr(KVB+16*nkt+4,4), vr(Q+8*nj+4,4))
        if j == 3: a(f"s_add_u32 {sO}, {sO}, 4096")
        valu(2)
        mfma(a, vr(O+16*j,16), vr(KVB+16*kt+8,4), vr(P,4))
        if j == 2: a("s_waitcnt vmcnt(7)")
        if u == 15: a(f"s_cmp_lg_u32 {sC}, 0")
        valu(3)
    a(f"s_cbranch_scc1 {lp}")
    mfma(a, vr(O+48,16), vr(KVB+48+12,4), vr(P+4,4))
    stamp(a, "p2_loopend")
    for j in range(3):
        a(f"s_add_u32 s3, {sW}, {j+1}\ns_and_b32 s3, s3, 3\ns_mul_i32 s3, s3, 12288\nv_add_u32 v2, s3, v7")
        for i in range(4):
            a(f"ds_write_b128 v2, {vr(O+16*j+4*i,4)} offset:{j*4096+i*1024}")
    a(f"s_mul_i32 s3, {sW}, 12288\nv_add_u32 v2, s3, v7")
    a("s_waitcnt lgkmcnt(0)\ns_barrier")
    for i in range(12):
        a(f"ds_read_b128 {vr(O+4*i,4)}, v2 offset:{i*1024}")
    for j in range(3):
        a(f"s_waitcnt lgkmcnt({8-4*j})")
        for i in range(16): a(f"v_add_f32 {vr(O+48+i)}, {vr(O+48+i)}, {vr(O+16*j+i)}")
    a(f"v_mov_b32 v2, {vr(O+48+12)}\nv_mov_b32 v3, {vr(O+48+12)}\nv_permlane32_swap_b32 v2, v3\nv_rcp_f32 v3, v3")
    a(f"v_cmp_lt_u32 vcc, 31, {vL}\nv_mov_b32 v4, 0")
    for i in range(16): a(f"v_mul_f32 {vr(O+48+i)}, v3, {vr(O+48+i)}")
    for i in range(8): a(f"v_cvt_pk_bf16_f32 {vr(P+i)}, {vr(O+48+2*i)}, {vr(O+48+2*i+1)}")
    a(f"v_cndmask_b32 {vr(P+6)}, {vr(P+6)}, v4, vcc\nv_cndmask_b32 {vr(P+7)}, {vr(P+7)}, v4, vcc")
    a(f"s_lshl2_add_u32 s3, {sRB}, {sW}\ns_lshl4_add_u32 s3, s3, {sH}\ns_lshl_b32 s3, s3, 11\ns_add_u32 s3, s3, {OB}")
    a(f"buffer_store_dwordx4 {vr(P,4)}, v7, {WS}, s3 offen sc1")
    a(f"buffer_store_dwordx4 {vr(P+4,4)}, v7, {WS}, s3 offen offset:1024 sc1")

def trbase(a, dst, hfmul, rowbytes_shift, colexpr_reg, t1="v2", t2="v3"):
    a(f"v_bfe_u32 {t1}, {vL}, 2, 2")
    a(f"v_lshrrev_b32 {t2}, 5, {vL}")
    a(f"v_lshl_add_u32 {t2}, {t2}, {int(math.log2(hfmul))}, {t1}")
    a(f"v_lshrrev_b32 {t1}, 1, {t1}\nv_lshlrev_b32 {t1}, 6, {t1}")
    a(f"v_xor_b32 {t1}, {t1}, {colexpr_reg}")
    a(f"v_lshl_add_u32 {dst}, {t2}, 7, {t1}")

def p3(a, endlab):
    a(f"s_cmp_ge_u32 {sDB}, 7\ns_cbranch_scc1 {endlab}")
    OF, AC, WF, XR, HH = 16, 80, 112, 144, 80
    vW, vT0, vT1 = 160, 161, 162
    sST, sKH, sT, sTile = "s57", "s58", "s59", "s60"
    WOB, EX, TRB = 0, 59392, 59392 + 16384
    a(f"s_and_b32 {sST}, {sW}, 1\ns_lshr_b32 {sKH}, {sW}, 1\ns_lshl1_add_u32 {sTile}, {sSB}, {sST}")
    a(f"v_lshlrev_b32 v7, 4, {vL}")
    swz128(a, vr(vW), 896)
    a(f"s_mul_i32 s3, {sW}, {14*8*896}\ns_lshl_b32 {sT}, {sDB}, 7\ns_add_u32 {sT}, {sT}, s3\ns_mul_i32 s61, {sW}, {14*1024}")
    for n in range(15):
        dma(a, vr(vW), RWO, sT, ("s61", WOB + n*1024))
        if n < 14: a(f"s_add_u32 {sT}, {sT}, {8*896}")
    a(f"v_and_b32 v2, 31, {vL}\nv_mul_u32_u24 v2, 896, v2\nv_lshrrev_b32 v3, 5, {vL}\nv_lshl_add_u32 v2, v3, 3, v2")
    a(f"s_mul_i32 s3, {sTile}, {32*896}\ns_lshl_b32 {sT}, {sDB}, 7\ns_add_u32 s3, s3, {sT}\ns_lshl_b32 {sT}, {sKH}, 5\ns_add_u32 s3, s3, {sT}")
    for t in range(2):
        for i in range(2):
            a(f"buffer_load_dwordx2 {vr(XR+4*t+2*i,2)}, v2, {RX}, s3 offen offset:{t*64+i*16}")
    a(f"s_lshl1_add_u32 s3, {sTile}, {sKH}\ns_lshl_b32 s3, s3, 14\ns_add_u32 s3, s3, {OB}")
    for k in range(16):
        if k and k % 4 == 0: a("s_add_u32 s3, s3, 4096")
        a(f"buffer_load_dwordx4 {vr(OF+4*k,4)}, v7, {WS}, s3 offen offset:{(k%4)*1024} sc1")
    a(f"v_bfe_u32 v4, {vL}, 4, 1\nv_xor_b32 v4, {sKH}, v4\nv_lshlrev_b32 v4, 5, v4\nv_and_b32 v5, 3, {vL}\nv_lshl_add_u32 v4, v5, 3, v4")
    trbase(a, vr(vT0), 4, 7, "v4")
    a(f"s_mul_i32 s3, {sKH}, {224*128}\nv_add_u32 {vr(vT0)}, s3, {vr(vT0)}\nv_xor_b32 {vr(vT1)}, 64, {vr(vT0)}")
    a("s_waitcnt vmcnt(20)\ns_barrier")
    def rd(k):
        hh, j = k >> 1, k & 1
        b = WF + 8*(k & 3)
        for t, va in enumerate((vT0, vT1)):
            for e in range(2):
                a(f"ds_read_b64_tr_b16 {vr(b+4*t+2*e,2)}, {vr(va)} offset:{WOB+(28*hh+16*j+8*e)*128}")
    rd(0); rd(1); rd(2)
    for k in range(16):
        if k + 3 < 16: rd(k+3)
        rem = min(3, 15-k)
        a(f"s_waitcnt vmcnt({15-k}) lgkmcnt({4*rem})")
        b = WF + 8*(k & 3)
        for t in range(2):
            mfma(a, vr(AC+16*t,16), vr(b+4*t,4), vr(OF+4*k,4), "0" if k == 0 else None)
    stamp(a, "p3_mm")
    a(f"s_lshl_b32 s3, {sW}, 12\nv_add_u32 v2, s3, v7\nv_xor_b32 v3, 8192, v2")
    for t in range(2):
        for i in range(2):
            a(f"ds_write_b128 v2, {vr(AC+16*t+8+4*i,4)} offset:{EX+(2*t+i)*1024}")
    a("s_waitcnt lgkmcnt(0)\ns_barrier")
    for t in range(2):
        for i in range(2):
            a(f"ds_read_b128 {vr(AC+16*t+8+4*i,4)}, v3 offset:{EX+(2*t+i)*1024}")
    hreg = lambda t, i: AC + 16*t + i
    for t in range(2):
        for i in range(4):
            a(f"v_lshlrev_b32 v4, 16, {vr(XR+4*t+i)}\nv_and_b32 v5, 0xffff0000, {vr(XR+4*t+i)}")
            a(f"v_add_f32 {vr(hreg(t,2*i))}, v4, {vr(hreg(t,2*i))}\nv_add_f32 {vr(hreg(t,2*i+1))}, v5, {vr(hreg(t,2*i+1))}")
    a("s_waitcnt lgkmcnt(0)")
    for t in range(2):
        for i in range(8): a(f"v_add_f32 {vr(hreg(t,i))}, {vr(hreg(t,i))}, {vr(hreg(t,8+i))}")
    a(f"v_add_f32 v8, {vr(hreg(0,0))}, {vr(hreg(1,0))}\nv_mul_f32 v9, {vr(hreg(0,0))}, {vr(hreg(0,0))}\nv_fmac_f32 v9, {vr(hreg(1,0))}, {vr(hreg(1,0))}")
    for t in range(2):
        for i in range(1, 8):
            a(f"v_add_f32 v8, v8, {vr(hreg(t,i))}\nv_fmac_f32 v9, {vr(hreg(t,i))}, {vr(hreg(t,i))}")
    xhalf_sum(a, "v8", "v2"); xhalf_sum(a, "v9", "v3")
    a("v_min_u32 v9, -2, v9")
    a(f"v_lshlrev_b32 v6, 3, {vL}")
    a(f"s_lshl_b32 s62, {sTile}, 12\ns_add_u32 s62, s62, {ST}\ns_lshl1_add_u32 s3, {sDB}, {sKH}\ns_lshl_b32 s3, s3, 8\ns_add_u32 s3, s3, s62")
    a("s_mov_b32 exec_hi, 0")
    a(f"buffer_store_dwordx2 v[8:9], v6, {WS}, s3 offen sc1")
    a("s_mov_b32 exec_hi, -1")
    a(f"s_lshl2_add_u32 s3, s2, {sW}\ns_lshl_b32 s3, s3, 12\ns_add_u32 s3, s3, {HB}")
    for t in range(2):
        for i in range(2):
            a(f"buffer_store_dwordx4 {vr(hreg(t,4*i),4)}, v7, {WS}, s3 offen offset:{(2*t+i)*1024}")
    lp = a.lab("st"); le = a.lab("ste")
    a("s_mov_b32 s63, 0x4000000")
    a(f"{lp}:")
    for i in range(7):
        a(f"buffer_load_dwordx2 {vr(OF+2*i,2)}, v6, {WS}, s62 offen offset:{i*512} sc1")
    a(f"s_sub_u32 s63, s63, 1\ns_cmp_eq_u32 s63, 0")
    a("s_waitcnt vmcnt(0)")
    a(f"s_cbranch_scc1 {le}")
    a(f"v_max3_u32 v2, {vr(OF+1)}, {vr(OF+3)}, {vr(OF+5)}\nv_max3_u32 v2, v2, {vr(OF+7)}, {vr(OF+9)}\nv_max3_u32 v2, v2, {vr(OF+11)}, {vr(OF+13)}")
    a(f"v_cmp_eq_u32 vcc, -1, v2\ns_cbranch_vccnz {lp}")
    a(f"{le}:")
    stamp(a, "p3_stats")
    for i in range(1, 7):
        a(f"v_add_f32 {vr(OF)}, {vr(OF)}, {vr(OF+2*i)}\nv_add_f32 {vr(OF+1)}, {vr(OF+1)}, {vr(OF+2*i+1)}")
    xhalf_sum(a, vr(OF), "v2"); xhalf_sum(a, vr(OF+1), "v3")
    a(f"v_mul_f32 v8, {fhex(-1.0/D)}, {vr(OF)}\nv_mul_f32 v2, {fhex(1.0/D)}, {vr(OF+1)}\nv_fma_f32 v2, -v8, v8, v2\nv_max_f32 v2, 0, v2")
    a(f"v_add_f32 v3, {fhex(1e-5)}, v2\nv_rsq_f32 v9, v3\nv_mul_f32 v2, v2, v9\nv_mul_f32 v2, v2, v9\nv_add_f32 v2, {fhex(1e-5)}, v2\nv_rsq_f32 v2, v2\nv_mul_f32 v9, v9, v2")
    a("v_mul_f32 v8, v8, v9")
    for t in range(2):
        for i in range(8): a(f"v_fma_f32 {vr(hreg(t,8+i))}, {vr(hreg(t,i))}, v9, v8")
        for i in range(4): a(f"v_cvt_pk_bf16_f32 {vr(OF+4*t+i)}, {vr(hreg(t,8+2*i))}, {vr(hreg(t,8+2*i+1))}")
    a(f"s_mul_i32 s3, {sW}, 2304\nv_and_b32 v2, 31, {vL}\nv_mul_u32_u24 v2, 72, v2\nv_lshrrev_b32 v3, 5, {vL}\nv_lshl_add_u32 v2, v3, 3, v2\nv_add_u32 v2, s3, v2\nv_add_u32 v2, {TRB}, v2")
    for t in range(2):
        for i in range(2):
            a(f"ds_write_b64 v2, {vr(OF+4*t+2*i,2)} offset:{t*32+i*16}")
    a(f"v_bfe_u32 v4, {vL}, 2, 2\nv_lshl_add_u32 v4, v3, 3, v4\nv_mul_u32_u24 v4, 72, v4\nv_bfe_u32 v5, {vL}, 4, 1\nv_lshl_add_u32 v4, v5, 5, v4\nv_and_b32 v6, 3, {vL}\nv_lshl_add_u32 v4, v6, 3, v4\nv_add_u32 v4, s3, v4\nv_add_u32 v4, {TRB}, v4")
    a(f"v_lshlrev_b32 v5, 17, v5\nv_lshl_add_u32 v5, v3, 9, v5\nv_and_b32 v6, 15, {vL}\nv_lshl_add_u32 v5, v6, 4, v5")
    a(f"s_lshl_b32 s3, {sDB}, 18\ns_lshl_b32 {sT}, {sTile}, 11\ns_add_u32 s3, s3, {sT}\ns_lshl_b32 {sT}, {sKH}, 8\ns_add_u32 s3, s3, {sT}\ns_add_u32 s3, s3, {HN}")
    a("s_waitcnt lgkmcnt(0)")
    for j in range(2):
        for e in range(2):
            a(f"ds_read_b64_tr_b16 {vr(OF+8+4*j+2*e,2)}, v4 offset:{(16*j+4*e)*72}")
    a("s_waitcnt lgkmcnt(0)")
    for j in range(2):
        a(f"buffer_store_dwordx4 {vr(OF+8+4*j,4)}, v5, {WS}, s3 offen offset:{j*1024} sc1")

def stage_w(a, srd, stride, nks, soff_expr, vcol0, hfmul, emul):
    vW, vT0, vT1 = 10, 11, 12
    swz128(a, vr(vW), stride)
    trbase(a, vr(vT0), hfmul, 7, vcol0)
    a(f"s_lshl_b32 s61, {sW}, 15\nv_add_u32 {vr(vT0)}, s61, {vr(vT0)}\nv_xor_b32 {vr(vT1)}, 64, {vr(vT0)}")
    half = nks // 2
    for rnd in range(2):
        for n in range(2*half):
            dma(a, vr(vW), srd, soff_expr, ("s61", n*1024))
            a(f"s_add_u32 {soff_expr}, {soff_expr}, {8*stride}")
        for k in range(half):
            if k % 2 == 0: a(f"s_waitcnt vmcnt({max(0, 2*half - 2*k - 4)})")
            ks = rnd*half + k
            for sl, va in enumerate((vT0, vT1)):
                for e in range(2):
                    a(f"ds_read_b64_tr_b16 {ar(8*ks+4*sl+2*e,2)}, {vr(va)} offset:{k*2048+e*emul*128}")
        a("s_waitcnt lgkmcnt(0)")

def gemm_sub(a, nks, acc, vaddr, sbase, weight_is_A):
    RB = 16; DEP = 16
    def ld(k):
        if k and k % 4 == 0: a(f"s_add_u32 {sbase}, {sbase}, 4096")
        a(f"buffer_load_dwordx4 {vr(RB+4*(k%DEP),4)}, {vaddr}, {WS}, {sbase} offen offset:{(k%4)*1024} sc1")
    for k in range(DEP): ld(k)
    for k in range(nks):
        a(f"s_waitcnt vmcnt({min(DEP-1, nks-1-k)})")
        for sl in range(2):
            wv, av = ar(8*k+4*sl,4), vr(RB+4*(k%DEP),4)
            A_, B_ = (wv, av) if weight_is_A else (av, wv)
            mfma(a, vr(acc+16*sl,16), A_, B_, "0" if k == 0 else None)
        if k + DEP < nks: ld(k + DEP)

def reduce4(a, acc, xorbits, base):
    for p_ in range(1, 4):
        a(f"s_xor_b32 s3, {sW}, {xorbits[p_]}\ns_mul_i32 s3, s3, 6144\nv_add_u32 v2, s3, v7")
        for i in range(2):
            a(f"ds_write_b128 v2, {vr(acc+8*p_+4*i,4)} offset:{base+(p_-1)*2048+i*1024}")
    a(f"s_mul_i32 s3, {sW}, 6144\nv_add_u32 v2, s3, v7")
    a("s_waitcnt lgkmcnt(0)\ns_barrier")
    for i in range(6):
        a(f"ds_read_b128 {vr(acc+8+4*i,4)}, v2 offset:{base+i*1024}")
    for p_ in range(1, 4):
        a(f"s_waitcnt lgkmcnt({6-2*p_})")
        for i in range(8): a(f"v_add_f32 {vr(acc+i)}, {vr(acc+i)}, {vr(acc+8*p_+i)}")

def p4(a, endlab):
    a(f"s_cmp_ge_u32 {sDB}, 7\ns_cbranch_scc1 {endlab}\ns_cmp_ge_u32 s55, 7\ns_cbranch_scc1 {endlab}")
    a(f"v_lshlrev_b32 v7, 4, {vL}")
    BI = 100; AC = [112, 144]
    a(f"v_lshrrev_b32 v2, 5, {vL}\nv_lshlrev_b32 v2, 3, v2\ns_lshl2_add_u32 s3, {sFB}, {sW}\ns_lshl_b32 s3, s3, 5")
    for i in range(2): a(f"buffer_load_dwordx2 {vr(BI+8+2*i,2)}, v2, {RB1}, s3 offen offset:{i*16}")
    a(f"v_bfe_u32 v4, {vL}, 4, 1\nv_xor_b32 v4, {sW}, v4\nv_lshlrev_b32 v4, 5, v4\nv_and_b32 v5, 3, {vL}\nv_lshl_add_u32 v4, v5, 3, v4")
    a(f"s_mul_i32 s60, {sW}, {512*3584}\ns_lshl_b32 s3, {sFB}, 7\ns_add_u32 s60, s60, s3")
    stage_w(a, RW1, 3584, 32, "s60", "v4", 8, 4)
    for i in range(4):
        a(f"v_lshlrev_b32 {vr(BI+2*i)}, 16, {vr(BI+8+i)}\nv_and_b32 {vr(BI+2*i+1)}, 0xffff0000, {vr(BI+8+i)}")
    a("s_barrier")
    stamp(a, "p4_staged")
    c0 = -2.0*math.sqrt(2.0/math.pi)*math.log2(math.e); c1 = c0*0.044715
    for t in range(2):
        a(f"s_lshl1_add_u32 s60, {sDB}, {t}\ns_lshl2_add_u32 s60, s60, {sW}\ns_lshl_b32 s60, s60, 15\ns_add_u32 s60, s60, {HN}")
        gemm_sub(a, 32, AC[t], "v7", "s60", True)
        reduce4(a, AC[t], [0, 1, 2, 3], t*24576)
        x = AC[t]
        a(f"v_mov_b32 v3, {fhex(c0)}")
        for i in range(8): a(f"v_add_f32 {vr(x+i)}, {vr(x+i)}, {vr(BI+i)}")
        for i in range(8): a(f"v_mul_f32 {vr(x+8+i)}, {vr(x+i)}, {vr(x+i)}")
        for i in range(8): a(f"v_fmamk_f32 {vr(x+8+i)}, {vr(x+8+i)}, {fhex(c1)}, v3")
        for i in range(8): a(f"v_mul_f32 {vr(x+8+i)}, {vr(x+8+i)}, {vr(x+i)}")
        for i in range(8): a(f"v_exp_f32 {vr(x+8+i)}, {vr(x+8+i)}")
        for i in range(8): a(f"v_add_f32 {vr(x+8+i)}, 1.0, {vr(x+8+i)}")
        for i in range(8): a(f"v_rcp_f32 {vr(x+8+i)}, {vr(x+8+i)}")
        for i in range(8): a(f"v_mul_f32 {vr(x+i)}, {vr(x+i)}, {vr(x+8+i)}")
        for i in range(4): a(f"v_cvt_pk_bf16_f32 {vr(x+16+i)}, {vr(x+2*i)}, {vr(x+2*i+1)}")
        a(f"s_lshl1_add_u32 s3, {sDB}, {t}\ns_mul_i32 s3, s3, 112\ns_lshl2_add_u32 s59, {sFB}, {sW}\ns_add_u32 s3, s3, s59\ns_lshl_b32 s3, s3, 10\ns_add_u32 s3, s3, {UB}")
        a(f"buffer_store_dwordx4 {vr(x+16,4)}, v7, {WS}, s3 offen sc1")

def p5(a, endlab):
    a(f"s_cmp_ge_u32 {sDB}, 7\ns_cbranch_scc1 {endlab}")
    sST, sKH, sTile = "s57", "s58", "s62"
    a(f"s_and_b32 {sST}, {sW}, 1\ns_lshr_b32 {sKH}, {sW}, 1\ns_lshl1_add_u32 {sTile}, {sSB}, {sST}")
    a(f"v_lshlrev_b32 v7, 4, {vL}")
    HH = 84; B2 = 100; AC = [112, 144]
    a(f"s_lshl2_add_u32 s3, s2, {sW}\ns_lshl_b32 s3, s3, 12\ns_add_u32 s3, s3, {HB}")
    for i in range(4): a(f"buffer_load_dwordx4 {vr(HH+4*i,4)}, v7, {WS}, s3 offen offset:{i*1024}")
    a(f"v_and_b32 v2, 31, {vL}\nv_lshlrev_b32 v2, 1, v2\ns_lshl_b32 s3, {sTile}, 6")
    a(f"buffer_load_ushort {vr(B2)}, v2, {RB2}, s3 offen")
    a(f"v_bfe_u32 v4, {vL}, 4, 1\nv_lshlrev_b32 v4, 5, v4\nv_and_b32 v5, 3, {vL}\nv_lshl_add_u32 v4, v5, 3, v4\ns_lshl_b32 s3, {sST}, 6\nv_add_u32 v4, s3, v4")
    a(f"s_mul_i32 s60, {sW}, {448*4096}\ns_lshl_b32 s3, {sSB}, 7\ns_add_u32 s60, s60, s3")
    stage_w(a, RW2, 4096, 28, "s60", "v4", 4, 8)
    a(f"v_lshlrev_b32 {vr(B2)}, 16, {vr(B2)}")
    a(f"s_lshl_b32 s3, {sKH}, 8\nv_xor_b32 v8, s3, v7")
    a(f"v_and_b32 v2, 31, {vL}\nv_mul_u32_u24 v9, 896, v2\nv_lshrrev_b32 v3, 5, {vL}\nv_lshl_add_u32 v9, v3, 4, v9")
    a(f"s_mul_i32 s63, {sTile}, {32*896}\ns_lshl_b32 s3, {sDB}, 7\ns_add_u32 s63, s63, s3\ns_lshl_b32 s3, {sKH}, 5\ns_add_u32 s63, s63, s3")
    a("s_barrier")
    stamp(a, "p5_staged")
    for t in range(2):
        a(f"s_lshl1_add_u32 s60, {sDB}, {t}\ns_lshl2_add_u32 s60, s60, {sW}\ns_mul_i32 s60, s60, {28*1024}\ns_add_u32 s60, s60, {UB}")
        gemm_sub(a, 28, AC[t], "v8", "s60", False)
        reduce4(a, AC[t], [0, 2, 1, 3], t*24576)
        x = AC[t]
        for i in range(8): a(f"v_add_f32 {vr(x+i)}, {vr(x+i)}, {vr(B2)}")
        for i in range(8): a(f"v_add_f32 {vr(x+i)}, {vr(x+i)}, {vr(HH+8*t+i)}")
        for i in range(4): a(f"v_cvt_pk_bf16_f32 {vr(x+16+i)}, {vr(x+2*i)}, {vr(x+2*i+1)}")
        a(f"v_permlane32_swap_b32 {vr(x+16)}, {vr(x+18)}\nv_permlane32_swap_b32 {vr(x+17)}, {vr(x+19)}")
        a(f"buffer_store_dwordx4 {vr(x+16,4)}, v9, {ROUT}, s63 offen offset:{t*64}")

def build(extra_empty=0):
    ks = [("qkv_kernel", lambda a, e: p1(a), ["ws", "x", "wq"], 155648, 256, 0),
          ("attn_kernel", lambda a, e: p2(a), ["ws"], 49152, 256, 0),
          ("proj_kernel", p3, ["ws", "x", "wo"], 59392 + 16384 + 4*2304, 256, 0),
          ("mlp1_kernel", p4, ["ws", "w1", "b1"], 131072, 256, 256),
          ("mlp2_kernel", p5, ["ws", "w2", "b2", "out"], 131072, 256, 256)]
    hdr = open("cdna_kernels/" + NAME + ".s.ref").read().split("; Override launch")[0]
    out = hdr
    for n, f, need, lds, v, ag in ks:
        out += f"; @launch kernel={n} grid=(256,1,1) block=(256,1,1) lds={lds}\n"
    for i in range(extra_empty):
        out += f"; @launch kernel=empty_kernel grid=(256,1,1) block=(256,1,1) lds=0\n"
    out += '.amdgcn_target "amdgcn-amd-amdhsa--gfx950"\n'
    for n, f, need, lds, v, ag in ks:
        a = Asm(); a.uid = (1 + [k[0] for k in ks].index(n)) * 1000
        e = f"L_end_{n}"
        lo = len(STAMPS)
        if PROFILE: a("s_memrealtime s[90:91]\ns_memtime s[94:95]")
        prologue(a, need, e)
        if PROFILE:
            a(f"v_writelane_b32 v255, s90, {len(STAMPS)}\nv_writelane_b32 v255, s94, {32+len(STAMPS)}"); STAMPS.append(n[:4] + "_entry")
        stamp(a, n[:4] + "_start")
        f(a, e)
        stamp(a, n[:4] + "_issued")
        if PROFILE: a("s_waitcnt vmcnt(0)")
        stamp(a, n[:4] + "_end")
        stamp_flush(a, lo)
        if PROFILE and "dbg" in sys.argv and n == "mlp2_kernel":
            sel = [0, 2, 3, 5, 6, 8, 9, 11, 12, 17, 18, 20, 22, 23, 25, 27]
            a(f"s_cmp_lg_u32 s2, 0\ns_cbranch_scc1 {e}\ns_cmp_lg_u32 {sW}, 0\ns_cbranch_scc1 {e}")
            a("s_mov_b64 exec, -1\ns_waitcnt vmcnt(0)")
            a(f"s_mov_b32 s3, {PROF}\nbuffer_load_dword v3, v2, {WS}, s3 offen sc1\ns_waitcnt vmcnt(0)\nv_readlane_b32 s60, v3, 0\nv_mov_b32 v4, 0")
            for i, x in enumerate(sel):
                a(f"v_readlane_b32 s61, v3, {x}\ns_sub_u32 s61, s61, s60\nv_writelane_b32 v4, s61, {i}")
            a("s_sub_u32 s48, s82, 2048\ns_subb_u32 s49, s83, 0\ns_mov_b32 s50, 64\ns_mov_b32 s51, 0x20000")
            a("buffer_store_dword v4, v2, s[48:51], 0 offen")
            a("s_mov_b32 s48, s82\ns_mov_b32 s49, s83")
            a("buffer_store_dword v4, v2, s[48:51], 0 offen")
            for x in sys.argv:
                if x.startswith("spin"):
                    idx = int(x[4:])
                    a(f"v_readlane_b32 s60, v3, {idx}")
                    a("L_spin:\ns_memrealtime s[88:89]\ns_waitcnt lgkmcnt(0)\ns_sub_u32 s88, s88, s60\ns_cmp_lt_u32 s88, 10000\ns_cbranch_scc1 L_spin")
        a(f"{e}:\ns_endpgm")
        nn = a.hazard_pass(verbose=("-v" in sys.argv))
        out += kernel_head(n) + a.text() + kernel_desc(n, v, ag)
    if extra_empty:
        out += kernel_head("empty_kernel") + "  s_endpgm\n" + kernel_desc("empty_kernel", 8, 0)
    return out

if __name__ == "__main__":
    ex = int(sys.argv[2]) if len(sys.argv) > 2 and sys.argv[2].isdigit() else 0
    open(sys.argv[1], "w").write(build(ex))
    if PROFILE: open("stamps.txt", "w").write(" ".join(STAMPS))
```

```python
import re, struct

def f2u(x):
    return struct.unpack("<I", struct.pack("<f", x))[0]
def fhex(x):
    return "0x%08x" % f2u(x)

TRANS = ("v_exp_f32", "v_log_f32", "v_rcp_f32", "v_rsq_f32", "v_sqrt_f32", "v_sin_f32", "v_cos_f32", "v_rcp_iflag_f32", "v_exp_f16")

def regs_of(tok):
    tok = tok.strip()
    tok = tok.lstrip("-")
    m = re.fullmatch(r"\|(.*)\|", tok)
    if m: tok = m.group(1)
    m = re.fullmatch(r"abs\((.*)\)", tok)
    if m: tok = m.group(1)
    m = re.fullmatch(r"([vas])(\d+)", tok)
    if m: return {(m.group(1), int(m.group(2)))}
    m = re.fullmatch(r"([vas])\[(\d+):(\d+)\]", tok)
    if m: return {(m.group(1), k) for k in range(int(m.group(2)), int(m.group(3)) + 1)}
    if tok == "vcc": return {("s", "vcc")}
    if tok in ("vcc_lo", "vcc_hi"): return {("s", "vcc")}
    if tok in ("exec", "exec_lo", "exec_hi"): return {("s", "exec")}
    if tok == "m0": return {("s", "m0")}
    return set()

class Ins:
    def __init__(self, text):
        self.text = text
        t = text.split(";")[0].strip()
        self.label = None
        self.op = None
        self.w = set(); self.r = set()
        self.kind = None
        self.target = None
        if t.endswith(":"):
            self.label = t[:-1]; self.kind = "label"; return
        if t.startswith(".") or not t:
            self.kind = "dir"; return
        parts = t.split(None, 1)
        op = self.op = parts[0]
        rest = parts[1] if len(parts) > 1 else ""
        lmods = " ".join(re.findall(r"\b[a-z_]+:\[[^\]]*\]", rest))
        rest = re.sub(r"\s\b[a-z_]+:\[[^\]]*\]", "", rest)
        toks = [x.strip() for x in rest.split(",")] if rest else []
        mods = ""
        if toks:
            sp = toks[-1].split(None, 1)
            toks[-1] = sp[0]
            mods = sp[1] if len(sp) > 1 else ""
        mods = mods + " " + lmods
        self.mods = mods
        R = [regs_of(x) for x in toks]
        u = lambda l: set().union(*l) if l else set()
        self.srcc = set(); self.ab = set(); self.passes = 0
        self.dpp = ("row_" in mods or "quad_perm" in mods or "wave_" in mods or "_dpp" in op)
        if op.startswith("v_mfma"):
            self.kind = "mfma"; self.w = R[0]; self.ab = R[1] | R[2]; self.srcc = R[3]; self.r = self.ab | self.srcc
            self.passes = 8 if "32x32x16" in op else 4 if "16x16x32" in op else None
            assert self.passes
        elif op.startswith("v_"):
            self.kind = "valu"
            if op.startswith("v_cmpx"):
                self.w = R[0] | {("s", "exec")}; self.r = u(R[1:])
            elif op.startswith("v_permlane") and "swap" in op:
                self.w = R[0] | R[1]; self.r = R[0] | R[1]
            elif "_co_" in op:
                self.w = R[0] | R[1]; self.r = u(R[2:])
            elif op.startswith("v_nop"):
                pass
            else:
                self.w = R[0]; self.r = u(R[1:])
                if op.startswith(("v_fmac", "v_dot2c", "v_writelane", "v_pk_fmac")) or "UNUSED_PRESERVE" in mods or self.dpp:
                    self.r |= R[0]
                if op.startswith("v_cndmask") and len(toks) == 3:
                    self.r |= {("s", "vcc")}
        elif op.startswith("ds_"):
            self.kind = "ds"
            if op.startswith(("ds_read", "ds_bpermute", "ds_permute", "ds_swizzle")) or "_rtn" in op:
                self.w = R[0]; self.r = u(R[1:])
            else:
                self.r = u(R)
        elif op.startswith(("buffer_", "global_")):
            self.kind = "vmem"
            islds = re.search(r"\blds\b", mods) is not None or "_lds_" in op
            if op.startswith(("buffer_inv", "buffer_wbl2")):
                pass
            elif "load" in op and not islds:
                self.w = R[0]; self.r = u(R[1:])
            else:
                self.r = u(R)
                if islds: self.r |= {("s", "m0")}
                if "atomic" in op and "sc0" in mods: self.w = R[0]
            self.widestore = ("store" in op and ("x3" in op or "x4" in op))
            self.sdata = (R[0] if op.startswith("buffer_") else R[1]) if self.widestore else set()
        elif op.startswith("s_"):
            self.kind = "salu"
            if op.startswith(("s_cbranch", "s_branch")):
                self.kind = "branch"; self.target = toks[0]
                if "vcc" in op: self.r = {("s", "vcc")}
                if "exec" in op: self.r = {("s", "exec")}
            elif op.startswith(("s_cmp", "s_waitcnt", "s_barrier", "s_nop", "s_endpgm", "s_sleep", "s_setprio", "s_bitcmp")):
                self.r = u(R)
            elif "saveexec" in op:
                self.w = R[0] | {("s", "exec")}; self.r = u(R[1:]) | {("s", "exec")}
            else:
                self.w = R[0] if R else set(); self.r = u(R[1:])
        else:
            raise ValueError(text)
    def states(self):
        if self.kind in ("label", "dir"): return 0
        if self.op == "s_nop": return int(self.text.split(";")[0].split()[1], 0) + 1
        return 1

def vg(s): return {x for x in s if x[0] in "va"}
def sg(s): return {x for x in s if x[0] == "s"}

def need(p, c):
    n = 0
    if p.kind == "valu":
        isdl = p.op.startswith("v_dot")
        if c.kind == "mfma" and vg(p.w) & c.r: n = max(n, 3 if isdl else 2)
        if c.kind == "mfma" and ("s", "exec") in p.w: n = max(n, 4)
        if c.kind == "valu":
            if p.op.startswith(TRANS) and vg(p.w) & (c.r) and not c.op.startswith(TRANS): n = max(n, 1)
            if p.op.startswith(TRANS) and vg(p.w) & (c.r): n = max(n, 1)
            if c.op.startswith("v_permlane") and vg(p.w) & c.r: n = max(n, 2)
            if c.dpp and vg(p.w) & c.r: n = max(n, 2)
            if c.dpp and ("s", "exec") in p.w: n = max(n, 5)
            if c.op.startswith(("v_readlane", "v_readfirstlane")) and vg(p.w) & c.r: n = max(n, 1)
            if sg(p.w) & c.r:
                n = max(n, 4 if c.op.startswith(("v_readlane", "v_writelane", "v_div_fmas")) else 2)
            if ("s", "exec") in p.w and c.op.startswith(("v_readlane", "v_readfirstlane", "v_writelane", "v_permlane")): n = max(n, 4)
            if ("sdwa" in p.op or ("op_sel" in p.mods and not p.op.startswith("v_pk_"))) and vg(p.w) & (c.r | c.w): n = max(n, 1)
            if isdl and vg(p.w) & (c.r | c.w):
                if c.op != p.op: n = max(n, 3)
                else:
                    toks = [x.strip() for x in c.text.split(";")[0].split(None, 1)[1].split(",")]
                    ab = regs_of(toks[1]) | regs_of(toks[2].split()[0])
                    if vg(p.w) & ab: n = max(n, 3)
        if isdl and c.kind in ("ds", "vmem") and vg(p.w) & (c.r | c.w): n = max(n, 3)
        if c.kind == "vmem" and sg(p.w) & c.r: n = max(n, 5)
        if c.kind == "branch" and sg(p.w) & c.r: n = max(n, 5)
        if c.kind == "salu" and sg(p.w) & c.r: n = max(n, 2)
    if p.kind == "salu":
        if ("s", "m0") in p.w and c.kind in ("vmem", "ds") and ("s", "m0") in c.r: n = max(n, 1)
    if p.kind == "vmem" and getattr(p, "widestore", False):
        if p.sdata & c.w: n = max(n, 2 if c.kind in ("valu", "mfma") else 1)
    if p.kind == "mfma":
        big = {4: 8, 8: 12}[p.passes]
        if c.kind == "mfma":
            if p.w & c.ab: n = max(n, big)
            if p.w & c.srcc:
                if p.w == c.srcc and p.passes == c.passes: pass
                else: n = max(n, big - 2)
            elif p.w & c.w:
                n = max(n, 0 if p.passes == c.passes and p.w == c.w else big - 2)
        elif c.kind in ("valu", "ds", "vmem"):
            if p.w & (c.r | c.w): n = max(n, big)
            if c.kind == "valu" and p.srcc & c.w: n = max(n, {4: 3, 8: 7}[p.passes])
    return n

class Asm:
    def __init__(self):
        self.L = []
        self.uid = 0
        self.nvm = 0; self.nds = 0
        self.tags = {}
    def __call__(self, text, tag=None):
        for ln in text.split("\n"):
            ln = ln.strip()
            if ln:
                x = Ins(ln)
                self.L.append(x)
                if x.kind == "vmem": self.nvm += 1
                if x.kind == "ds": self.nds += 1
        if tag is not None: self.mark(tag)
    def mark(self, tag):
        self.tags[tag] = (self.nvm, self.nds)
    def wait(self, vm=None, ds=None):
        t = []
        if vm is not None:
            n = self.nvm - self.tags[vm][0]; assert 0 <= n
            if n <= 63: t.append(f"vmcnt({n})")
        if ds is not None:
            n = self.nds - self.tags[ds][1]; assert 0 <= n
            t.append(f"lgkmcnt({min(n, 15)})")
        if t: self("s_waitcnt " + " ".join(t))
    def lab(self, base):
        self.uid += 1
        return f"L_{base}_{self.uid}"
    def hazard_pass(self, verbose=False):
        MAXN = 12
        inserted = 0
        changed = True
        while changed:
            changed = False
            L = self.L
            labels = {x.label: i for i, x in enumerate(L) if x.kind == "label"}
            srcs = {}
            for i, x in enumerate(L):
                if x.kind == "branch": srcs.setdefault(labels[x.target], []).append(i)
            out = []
            fix = {}
            for i, c in enumerate(L):
                if c.kind in ("label", "dir"): continue
                worst = 0
                stack = [(i - 1, 0)]
                seen = {}
                while stack:
                    j, d = stack.pop()
                    if j < 0 or d >= MAXN: continue
                    if seen.get(j, 99) <= d: continue
                    seen[j] = d
                    p = L[j]
                    if p.kind == "label":
                        for b in srcs.get(j, []): stack.append((b, d))
                        k = j - 1
                        while k >= 0 and L[k].kind == "dir": k -= 1
                        if k >= 0 and not (L[k].op in ("s_branch", "s_endpgm", "s_setpc_b64")): stack.append((j - 1, d))
                        continue
                    if p.kind == "dir":
                        stack.append((j - 1, d)); continue
                    n = need(p, c)
                    if n - d > worst: worst = n - d; why = p
                    stack.append((j - 1, d + p.states() + fix.get(j, 0)))
                if worst > 0:
                    fix[i] = worst
                    if verbose: print(f"; hazard: +{worst} before '{c.text}' after '{why.text}'")
            if fix:
                for i, c in enumerate(L):
                    if i in fix:
                        out.append(Ins(f"s_nop {fix[i]-1}")); inserted += fix[i]
                    out.append(c)
                self.L = out
                changed = True
        return inserted
    def text(self):
        o = []
        for x in self.L:
            o.append(x.text if x.kind in ("label", "dir") else "  " + x.text)
        return "\n".join(o) + "\n"

def kernel_head(name):
    return f".text\n.globl {name}\n.p2align 8\n.type {name},@function\n{name}:\n"
def kernel_desc(name, vgpr, agpr, sgpr=102):
    acc = (vgpr + 3) // 4 * 4
    return f""".section .rodata,"a"
.p2align 6
.amdhsa_kernel {name}
  .amdhsa_next_free_vgpr {acc + agpr if agpr else vgpr}
  .amdhsa_next_free_sgpr {sgpr}
  .amdhsa_accum_offset {acc}
  .amdhsa_group_segment_fixed_size 0
  .amdhsa_kernarg_size 88
  .amdhsa_user_sgpr_count 2
  .amdhsa_user_sgpr_kernarg_segment_ptr 1
  .amdhsa_system_sgpr_workgroup_id_x 1
.end_amdhsa_kernel
"""
```

```python
import sys, math
from g import *

NAME = "sequential_preLN__softmax_full_mha__mixer_token_mlp__prompt"
S, D, H, DH, F = 2048, 448, 16, 28, 1792
OPT = set(sys.argv[2:])
def optv(name, dflt):
    for o in OPT:
        if o.startswith(name + "="): return int(o.split("=")[1])
    return dflt
KV   = 0x0000000
OB   = 0x0600000
ST   = 0x0800000
FL   = 0x0880000
HT   = 0x08A0000
HN   = 0x0900000
UB   = 0x0B00000
HB   = 0x0D00000
PROF = 0x1200000

sAR, sG, sH2 = "s0", "s1", "s2"
sW, sRB, sH, sDB, sSB, sFB, sST, sKH = "s4", "s5", "s6", "s7", "s8", "s9", "s10", "s11"
WS, RX, RWQ, RWO, RW1, RW2, RB1, RB2, ROUT, RDBG = ("s[12:15]", "s[16:19]", "s[20:23]", "s[24:27]", "s[28:31]", "s[32:35]", "s[36:39]", "s[40:43]", "s[44:47]", "s[48:51]")
sTile, sLQ, sH3 = "s52", "s53", "s57"
sO, sXR, sB1, sP2, sB2, sCN, sI1, sI2, sLO, sKF = "s64", "s65", "s66", "s67", "s68", "s69", "s70", "s71", "s72", "s73"
MHI = "s[74:75]"; sU2 = "s78"; WS3, WS4 = "s[80:83]", "s[84:87]"
sOo, sSo, sHo, sUo, sW4 = "s97", "s98", "s99", "s100", "s101"
vL = "v1"; vL16 = "v7"; vHS = "v14"
LDS_TOTAL = 163840
ARENA0, ARENA, INB = 59392, 24576, 12288
Q, O, SS, P, KVB = 16, 48, 112, 144, 152
PARK, RING, AC1, AC0, HH = 16, 112, 160, 192, 224
vWO = [212, 213, 214, 215]; vW1 = [216, 217, 218, 219]; vT1 = [220, 221]; vIT = 222
PZ, vL4, vCN, vHI, vL7, CNT, vPF, vIW = 224, 228, 229, 230, 231, 232, 233, 236
XR, B1, B2, vFL, vUS = 240, 248, 252, 253, 254
QX = ARENA0 + 3*ARENA + INB

def vr(b, n=1): return f"v{b}" if n == 1 else f"v[{b}:{b+n-1}]"
def ar(b, n=1): return f"a{b}" if n == 1 else f"a[{b}:{b+n-1}]"
def mf(d, A, B, C=None): return f"v_mfma_f32_32x32x16_bf16 {d}, {A}, {B}, {d if C is None else C}"

PROFILE = "prof" in OPT
STAMPS = []
SPINAT = [o[5:] for o in OPT if o.startswith("spin:")]
def stamp(a, name):
    if name in SPINAT: a("s_memrealtime s[90:91]\ns_waitcnt lgkmcnt(0)")
    if not PROFILE: return
    if "p2st" in OPT and name[:2] in ("p1", "su", "p5", "is"): return
    if "post" in OPT and name[:2] in ("p1", "st"): return
    if "pre" in OPT and name[:2] not in ("p1", "st", "p2", "en"): return
    if "bst" in OPT and name[:2] in ("p1", "st", "p2", "p3"): return
    if "lite" in OPT and name not in ("p1_kvst", "p2_loop", "p2_end", "p3_stpub", "p3_end", "p4_first", "sub2", "end"): return
    if name not in STAMPS: STAMPS.append(name)
    i = STAMPS.index(name); assert i < 32
    a(f"s_memrealtime s[88:89]\ns_memtime s[92:93]\ns_waitcnt lgkmcnt(0)\nv_writelane_b32 v255, s88, {i}\n" + ("s_sub_u32 s92, 0x100000, s96\n" if "cnt" in OPT else "") + f"v_writelane_b32 v255, s92, {32+i}")
def hint(sreg, off=0):
    return f"s_mov_b64 exec, 1\nbuffer_store_dword {vL}, off, {WS}, {sreg} sc1\ns_mov_b64 exec, -1"
def hintn():
    return hint(sH3) + f"\ns_add_u32 {sH3}, {sH3}, 32768"
def gate(a, name, vdst, vaddr, soff, tag):
    lp = a.lab(name); lo = a.lab(name + "o")
    a.wait(vm=tag)
    a(f"{lp}:\nv_cmp_eq_u32 vcc, -1, {vdst}\ns_cbranch_vccz {lo}")
    nv = a.nvm
    a(f"{SPIN}\nbuffer_load_dword {vdst}, {vaddr}, {WS}, {soff} offen sc1\ns_waitcnt vmcnt(0)\ns_branch {lp}\n{lo}:")
    a.nvm = nv
def gate2(a, name, va, vb, vaddr, soff, tag):
    lp = a.lab(name); lo = a.lab(name + "o")
    ld = lambda v: f"buffer_load_dword {v}, {vaddr}, {WS}, {soff} offen sc1"
    a.wait(vm=tag)
    nv = a.nvm
    a(f"{lp}:\nv_cmp_eq_u32 vcc, -1, {va}\ns_cbranch_vccz {lo}\n{ld(va)}\ns_waitcnt vmcnt(1)\nv_cmp_eq_u32 vcc, -1, {vb}\ns_cbranch_vccz {lo}")
    a(f"{SPIN}\n{ld(vb)}\ns_waitcnt vmcnt(1)\ns_branch {lp}\n{lo}:")
    a.nvm = nv
def stamp_flush(a, lo=0):
    if not PROFILE: return
    hi = len(STAMPS)
    mask = ((1 << hi) - 1) & ~((1 << lo) - 1)
    a(f"s_lshl2_add_u32 s3, s91, {sW}\ns_lshl_b32 s3, s3, 8\ns_add_u32 s3, s3, {PROF}\nv_lshlrev_b32 v2, 2, {vL}")
    a(f"s_mov_b32 exec_lo, {mask}\ns_mov_b32 exec_hi, {mask}\nbuffer_store_dword v255, v2, {WS}, s3 offen sc1\ns_mov_b64 exec, -1")
def show_prof(acc):
    import numpy as np
    names = open("stamps.txt").read().split()
    for r, p in enumerate(acc):
        if r < 5: continue
        fill = (r + 1) * 0x01010101
        t0 = p[:, :, 0].min()
        print("run", r)
        import os
        for nm in os.environ.get("SHOW", "").split():
            k = names.index(nm)
            print(nm, "by [xcd][loc] (wave0), 10ns")
            print((p[:, 0, k] - t0).reshape(32, 8).T)
        for i, n in enumerate(names):
            v = p[:, :, i]; ok = (v != fill) & (v != 0); v = v[ok] - t0
            if v.size == 0: continue
            ex = ""
            if i and not n.endswith("entry"):
                ok2 = ok & (p[:, :, i-1] != fill) & (p[:, :, i-1] != 0)
                if ok2.any():
                    dc = ((p[:, :, 32+i] - p[:, :, 31+i]) & 0xffffffff)[ok2]; dt = (p[:, :, i] - p[:, :, i-1])[ok2]
                    ex = f" dcyc med {np.median(dc):7.0f} max {dc.max():7.0f}  GHz {dc.sum()/max(1,dt.sum())/10:5.2f}"
            print(f"  {n:12s} min {v.min()/100:7.2f} med {np.median(v)/100:7.2f} max {v.max()/100:7.2f}  n={v.size}{ex}")

SPIN = "s_sub_u32 s96, s96, 1\ns_cbranch_scc1 L_end" + (f"\ns_sleep {optv('slp', 0)}" if optv('slp', 0) else "")
def m0set(sg_, c):
    return f"s_mov_b32 m0, {c}" if sg_ is None else f"s_add_u32 m0, {sg_}, {c}"
def dmai(vaddr, srd_, soff, off=0):
    return f"buffer_load_dwordx4 {vaddr}, {srd_}, {soff} offen" + (f" offset:{off}" if off else "") + " lds"

def swz128(a, dst, stride, t1="v2", t2="v3"):
    a(f"v_lshrrev_b32 {t1}, 3, {vL}\nv_mul_u32_u24 {dst}, {stride}, {t1}")
    a(f"v_lshrrev_b32 {t1}, 2, {vL}\nv_and_b32 {t1}, 4, {t1}\nv_and_b32 {t2}, 7, {vL}\nv_xor_b32 {t1}, {t1}, {t2}")
    a(f"v_lshl_add_u32 {dst}, {t1}, 4, {dst}")

def trbase(a, dst, hfmul, col, t1="v2", t2="v3"):
    a(f"v_bfe_u32 {t1}, {vL}, 2, 2\nv_lshrrev_b32 {t2}, 5, {vL}\nv_lshl_add_u32 {t2}, {t2}, {int(math.log2(hfmul))}, {t1}")
    a(f"v_lshrrev_b32 {t1}, 1, {t1}\nv_lshlrev_b32 {t1}, 6, {t1}\nv_xor_b32 {t1}, {t1}, {col}\nv_lshl_add_u32 {dst}, {t2}, 7, {t1}")

def xhalf_sum(a, v, t):
    a(f"v_mov_b32 {t}, {v}\nv_permlane32_swap_b32 {t}, {v}\nv_add_f32 {v}, {t}, {v}")

def weave(a, main, fill, start=0, per=1):
    fill = list(fill)
    def em(x): x() if callable(x) else a(x)
    for i, m in enumerate(main):
        em(m)
        if i >= start:
            for _ in range(per):
                if fill: em(fill.pop(0))
    for x in fill: em(x)

def split3(x, r1, r2):
    return [f"v_and_b32 {r1}, 0xffff0000, {x}", f"v_sub_f32 {r1}, {x}, {r1}", f"v_and_b32 {r2}, 0xffff0000, {r1}", f"v_sub_f32 {r2}, {r1}, {r2}"]
sPERM = "s62"
def splitA(dst, x, r1, r2):
    return split3(x, r1, r2) + [f"v_perm_b32 {vr(dst)}, {x}, {x}, {sPERM}", f"v_perm_b32 {vr(dst+1)}, {r1}, {r1}, {sPERM}", f"v_perm_b32 {vr(dst+2)}, {r2}, {x}, {sPERM}"]
def splitB(dst, x, r1, r2):
    return split3(x, r1, r2) + [f"v_perm_b32 {vr(dst)}, {r1}, {x}, {sPERM}", f"v_perm_b32 {vr(dst+1)}, {r1}, {x}, {sPERM}", f"v_perm_b32 {vr(dst+2)}, {x}, {r2}, {sPERM}"]

SRDS = {"ws": (12, 84, 1 << 28), "x": (16, 64, S*D*2), "wq": (20, 66, D*3*D*2), "wo": (24, 68, D*D*2),
        "w1": (28, 72, S*F*2), "w2": (32, 76, S*F*2), "b1": (36, 74, F*2), "b2": (40, 78, S*2), "out": (44, 80, S*D*2), "dbg": (48, 82, 256)}
def srd(a, n):
    b, p, sz = SRDS[n]
    a(f"s_mov_b64 s[{b}:{b+1}], s[{p}:{p+1}]\ns_mov_b32 s{b+2}, {sz}\ns_mov_b32 s{b+3}, 0x20000")

def prologue(a, endlab, codelab):
    a(f"s_cmp_ge_u32 s2, 256\ns_cbranch_scc1 {endlab}")
    a("s_load_dwordx16 s[64:79], s[0:1], 0\ns_load_dwordx4 s[80:83], s[0:1], 64\ns_load_dwordx2 s[84:85], s[0:1], 80")
    a(f"s_lshr_b32 s57, s2, 3\ns_lshl_b32 s3, s57, 11\nv_lshrrev_b32 v9, 4, v0\nv_lshl_add_u32 v9, v9, 7, s3")
    a(f"s_getpc_b64 s[62:63]\nL_pc:\nv_min_u32 v9, {codelab}-L_pc-4, v9\nglobal_load_dword v10, v9, s[62:63]")
    a(f"v_lshrrev_b32 v2, 6, v0\nv_and_b32 {vL}, 63, v0\nv_readfirstlane_b32 {sW}, v2\nv_lshlrev_b32 {vL16}, 4, {vL}")
    a(f"s_cmp_ge_u32 {sW}, 2\ns_cbranch_scc1 L_et")
    a("v_lshrrev_b32 v2, 1, v0\nv_min_u32 v3, 55, v2\nv_min_u32 v2, 36, v2\ns_mul_i32 s3, s2, 56\nv_add_lshl_u32 v3, v3, s3, 7\ns_mul_i32 s3, s2, 37\nv_add_u32 v2, s3, v2\nv_min_u32 v2, 9407, v2\nv_lshlrev_b32 v2, 7, v2")
    a("v_lshrrev_b32 v4, 3, v0\ns_lshl_b32 s3, s2, 4\nv_add_u32 v4, s3, v4\nv_min_u32 v4, 3135, v4\nv_lshlrev_b32 v4, 7, v4")
    a("v_lshlrev_b32 v5, 2, v0\nv_and_b32 v5, 0x180, v5\ns_and_b32 s3, s2, 7\ns_lshl_b32 s3, s3, 9\nv_add_u32 v5, s3, v5\nv_min_u32 v6, 3456, v5")
    a("s_waitcnt lgkmcnt(0)\nglobal_load_dword v10, v3, s[64:65]\nglobal_load_dword v10, v2, s[66:67]\nglobal_load_dword v10, v4, s[68:69]\nglobal_load_dword v10, v6, s[74:75]\nglobal_load_dword v10, v5, s[78:79]")
    a("L_et:")
    if PROFILE: a("v_mov_b32 v255, 0")
    a(f"s_and_b32 s56, s2, 7\ns_and_b32 s58, s57, 3\ns_lshr_b32 {sLQ}, s57, 2")
    a(f"s_lshr_b32 s3, s56, 1\ns_lshl2_add_u32 {sH}, s3, s58")
    a(f"s_and_b32 s3, s56, 1\ns_lshl3_add_u32 {sRB}, s3, {sLQ}")
    a(f"s_lshr_b32 s3, s56, 2\ns_lshl2_add_u32 {sDB}, s3, s58")
    if "nobal" not in OPT: a(f"s_and_b32 s3, {sLQ}, 1\ns_lshl_b32 s3, s3, 2\ns_cmp_eq_u32 s58, 3\ns_cselect_b32 s3, s3, 0\ns_xor_b32 {sDB}, {sDB}, s3")

class Chunks:
    def __init__(self): self.l = []
    def __call__(self, t): self.l.append(t)

def late_setup():
    a = Chunks()
    a(f"s_lshl2_add_u32 s3, {sRB}, {sW}\ns_lshl4_add_u32 s3, s3, {sH}\ns_lshl_b32 s3, s3, 11\ns_add_u32 {sOo}, s3, {OB}")
    a(f"s_lshl1_add_u32 s3, {sDB}, {sKH}\ns_lshl4_add_u32 s3, {sTile}, s3\ns_lshl_b32 s3, s3, 8\ns_add_u32 {sSo}, s3, {ST}")
    a(f"v_lshlrev_b32 {vr(vL4)}, 2, {vL}\nv_bfe_u32 v2, {vL}, 4, 1\nv_lshlrev_b32 v2, 17, v2\nv_lshrrev_b32 v3, 5, {vL}")
    a(f"v_lshl_add_u32 v2, v3, 9, v2\nv_and_b32 v3, 15, {vL}\nv_lshl_add_u32 {vHS}, v3, 4, v2")
    a(f"s_lshl_b32 s3, {sDB}, 7\ns_add_u32 s3, s3, {sTile}\ns_lshl3_add_u32 s3, s3, {sKH}\ns_lshl_b32 s3, s3, 8\ns_add_u32 {sHo}, s3, {HN}")
    a(f"s_mul_i32 s3, {sDB}, 56\ns_add_u32 s3, s3, {sFB}\ns_lshl2_add_u32 s3, s3, {sW}\ns_lshl_b32 s3, s3, 10\ns_add_u32 {sUo}, s3, {UB}")
    a(f"s_add_u32 {sU2}, {sUo}, {112*1024}\ns_lshl_b32 {sW4}, {sW}, 2\ns_lshl2_add_u32 {sO}, {sH}, {sW}\ns_lshl_b32 {sO}, {sO}, 16")
    a(f"s_lshl4_add_u32 s3, {sRB}, {sH}\ns_lshl_b32 s3, s3, 7\ns_add_u32 s3, s3, {sW4}\ns_add_u32 {sH2}, s3, {HT}")
    a(f"s_lshl_b32 s56, {sDB}, 5\ns_add_u32 s56, s56, {sSB}\ns_lshl_b32 s56, s56, 7\ns_add_u32 s3, s56, {sW4}\ns_add_u32 {sH3}, s3, {HT + 32768}")
    a(f"v_min_u32 v2, 4, {vL}\nv_lshlrev_b32 v2, 15, v2\ns_sub_u32 s3, {sH3}, 32768\nv_add_u32 {vr(vHI)}, s3, v2\nv_writelane_b32 {vr(vHI)}, {sH2}, 0")
    a(f"s_add_u32 s3, s56, {FL + 16}\nv_mov_b32 {vr(vPF)}, s3\ns_lshl4_add_u32 s3, {sH}, {sRB}\ns_lshl_b32 s3, s3, 7\ns_add_u32 s3, s3, {FL}\nv_writelane_b32 {vr(vPF)}, s3, 0\ns_add_u32 {sKF}, s3, {sW4}")
    a(f"s_lshr_b32 s3, {sSB}, 1\ns_lshl_b32 s3, s3, 7\ns_add_u32 {sCN}, s3, {FL + 16}\ns_mov_b32 s56, 2048")
    a(f"s_lshl1_add_u32 s3, {sDB}, {sW}\ns_lshl_b32 s3, s3, 11\ns_add_u32 s3, s3, {FL + 32 - 2048}\ns_cmp_lg_u32 {sW}, 0\ns_cselect_b32 {sCN}, s3, {sCN}\ns_cselect_b32 s56, 128, s56")
    a(f"s_lshl_b32 s3, {sSB}, 7\ns_add_u32 s3, s3, {FL + 32}\ns_cmp_eq_u32 {sW}, 3\ns_cselect_b32 {sCN}, s3, {sCN}\ns_cselect_b32 s56, 4096, s56\ns_cselect_b32 s3, 6, 15\nv_lshrrev_b32 v2, 2, {vL}\nv_min_u32 v2, s3, v2")
    a(f"v_mul_u32_u24 v2, s56, v2\nv_and_b32 v3, 3, {vL}\nv_lshl_add_u32 {vr(vCN)}, v3, 2, v2")
    a(f"s_lshr_b32 s3, {sH}, 1\ns_lshl2_add_u32 s3, s3, {sW}\ns_lshl_b32 s3, s3, 9\ns_add_u32 s3, s3, {FL}\nv_bfe_u32 v2, {vL}, 2, 1\nv_lshl_add_u32 v2, v2, 14, s3")
    a(f"v_lshl_add_u32 v207, v3, 2, v2\nv_lshl_add_u32 v2, v3, 7, v2\nv_bfe_u32 v3, {vL}, 3, 2\nv_lshl_add_u32 {vr(vFL)}, v3, 2, v2")
    a(f"s_mul_i32 {sAR}, {sW}, {ARENA}\ns_add_u32 {sAR}, {sAR}, {ARENA0}\ns_mul_i32 {sG}, {sW}, {512*3584}\ns_lshl_b32 s3, {sFB}, 7\ns_add_u32 {sG}, {sG}, s3")
    a(f"v_lshrrev_b32 v2, 2, {vL}\nv_and_b32 v2, 4, v2\nv_and_b32 v3, 7, {vL}\nv_lshlrev_b32 {vr(vL7)}, 7, v3\nv_xor_b32 v2, v2, v3")
    a(f"v_lshrrev_b32 v3, 3, {vL}\nv_mul_u32_u24 v4, 3584, v3\nv_lshl_add_u32 {vr(vW1[0])}, v2, 4, v4\nv_mul_u32_u24 v4, 896, v3\nv_lshl_add_u32 {vr(vWO[0])}, v2, 4, v4")
    a("\n".join(f"v_add_u32 {vr(vW1[i])}, {i*(8*3584-1024)}, {vr(vW1[0])}" for i in range(1, 4)))
    a("\n".join(f"v_add_u32 {vr(vWO[i])}, {i*(8*896-1024)}, {vr(vWO[0])}" for i in range(1, 4)))
    a(f"v_bfe_u32 v4, {vL}, 4, 1\nv_xor_b32 v4, {sW}, v4\nv_lshlrev_b32 v4, 5, v4\nv_and_b32 v5, 3, {vL}\nv_lshl_add_u32 v4, v5, 3, v4")
    trbase(a, vr(vT1[0]), 8, "v4")
    a(f"v_add_u32 {vr(vT1[0])}, {sAR}, {vr(vT1[0])}\nv_xor_b32 {vr(vT1[1])}, 64, {vr(vT1[0])}\ns_mul_i32 s79, {sW}, {14*1024}")
    a(f"v_and_b32 v2, 31, {vL}\nv_mul_u32_u24 v4, 896, v2\nv_lshrrev_b32 v3, 5, {vL}\nv_lshl_add_u32 {vr(XR+4)}, v3, 4, v4")
    a(f"v_lshlrev_b32 {vr(B1+2)}, 3, v3\nv_lshlrev_b32 {vr(B2)}, 1, v2\ns_lshl2_add_u32 {sB1}, {sFB}, {sW}\ns_lshl_b32 {sB1}, {sB1}, 5\ns_lshl_b32 {sB2}, {sTile}, 6")
    a(f"s_mul_i32 {sXR}, {sTile}, {32*896}\ns_lshl_b32 s3, {sDB}, 7\ns_add_u32 {sXR}, {sXR}, s3\ns_lshl_b32 s3, {sKH}, 5\ns_add_u32 {sXR}, {sXR}, s3")
    for j in range(3):
        a(f"s_add_u32 s56, {sW}, {j+1}\ns_and_b32 s56, s56, 3\ns_mul_i32 s3, s56, {ARENA}\ns_add_u32 s3, s3, {ARENA0+INB}\nv_add_u32 {vr(vIW+j)}, s3, {vL16}")
        a(f"s_lshl_b32 s3, s56, 11\ns_add_u32 s3, s3, {QX}\nv_add_u32 {vr(Q+8*j+4)}, s3, {vL16}")
    a(f"v_add_u32 {vr(vIW+3)}, {sAR}, {vL16}\ns_lshl_b32 s3, {sW}, 11\ns_add_u32 s3, s3, {QX}\nv_add_u32 v210, s3, {vL16}")
    a(f"s_add_u32 s3, {sDB}, 8\ns_cmp_eq_u32 {sDB}, 7\ns_cselect_b32 s3, {sLQ}, s3\ns_mul_i32 {sI1}, s3, {9*3584}\ns_mul_i32 {sI2}, s3, 15\ns_lshr_b32 {sI2}, {sI2}, 1\ns_lshl_b32 {sI2}, {sI2}, 12")
    a(f"s_mul_i32 s3, {sW}, {512*3584}\ns_add_u32 {sI1}, {sI1}, s3\ns_mul_i32 s3, {sW}, {448*4096}\ns_add_u32 {sI2}, {sI2}, s3")
    a(f"s_sub_u32 s56, {sSB}, {sFB}\ns_mul_i32 s3, s56, 896\ns_add_u32 {sI1}, {sI1}, s3\ns_lshl_b32 s3, s56, 10\ns_add_u32 {sI2}, {sI2}, s3\ns_mov_b32 {sLO}, {fhex(2.0**-30)}")
    a(f"v_min_u32 v2, 62, {vL}\nv_mul_u32_u24 v3, 37, v2\nv_lshrrev_b32 v3, 8, v3\nv_mul_u32_u24 v3, {3584 - 7*128}, v3\nv_lshl_add_u32 {vr(vIT)}, v2, 7, v3")
    a(f"v_lshrrev_b32 v2, 3, {vL}\nv_lshl_add_u32 {vr(vIT+1)}, v2, 12, {vr(vL7)}")
    a(f"s_lshr_b32 s3, {sTile}, 2\ns_lshl1_add_u32 s3, s3, {sKH}\ns_lshl_b32 s3, s3, 8\ns_and_b32 s56, {sTile}, {3 if 'h2all' in OPT else 0}\ns_add_u32 s3, s3, s56\ns_lshl_b32 s3, s3, 2\ns_add_u32 {sP2}, s3, {HT}")
    return a.l

def p1(a, stubs):
    WB, WQB, XB, CSB_ = 0, 58368, 87040, 161792
    ACA, ACB, GR, CSA, CSB, WF = 48, 64, 80, 96, 112, 128
    ONES = 160; FA, FB, FM = 164, 168, 172
    vX = [176, 177, 178, 179]; vW = 180; vWQ = 181
    vXR = [182, 183, 184, 185]; vWA = [186, 187, 188, 189]; vWB = [190, 191, 192, 193]; vQR = [194, 195, 196, 197]
    vCW, vCR, GATE, vWb, RS, PK = 198, 199, 200, 202, 204, 80
    vTW, vTR = 208, 209
    sXB, sWo, sT, sWm, sQo, sKVo = "s54", "s55", "s58", "s59", "s60", "s61"
    def em(x): x() if callable(x) else a(x)
    a(f"s_lshl2_add_u32 s3, {sRB}, {sW}\ns_mul_i32 s3, s3, {32*896}")
    a(f"v_lshrrev_b32 v5, 3, {vL}\nv_mul_u32_u24 v2, 896, v5\nv_add_u32 v2, s3, v2")
    a(f"v_lshrrev_b32 v3, 4, {vL}\nv_and_b32 v4, 7, {vL}\nv_xor_b32 v3, v3, v4")
    a(f"v_lshl_add_u32 {vr(vX[0])}, v3, 4, v2")
    a(f"v_xor_b32 v3, 4, v3\nv_lshl_add_u32 v3, v3, 4, v2\nv_add_u32 {vr(vX[1])}, {8*896 - 1024}, v3")
    a(f"v_add_u32 {vr(vX[2])}, {16*896 - 2048}, {vr(vX[0])}\nv_add_u32 {vr(vX[3])}, {16*896 - 2048}, {vr(vX[1])}")
    a(f"s_lshl_b32 {sXB}, {sW}, 14\ns_add_u32 {sXB}, {sXB}, {XB}")
    a(f"v_mul_u32_u24 {vr(vW)}, 2688, v5\nv_lshrrev_b32 v2, 2, {vL}\nv_and_b32 v2, 4, v2\nv_xor_b32 v2, v2, v4\nv_lshl_add_u32 {vr(vW)}, v2, 4, {vr(vW)}")
    a(f"v_cmp_ne_u32 vcc, 7, v2\nv_add_u32 {vr(vWb)}, {8*2688 - 1024}, {vr(vW)}")
    a(f"s_mul_i32 {sWo}, {sH}, 112\ns_mul_i32 {sQo}, {sW}, {16*2688}\ns_add_u32 {sWo}, {sWo}, {sQo}\ns_lshl_b32 {sWm}, {sW}, 11")
    a("s_waitcnt lgkmcnt(0)")
    srd(a, "x"); srd(a, "wq")
    if PROFILE: a("s_mov_b32 s91, s2")
    stamp(a, "start")
    def chunk_dma(c):
        l = [f"s_add_u32 {sT}, {sWo}, {896 + c*64*2688}\n" + m0set(sWm, WB + c*8192) + "\ns_mov_b64 exec, vcc\n" + dmai(vr(vW), RWQ, sT) + "\ns_mov_b64 exec, -1",
             "s_mov_b64 exec, vcc\n" + dmai(vr(vWb), RWQ, sT, 1024) + "\ns_mov_b64 exec, -1\n" + m0set(sXB, (c & 3)*4096 - c*128)]
        l += [dmai(vr(vX[o]), RX, "0", c*128 + o*1024) for o in range(4)]
        return l[:-1] + [lambda: a(l[-1], tag=f"c{c}")]
    qdma = [m0set("s63", WQB + i*4096) + f"\ns_add_u32 {sT}, {sQo}, {i*64*2688}\n" + dmai(vr(vWQ), RWQ, sT) for i in range(7)]
    for x in chunk_dma(0): em(x)
    a(f"s_and_b32 s3, s56, 3\ns_lshl3_add_u32 {sSB}, s3, {sLQ}\ns_sub_u32 {sFB}, {sSB}, s3")
    a(f"s_and_b32 {sST}, {sW}, 1\ns_lshr_b32 {sKH}, {sW}, 1\ns_lshl1_add_u32 {sTile}, {sSB}, {sST}\ns_mov_b32 s96, 0x100000")
    for n in ("ws", "dbg", "wo", "w1", "w2", "b1", "b2", "out"): srd(a, n)
    if "tlb" in OPT:
        a(f"v_lshrrev_b32 v2, 5, v0\ns_lshl_b32 s3, s57, 3\nv_add_lshl_u32 v2, v2, s3, 15\nbuffer_load_dword v10, v2, {RW1}, 0 offen\nbuffer_load_dword v10, v2, {RW2}, 0 offen")
        a(f"v_lshlrev_b32 v2, 1, v2\nbuffer_load_dword v10, v2, {WS}, 0 offen sc1")
    a(f"s_mov_b64 s[80:81], s[12:13]\ns_mov_b32 s83, 0x20000\ns_mov_b64 s[84:85], s[12:13]\ns_mov_b32 s87, 0x20000")
    a(f"s_cmp_lt_u32 {sDB}, 7\ns_cselect_b32 s82, s14, 0\ns_cselect_b32 s26, s26, 0\ns_cselect_b32 s30, s30, 0")
    a(f"s_cmp_lt_u32 {sLQ}, 7\ns_cselect_b32 s86, s82, 0\ns_cselect_b32 s30, s30, 0")
    for i in range(4): a(f"v_mov_b32 {vr(PZ+i)}, -1")
    a(f"s_and_b32 s3, {sH}, 7\ns_lshl_b32 s3, s3, 7\ns_lshl2_add_u32 s3, {sRB}, s3\ns_add_u32 s3, s3, {sW}\ns_lshl_b32 {sKVo}, s3, 12")
    nv = a.nvm
    a(f"s_cmp_lg_u32 {sH}, 0\ns_cbranch_scc1 L_nz\nv_mov_b32 v2, 0\nv_mov_b32 v3, 0\nv_lshlrev_b32 v12, 3, v0\ns_lshl_b32 s3, {sRB}, 11\ns_add_u32 s3, s3, {FL}")
    a(f"buffer_store_dwordx2 v[2:3], v12, {WS}, s3 offen sc1\nL_nz:")
    a(f"s_and_b32 s3, {sRB}, 3\ns_cbranch_scc1 L_np\ns_lshr_b32 s3, {sH}, 3\ns_lshl_b32 s3, s3, 11\ns_add_u32 s3, s3, {sKVo}\ns_add_u32 s56, s3, {64*4096}")
    for sg_ in ("s3", "s56"):
        for o in (0, 1024): a(f"buffer_store_dwordx4 {vr(PZ,4)}, {vL16}, {WS}, {sg_} offen offset:{o} sc1")
    a("L_np:"); a.nvm = nv
    for i in range(4): a(f"v_mov_b32 {vr(ONES+i)}, 0x3f803f80")
    a(f"v_lshrrev_b32 v2, 1, v0\nv_and_b32 v2, 1, v2\nv_lshlrev_b32 v2, 6, v2\nv_xor_b32 v2, 0x70, v2\nv_lshl_add_u32 v2, v0, 7, v2")
    a(f"ds_write_b128 v2, {vr(ONES,4)} offset:{WB}\nds_write_b128 v2, {vr(ONES,4)} offset:{WB + 192*128}")
    a(f"v_and_b32 v2, 31, {vL}\nv_lshlrev_b32 v3, 7, v2\nv_add_u32 v3, {sXB}, v3")
    a(f"v_lshrrev_b32 v4, 1, v2\nv_and_b32 v4, 7, v4\nv_lshrrev_b32 v5, 5, {vL}\nv_xor_b32 v4, v4, v5\ns_lshl_b32 s3, {sW}, 1\nv_xor_b32 v4, s3, v4")
    for q in range(4):
        a(f"v_xor_b32 v6, {2*q}, v4\nv_lshl_add_u32 {vr(vXR[q])}, v6, 4, v3")
    a(f"v_lshlrev_b32 {vr(vCR)}, 4, v2\nv_add_u32 {vr(vCR)}, {CSB_}, {vr(vCR)}\ns_lshl_b32 s3, {sW}, 2\nv_add_u32 {vr(vCW)}, s3, {vr(vCR)}\nv_lshl_add_u32 {vr(vCR)}, v5, 3, {vr(vCR)}")
    a(f"v_mul_u32_u24 {vr(vTW)}, 72, v2\nv_lshl_add_u32 {vr(vTW)}, v5, 3, {vr(vTW)}\nv_add_u32 {vr(vTW)}, {sXB}, {vr(vTW)}")
    a(f"v_bfe_u32 v2, {vL}, 2, 2\nv_lshl_add_u32 v3, v5, 3, v2")
    a(f"v_bfe_u32 v4, {vL}, 4, 1\nv_lshlrev_b32 v4, 5, v4\nv_and_b32 v6, 3, {vL}\nv_lshl_add_u32 v4, v6, 3, v4")
    a(f"v_lshl_add_u32 v5, v5, 2, v2\nv_mul_u32_u24 v5, 72, v5\nv_add3_u32 {vr(vTR)}, v5, v4, {sXB}")
    a(f"v_lshrrev_b32 v2, 1, v2\nv_lshlrev_b32 v2, 6, v2")
    a(f"v_xor_b32 v6, v4, v2\nv_lshl_add_u32 v6, v3, 7, v6\nv_add_u32 {vr(vWA[0])}, {sWm}, v6")
    a(f"v_add_u32 v6, 56, v4\nv_xor_b32 v6, v6, v2\nv_lshl_add_u32 v6, v3, 7, v6\nv_add_u32 {vr(vWB[0])}, {sWm}, v6")
    a(f"s_lshl_b32 s63, {sW}, 10\nv_lshl_add_u32 v6, v3, 6, v4\nv_add_u32 v6, s63, v6")
    for q in range(1, 4):
        a(f"v_xor_b32 {vr(vWA[q])}, {q*2048}, {vr(vWA[0])}\nv_xor_b32 {vr(vWB[q])}, {q*2048}, {vr(vWB[0])}")
    for x in chunk_dma(1): em(x)
    post = [f"v_xor_b32 {vr(vQR[q])}, {q*1024}, v6\nv_add_u32 {vr(vQR[q])}, {WQB}, {vr(vQR[q])}" for q in range(4)]
    post += [f"v_lshrrev_b32 v2, 2, {vL}\nv_mul_u32_u24 v2, 2688, v2\nv_and_b32 v3, 3, {vL}\nv_lshl_add_u32 {vr(vWQ)}, v3, 4, v2",
             f"s_mul_i32 s3, {sH}, 56\ns_add_u32 {sQo}, {sQo}, s3\ns_mov_b32 {sPERM}, 0x07060302\ns_mov_b32 s74, 0\ns_mov_b32 s75, -1",
             f"v_mov_b32 {vr(FA+3)}, 0\nv_mov_b32 {vr(FB+3)}, 0\nv_mov_b32 {vr(FM+3)}, 0\nv_and_b32 {vr(GATE+1)}, 15, {vL}\nv_lshlrev_b32 {vr(GATE+1)}, 2, {vr(GATE+1)}"]
    post += late_setup()
    a("s_waitcnt lgkmcnt(0)")
    def reads(st):
        c, q = st >> 2, st & 3
        l = [f"ds_read_b64_tr_b16 {vr(WF+8*q+4*hd+2*e,2)}, {vr(va)} offset:{WB+c*8192+e*512}" for hd, va in enumerate((vWA[q], vWB[q])) for e in range(2)]
        return l + [lambda: a(f"ds_read_b128 {ar(4*st,4)}, {vr(vXR[q])} offset:{(c & 3)*4096}", tag=f"r{st}")]
    gld = f"buffer_load_dword {vr(GATE)}, {vr(GATE+1)}, {RDBG}, 0 offen sc1"
    fill = []
    def window(c):
        a.wait(vm=f"c{c}"); a("s_barrier")
        if c in (0, 3, 6): stamp(a, f"p1_c{c}")
        assert not fill
        if c == 5: fill.append(lambda: a(gld, tag="gate"))
        if c < 5: fill.extend(chunk_dma(c + 2))
        else:
            k = 4 if c < 6 else 3
            fill.extend(qdma[:k]); del qdma[:k]
        if c == 1:
            fill.append(f"v_mov_b32 v11, 1\ns_or_b32 s3, {sH}, {sW}\ns_cselect_b32 s50, 0, s50\ns_lshl_b32 s3, {sRB}, 2\ns_mov_b64 exec, 1\nbuffer_store_dword v11, off, {RDBG}, s3 sc1\ns_mov_b64 exec, -1\ns_mov_b32 s50, 256")
    window(0)
    for x in reads(0) + reads(1): em(x)
    for _ in range(3): em(fill.pop(0))
    for st in range(28):
        c, q = st >> 2, st & 3
        if q == 2 and c < 6:
            while fill: em(fill.pop(0))
            window(c + 1)
        rd = reads(st + 2) if st + 2 < 28 else []
        z = "0" if st == 0 else None
        x4 = ar(4*st, 4); wa, wb = vr(WF+8*q, 4), vr(WF+8*q+4, 4)
        l = [mf(vr(ACB,16), wb, x4, z), mf(vr(GR,16), x4, x4, z), mf(vr(ACA,16), wa, x4, z)]
        if q == 0: l = [mf(vr(CSA,16), vr(ONES,4), wa, z), mf(vr(CSB,16), vr(ONES,4), wb, z)] + l
        a.wait(ds=f"r{st}")
        for i, m in enumerate(l):
            a(m)
            for _ in range(2):
                if rd: em(rd.pop(0))
            if fill and (i & 1 or len(l) == 3 and i == 2 and len(fill) > 3): em(fill.pop(0))
            elif post: a(post.pop(0))
        assert not rd
        if st == 24: assert not post, len(post)
        if st == 25:
            a(f"ds_write_b32 {vr(vCW)}, {vr(CSA)}\nds_write_b32 {vr(vCW)}, {vr(CSB)} offset:512")
            a.wait(vm="gate"); a(f"v_cmp_ne_u32 vcc, 1, {vr(GATE)}")
        if st == 26:
            b = Asm()
            b(f"L_gw:\n{SPIN}\n{gld}\ns_waitcnt vmcnt(0)\nv_cmp_ne_u32 vcc, 1, {vr(GATE)}\ns_cbranch_vccnz L_gw\ns_branch L_go")
            stubs.extend(b.L)
            a("s_cbranch_vccnz L_gw\nL_go:")
            while fill: em(fill.pop(0))
            a.mark("wq")
            a("s_waitcnt lgkmcnt(0)\ns_barrier")
            a(f"ds_read_b64 v[2:3], {vr(vCR)}\nds_read_b64 v[4:5], {vr(vCR)} offset:512")
    kvhint = f"s_and_b32 s3, {sRB}, 3\ns_cselect_b32 s14, 0, s14\ns_mov_b64 exec, 1\nbuffer_store_dword {vr(GATE)}, off, {WS}, {sKF} sc1\ns_mov_b64 exec, -1\ns_mov_b32 s14, {1 << 28}"
    H1 = optv("h1m", 1)
    if H1 == 0: a(kvhint)
    a("s_waitcnt lgkmcnt(0)")
    for x in ["v_add_f32 v2, v2, v3", "v_add_f32 v4, v4, v5"] + splitA(FA, "v2", "v8", "v9") + splitA(FB, "v4", "v10", "v11"): a(x)
    stamp(a, "p1_mm")
    a(f"v_mov_b32 v2, {vr(ACB+12)}\nv_mov_b32 v3, {vr(ACB+12)}\ns_mov_b32 vcc_lo, 0xaaaaaaaa\ns_mov_b32 vcc_hi, 0xaaaaaaaa\nv_permlane32_swap_b32 v2, v3\nv_mul_f32 v6, {fhex(-1.0/D)}, v3")
    for t in splitB(FM, "v6", "v8", "v9"): a(t)
    for i in range(2): a(f"v_cndmask_b32 {vr(GR+i)}, {vr(GR+2*i)}, {vr(GR+2*i+1)}, vcc")
    a(mf(vr(ACA,16), vr(FA,4), vr(FM,4)))
    for i in range(2, 8): a(f"v_cndmask_b32 {vr(GR+i)}, {vr(GR+2*i)}, {vr(GR+2*i+1)}, vcc")
    a(mf(vr(ACB,16), vr(FB,4), vr(FM,4)))
    for n, m in ((4, 0xcccccccc), (2, 0xff00ff00), (1, 0xffff0000)):
        a(f"s_mov_b32 vcc_lo, {m}\ns_mov_b32 vcc_hi, {m}")
        for i in range(n): a(f"v_cndmask_b32 {vr(GR+i)}, {vr(GR+2*i)}, {vr(GR+2*i+1)}, vcc")
    a(f"v_mov_b32 v2, {vr(GR)}\ns_mov_b32 vcc_lo, 0xf0f0f0f0\ns_mov_b32 vcc_hi, 0xf0f0f0f0\nv_permlane32_swap_b32 v2, {vr(GR)}\nv_cndmask_b32 v2, v2, {vr(GR)}, vcc")
    a(f"v_mul_f32 v2, {fhex(1.0/D)}, v2\nv_fma_f32 v2, -v6, v6, v2\nv_max_f32 v2, 0, v2\nv_add_f32 v2, {fhex(1e-5)}, v2\nv_rsq_f32 {vr(RS)}, v2")
    def finish(acc, pk):
        for i in range(8): a(f"v_pk_mul_f32 {vr(acc+2*i,2)}, {vr(acc+2*i,2)}, {vr(RS,2)} op_sel_hi:[1,0]")
        for i in range(8): a(f"v_cvt_pk_bf16_f32 {vr(pk+i)}, {vr(acc+2*i)}, {vr(acc+2*i+1)}")
    if H1 == 1: a(kvhint)
    a(f"v_mov_b32 v2, 0x3f80\ns_add_u32 {sT}, {sKVo}, {64*4096}\ns_cmp_ge_u32 {sH}, 8\ns_cbranch_scc1 L_v")
    n0 = a.nvm
    for hd in range(2):
        finish((ACA, ACB)[hd], PK+8*hd)
        a(f"v_cndmask_b32 {vr(PK+8*hd+6)}, {vr(PK+8*hd+6)}, {vr(ONES)}, {MHI}\nv_cndmask_b32 {vr(PK+8*hd+7)}, {vr(PK+8*hd+7)}, v2, {MHI}")
        a(f"v_min_u32 {vr(PK+8*hd)}, -2, {vr(PK+8*hd)}\nv_min_u32 {vr(PK+8*hd+4)}, -2, {vr(PK+8*hd+4)}")
        a(f"buffer_store_dwordx4 {vr(PK+8*hd,4)}, {vL16}, {WS}, {(sKVo, sT)[hd]} offen sc1")
        a(f"buffer_store_dwordx4 {vr(PK+8*hd+4,4)}, {vL16}, {WS}, {(sKVo, sT)[hd]} offen offset:1024 sc1")
    a("s_branch L_q\nL_v:")
    a.nvm = n0
    for hd in range(2):
        finish((ACA, ACB)[hd], PK+8*hd)
        a(f"v_cndmask_b32 {vr(PK+8*hd+6)}, {vr(PK+8*hd+6)}, v2, {MHI}\nv_cndmask_b32 {vr(PK+8*hd+7)}, {vr(PK+8*hd+7)}, {vr(FM+3)}, {MHI}")
        if hd:
            a.wait(ds="tv0")
            a(f"v_min_u32 {vr(PK+16)}, -2, {vr(PK+16)}\nv_min_u32 {vr(PK+20)}, -2, {vr(PK+20)}")
        for i in range(4): a(f"ds_write_b64 {vr(vTW)}, {vr(PK+8*hd+2*i,2)} offset:{hd*4096 + i*16}")
        for j in range(2):
            for e in range(2):
                a(f"ds_read_b64_tr_b16 {vr(PK+16+8*hd+4*j+2*e,2)}, {vr(vTR)} offset:{hd*4096 + (16*j+8*e)*72}")
        a.mark(f"tv{hd}")
    for hd in range(2):
        if hd:
            a.wait(ds="tv1")
            a(f"v_min_u32 {vr(PK+24)}, -2, {vr(PK+24)}\nv_min_u32 {vr(PK+28)}, -2, {vr(PK+28)}")
        a(f"buffer_store_dwordx4 {vr(PK+16+8*hd,4)}, {vL16}, {WS}, {(sKVo, sT)[hd]} offen offset:2048 sc1")
        a(f"buffer_store_dwordx4 {vr(PK+16+8*hd+4,4)}, {vL16}, {WS}, {(sKVo, sT)[hd]} offen offset:3072 sc1")
    a("L_q:")
    if H1 == 2: a(kvhint)
    stamp(a, "p1_kvst")
    a.wait(vm="wq"); a("s_barrier")
    order = [(c, 0) for c in range(7)] + [(c, q) for q in range(1, 4) for c in range(7)]
    NB = 7
    def qrd(i):
        c, q = order[i]
        b = WF + 4*(i % 8)
        a(f"ds_read_b64_tr_b16 {vr(b,2)}, {vr(vQR[q])} offset:{c*4096}\nds_read_b64_tr_b16 {vr(b+2,2)}, {vr(vQR[q])} offset:{c*4096+256}", tag=f"q{i}")
    for i in range(NB - 1): qrd(i)
    a(f"s_mul_i32 s3, {sW}, {14*8*896}\ns_lshl_b32 {sT}, {sDB}, 7\ns_add_u32 {sT}, {sT}, s3")
    wo = [((m0set("s79", n*1024) + "\n" + (f"s_add_u32 {sT}, {sT}, {32*896}\n" if n else "")) if n % 4 == 0 else "") + dmai(vr(vWO[n % 4]), RWO, sT, (n % 4)*1024) for n in range(15)]
    p1ld = f"buffer_load_dword v206, v207, {WS}, 0 offen sc1"
    for i in range(28):
        c, q = order[i]
        a.wait(ds=f"q{i}")
        b = vr(WF + 4*(i % 8), 4)
        if q == 0: a(mf(vr(CSA,16), vr(ONES,4), b, "0" if i == 0 else None))
        a(mf(vr(ACA,16), b, ar(16*c+4*q,4), "0" if i == 0 else None))
        if i + NB - 1 < 28: qrd(i + NB - 1)
        if i < optv("wo1", 8): a(wo.pop(0))
        if i == 10: a(f"ds_write_b32 {vr(vCW)}, {vr(CSA)} offset:1024", tag="csq")
        if i == 13:
            a.wait(ds="csq"); a("s_barrier")
            a(f"ds_read_b64 v[2:3], {vr(vCR)} offset:1024", tag="csr")
        if i == 17:
            a.wait(ds="csr"); a("v_add_f32 v2, v2, v3")
            sp = splitA(FA, "v2", "v8", "v9") + [f"v_mul_f32 {vr(RS)}, {fhex(DH**-0.5 * math.log2(math.e))}, {vr(RS)}"]
        if i in (18, 19, 20):
            for t in sp[3*(i-18):3*(i-17)]: a(t)
        if i == optv("pl1", 24): a(p1ld)
    a(mf(vr(ACA,16), vr(FA,4), vr(FM,4)))
    finish(ACA, Q+24)
    a(f"v_cndmask_b32 {vr(Q+30)}, {vr(Q+30)}, {vr(FM+3)}, {MHI}\nv_cndmask_b32 {vr(Q+31)}, {vr(Q+31)}, {vr(FM+3)}, {MHI}")
    a(f"ds_write_b128 v210, {vr(Q+24,4)}\nds_write_b128 v210, {vr(Q+28,4)} offset:1024")
    stamp(a, "p1_q")
    landed = f"s_mov_b64 exec, 1\nbuffer_store_dword {vr(GATE)}, off, {WS}, {sKF} offset:48 sc1\ns_mov_b64 exec, -1"
    a(f"s_waitcnt vmcnt(0)\nv_cmp_ne_u32 vcc, 1, v206\ns_cbranch_vccz L_flo")
    a(f"{p1ld}\n{landed}\ns_waitcnt vmcnt(1)\nL_fl:\nv_cmp_ne_u32 vcc, 1, v206\ns_cbranch_vccz L_flo")
    a(f"{SPIN}\n{p1ld}\ns_waitcnt vmcnt(0)\ns_branch L_fl\nL_flo:")
    stamp(a, "p1_flag")
    return wo, landed

def p2(a, stubs, wo, landed):
    def kvr(t, off, n): return ar(16*t + off, n) if t < 12 else vr(KVB + 16*(t-12) + off, n)
    def ld(t, part):
        def f():
            if part == 0 and t: a(f"s_add_u32 {sO}, {sO}, 4096")
            a(f"buffer_load_dwordx4 {kvr(t, 4*part, 4)}, {vL16}, {WS}, {sO} offen offset:{part*1024} sc1", tag=f"kv{t}_{part}")
        return f
    z = vr(PZ, 4)
    pz = [f"s_mov_b64 exec, 31\nbuffer_store_dword {vr(PZ)}, {vr(vHI)}, {WS}, 0 offen sc1\ns_mov_b64 exec, -1",
          f"buffer_store_dwordx4 {z}, {vL16}, {WS}, {sOo} offen sc1", f"buffer_store_dwordx4 {z}, {vL16}, {WS}, {sOo} offen offset:1024 sc1",
          f"buffer_store_dword {vr(PZ)}, {vr(vL4)}, {WS3}, {sSo} offen sc1",
          f"buffer_store_dwordx4 {z}, {vHS}, {WS3}, {sHo} offen sc1", f"buffer_store_dwordx4 {z}, {vHS}, {WS3}, {sHo} offen offset:1024 sc1",
          f"buffer_store_dwordx4 {z}, {vL16}, {WS4}, {sUo} offen sc1", f"buffer_store_dwordx4 {z}, {vL16}, {WS4}, {sU2} offen sc1"]
    pz = [(lambda x=x: a(x, tag="poison")) for x in pz]
    side = [f"buffer_load_dwordx4 {vr(XR+4*t,4)}, {vr(XR+4)}, {RX}, {sXR} offen offset:{t*64}" for t in range(2)]
    side += [f"buffer_load_dwordx2 {vr(B1+2*i,2)}, {vr(B1+2)}, {RB1}, {sB1} offen offset:{i*16}" for i in range(2)]
    side += [f"buffer_load_ushort {vr(B2)}, {vr(B2)}, {RB2}, {sB2} offen"]
    pflag = lambda: (a.wait(vm="poison"), a(f"s_mov_b64 exec, 3\nbuffer_store_dword {vr(PZ)}, {vr(vPF)}, {WS}, {sW4} offen offset:16 sc1\ns_mov_b64 exec, -1"))
    cntld = f"buffer_load_dword {vr(CNT)}, {vr(vCN)}, {WS}, {sCN} offen sc1"
    TAIL = 3
    units = [(t, j) for t in range(16-TAIL) for j in range(4)] + [(t, j) for j in range(4) for t in range(16-TAIL, 16)]
    nu = len(units)
    slots = {}
    def put(u, sl, x, who="both", front=False):
        l = slots.setdefault((u, sl), [])
        l.insert(0 if front else len(l), (who, x))
    def lay(u0, items, who, rate=2):
        for i, x in enumerate(items): put(u0 + i//rate, ((1, 3) if rate == 2 else (0, 1, 3))[i % rate], x, who)
        return u0 + -(-len(items) // rate)
    NP0 = optv("np0", 3); K0 = optv("k0", 8)
    tiles = lambda t0, t1: [ld(t, p_) for t in range(t0, t1) for p_ in range(4)]
    early = tiles(NP0, 4) + wo + pz
    ne = min(len(early), 2*K0)
    lay(0, early[:ne], "both"); early = early[ne:]
    kvl = tiles(4, 16); q = []; ex = early + side
    XE = optv("xe", 3)
    while kvl or ex:
        if ex and len(q) >= 4 and (len(q) % XE == 0 or not kvl): q.append(ex.pop(0))
        else: q.append(kvl.pop(0))
    lastp = max([i for i, x in enumerate(q) if x in pz], default=0)
    A3 = optv("a3", 12)
    AEND = lay(lay(K0, q[:A3], "stg"), q[A3:], "stg", 3)
    put(K0 + lastp//2 + 7, 2, pflag, "stg")
    tch = [f"buffer_load_dword v5, {vr(vIT)}, {RW1}, {sI1} offen\ns_add_u32 {sI1}, {sI1}, {128*3584}" for i in range(4)]
    tch += [f"buffer_load_dword v5, {vr(vIT+1)}, {RW2}, {sI2} offen\ns_add_u32 {sI2}, {sI2}, {112*4096}" for i in range(4)]
    IK = optv("ik", -1); u_ = K0; NT = optv("nt", 6); tch = tch[:NT]
    if IK >= 0:
        u_ = lay(K0, tiles(4, 4 + IK), "idle", 3)
        put(u_, 0, tch.pop(0), "idle"); u_ += optv("ip", 6)
    else: IK = 0
    qi = tiles(4 + IK, 6 + IK) + early + tiles(6 + IK, 16) + side
    ue = lay(u_, qi, "idle", 3)
    put(u_ + (8 + len(early))//3 + 6, 2, pflag, "idle")
    for i, x in enumerate(tch): put(min(nu - 2, ue + i*optv("is", 3)), 1, x, "idle")
    b = Asm()
    b(f"L_refkv:\n{SPIN}\ns_lshl2_add_u32 s3, {sH}, {sW}\ns_lshl_b32 s3, s3, 16")
    for t in range(4):
        for p_ in range(4): b(f"buffer_load_dwordx4 {kvr(t, 4*p_, 4)}, {vL16}, {WS}, s3 offen offset:{p_*1024} sc1")
        b("s_add_u32 s3, s3, 4096")
    b("s_waitcnt vmcnt(0)\ns_setpc_b64 s[76:77]")
    stubs.extend(b.L)
    def kvtag(x, t):
        for p_ in range(4): x(f"v_accvgpr_read_b32 v{(2, 3, 4, 10)[p_]}, {ar(16*t + 4*p_)}")
        x("v_max3_u32 v2, v2, v3, v4\nv_max_u32 v2, v2, v10\nv_cmp_eq_u32 vcc, -1, v2")
    def kvpost(t):
        lb = a.lab("kck"); ls = a.lab("krt")
        a(f"s_cbranch_vccnz {ls}\n{lb}:")
        b = Asm(); b(f"{ls}:\ns_call_b64 s[76:77], L_refkv"); kvtag(b, t); b(f"s_cbranch_vccnz {ls}\ns_branch {lb}")
        stubs.extend(b.L)
    for t in range(1, 16):
        uf = min(u for u, (tt, j) in enumerate(units) if tt == t)
        put(uf - 2, 2, lambda t=t: a.wait(vm=f"kv{t}_3"))
        if t < 4:
            put(uf - 2, 2, lambda t=t: kvtag(a, t)); put(uf - 2, 3, lambda t=t: kvpost(t), front=True)
    def spin(name, load, cmp_):
        lb = a.lab(name); ls = a.lab(name + "r")
        a(f"s_cbranch_vccnz {ls}\n{lb}:")
        b = Asm(); b(f"{ls}:\n{SPIN}\n{load}\ns_waitcnt vmcnt(0)\n{cmp_}\ns_cbranch_vccnz {ls}\ns_branch {lb}")
        stubs.extend(b.L)
    fl2 = f"buffer_load_dword v11, {vr(vFL)}, {WS}, 0 offen offset:48 sc1"
    put(K0 - optv("pl2", 4), 0, lambda: a(fl2, tag="fl2"))
    assert (K0 - 1) % 4 != 2
    put(K0 - 1, 2, lambda: (a.wait(vm="fl2"), a("v_cmp_ne_u32 vcc, 1, v11")))
    put(K0 - 1, 3, lambda: spin("f2", fl2, "v_cmp_ne_u32 vcc, 1, v11"), front=True)
    put(optv("cntu", 54), 0, lambda: a(cntld, tag="cnt"), "stg")
    put(optv("cnti", 40), 0, lambda: a(cntld, tag="cnt"), "idle")
    WBLK = [12, 13, 14, 15] + list(range(12))
    RSL = []
    def w1rd(n):
        return [f"ds_read_b64_tr_b16 {ar(16*WBLK[n]+8*k+4*sl+2*e,2)}, {vr(vT1[sl])} offset:{RSL[n]*4096+k*2048+e*512}" for k in range(2) for sl in range(2) for e in range(2)]
    late = []
    LAG = optv("lag", 6)
    free = [0]*6; owner = [None]*6; u0 = optv("b0", AEND)
    adv = f"s_add_u32 {sG}, {sG}, {32*3584}"
    for n in range(16):
        cand = [x for x in range(6) if x < 3 or max(u0, free[x]) + LAG + 1 <= 55]
        sl_ = min(cand, key=lambda x: (max(u0, free[x]), -x))
        u0 = max(u0, free[sl_]); RSL.append(sl_)
        if u0 + 1 >= nu - 1 or n >= optv("w1n", 16):
            def mk(n=n):
                dma_ = lambda slot: [m0set(sAR, slot*4096) + "\n" + adv + "\n" + dmai(vr(vW1[0]), RW1, sG)] + [dmai(vr(vW1[i]), RW1, sG, i*1024) for i in range(1, 4)]
                def rd_(slot):
                    RSL[n] = slot; return w1rd(n)
                return dma_, rd_
            late.append(("d", mk())); u0 = 99
            continue
        if owner[sl_] is not None: put(u0 - 1, 2, (lambda m=owner[sl_]: a.wait(ds=f"w1r{m}")), "stg", front=True)
        owner[sl_] = n
        put(u0, 0, m0set(sAR, sl_*4096), "stg", front=True)
        if n: put(u0, 1, adv, "stg")
        for i in range(4): put(u0 + i//2, 1 + 2*(i & 1), (lambda n=n, i=i: a(dmai(vr(vW1[i]), RW1, sG, i*1024), tag=f"g{n}")), "stg")
        rdi = [lambda n=n: a.wait(vm=f"g{n}")] + [(lambda x=x, n=n: a(x, tag=f"w1r{n}")) for x in w1rd(n)]
        ur = u0 + LAG
        assert n < 4 or ur > 4*(n - 4) + 5
        if ur + 1 < nu - 3:
            put(ur - 1, 3, rdi[0], "stg", front=True)
            for i, x in enumerate(rdi[1:]): put(ur + i//4, 2*((i >> 1) & 1), x, "stg")
            if sl_ >= 3: lastn = n
            free[sl_] = ur + 3
        else:
            late.append(("r", rdi)); free[sl_] = 70 + n
        u0 += 2
    put(56, 3, lambda: a.wait(ds=f"w1r{lastn}"), "stg")
    put(56, 3, "s_barrier")
    for j in range(3):
        for i in range(4):
            uu, sl = ((61, 3) if i == 0 else (62, i - 1)) if j == 2 else (57 + 2*j, i)
            put(uu, sl, f"ds_write_b128 {vr(vIW+j)}, {vr(O+16*j+4*i,4)} offset:{j*4096+i*1024}")
    put(61, 0, lambda: (a.wait(vm="cnt"), a(f"v_cmp_ne_u32 vcc, -1, {vr(CNT)}")))
    put(61, 1, lambda: spin("cn", cntld, f"v_cmp_ne_u32 vcc, -1, {vr(CNT)}"))
    put(nu - 1, 0, "s_waitcnt lgkmcnt(0)\ns_barrier")
    for i in range(12): put(nu - 1, i // 4, f"ds_read_b128 {vr(O+4*i,4)}, {vr(vIW+3)} offset:{INB+i*1024}")

    for x in tiles(0, 1): x()
    a(landed)
    a(f"s_mov_b64 s[20:21], s[12:13]\ns_cmp_eq_u32 {sW}, 0\ns_cselect_b32 s22, s14, 0")
    a("s_waitcnt lgkmcnt(0)\ns_barrier")
    for j in range(3): a(f"ds_read_b128 {vr(Q+8*j,4)}, {vr(Q+8*j+4)}\nds_read_b128 {vr(Q+8*j+4,4)}, {vr(Q+8*j+4)} offset:1024")
    for x in tiles(1, NP0): x()
    a.wait(vm="kv0_3")
    kvtag(a, 0); a("s_waitcnt lgkmcnt(0)"); kvpost(0)
    a(mf(vr(SS,16), kvr(0,0,4), vr(Q,4), "0")); a(mf(vr(SS,16), kvr(0,4,4), vr(Q+4,4)))
    stamp(a, "p2_loop")
    def emit_units(me):
        for u in range(nu):
            t, j = units[u]
            sc, sn = SS + 16*(u & 1), SS + 16*((u+1) & 1)
            def valu(g):
                for who, x in slots.get((u, g), []):
                    if who in ("both", me): x() if callable(x) else a(x)
                for i in range(4): a(f"v_exp_f32 {vr(sc+4*g+i)}, {vr(sc+4*g+i)}")
                for i in range(2): a(f"v_cvt_pk_bf16_f32 {vr(P+2*g+i)}, {vr(sc+4*g+2*i)}, {vr(sc+4*g+2*i+1)}")
            nx = units[u+1] if u + 1 < nu else None
            pv = units[u-1] if u else None
            if "p2st" in OPT and u and (u % 8 == 0 if "tail" not in OPT else u >= 54): stamp(a, f"t{u}")
            if nx: a(mf(vr(sn,16), kvr(nx[0],0,4), vr(Q+8*nx[1],4), "0"))
            valu(0)
            if pv: a(mf(vr(O+16*pv[1],16), kvr(pv[0],12,4), vr(P+4,4)))
            valu(1)
            if nx: a(mf(vr(sn,16), kvr(nx[0],4,4), vr(Q+8*nx[1]+4,4)))
            valu(2)
            a(mf(vr(O+16*j,16), kvr(t,8,4), vr(P,4), None if u >= 4 else "0"))
            valu(3)
    assert all(0 <= u < nu for u, g in slots)
    a("s_cmp_eq_u32 s30, 0\ns_cbranch_scc1 L_idle")
    keep = (a.L, a.nvm, a.nds, dict(a.tags))
    a.L = []
    a(f"L_idle:\ns_mov_b32 s30, {S*F*2}"); emit_units("idle"); a("s_mov_b32 s30, 0\ns_branch L_att_end")
    stubs.extend(a.L)
    a.L, a.nvm, a.nds, a.tags = keep
    emit_units("stg")
    a("L_att_end:")
    a(mf(vr(O+48,16), kvr(15,12,4), vr(P+4,4)))
    stamp(a, "p2_loopend")
    a(f"buffer_load_dword v6, {vr(vL7)}, {WS}, {sP2} offen sc1", tag="h2")
    a("s_waitcnt lgkmcnt(0)")
    for i in range(8): a(f"v_pk_add_f32 {vr(O+2*i,2)}, {vr(O+2*i,2)}, {vr(O+16+2*i,2)}")
    for i in range(8): a(f"v_pk_add_f32 {vr(O+2*i,2)}, {vr(O+2*i,2)}, {vr(O+32+2*i,2)}")
    fin = [f"v_pk_add_f32 {vr(O+48+2*i,2)}, {vr(O+48+2*i,2)}, {vr(O+2*i,2)}" for i in (6, 0, 1, 2, 3, 4, 5, 7)]
    a(fin[0]); a(f"v_mov_b32 v2, {vr(O+48+12)}\nv_mov_b32 v4, {vr(O+48+12)}\nv_mov_b32 v3, {fhex(2.0**60)}"); a(fin[1])
    a(f"v_permlane32_swap_b32 v2, v4\nv_med3_f32 v2, v4, {sLO}, v3\nv_cmp_neq_f32 vcc, v2, v4")
    for x in fin[2:]: a(x)
    a("s_cbranch_vccnz L_safe\nL_safe_done:\nv_rcp_f32 v4, v4\nv_mov_b32 v3, 0")
    safe_path(stubs)
    OP = 176
    for hlf in range(2):
        for i in range(4*hlf, 4*hlf+4): a(f"v_pk_mul_f32 {vr(O+48+2*i,2)}, {vr(O+48+2*i,2)}, v[4:5] op_sel_hi:[1,0]")
        for i in range(4*hlf, 4*hlf+4): a(f"v_cvt_pk_bf16_f32 {vr(OP+i)}, {vr(O+48+2*i)}, {vr(O+48+2*i+1)}")
        if hlf: a(f"v_cndmask_b32 {vr(OP+6)}, {vr(OP+6)}, v3, {MHI}\nv_cndmask_b32 {vr(OP+7)}, {vr(OP+7)}, v3, {MHI}")
        a(f"v_min_u32 {vr(OP+4*hlf)}, -2, {vr(OP+4*hlf)}")
        a(f"buffer_store_dwordx4 {vr(OP+4*hlf,4)}, {vL16}, {WS}, {sOo} offen offset:{1024*hlf} sc1")
    a(hint(sH2) if "h2all" in OPT else hint(sH2).replace(WS, RWQ))
    stamp(a, "p2_end")
    a(f"s_cmp_ge_u32 {sDB}, 7\ns_cbranch_scc1 L_tail")
    b = Asm()
    b(f"L_tail:\ns_mul_i32 s3, {sW}, 448\ns_mul_i32 s56, {sLQ}, 14\ns_add_u32 s3, s3, s56\ns_lshl_b32 s3, s3, 12\ns_sub_u32 s56, {sSB}, {sFB}\ns_lshl_b32 s56, s56, 10\ns_add_u32 s3, s3, s56")
    if "notaildr" not in OPT: b("s_waitcnt vmcnt(0)")
    for i in range(NT - 4, 4 if "notail" not in OPT else 0):
        for k in range(2): b(f"s_add_u32 s56, s3, {(112*i + 6*k)*4096}\nbuffer_load_dword v5, {vr(vIT+1)}, {RW2}, s56 offen")
    b("s_waitcnt vmcnt(0)\ns_branch L_fin")
    stubs.extend(b.L)
    return late, WBLK

def safe_path(stubs):
    b = Asm(); b.uid = 900000
    QS = Q + 24; OO = O + 48; K_ = KVB
    def ldt(n):
        for p_ in range(n): b(f"buffer_load_dwordx4 {vr(K_+4*p_,4)}, {vL16}, {WS}, s54 offen offset:{p_*1024} sc1")
        b("s_add_u32 s54, s54, 4096\ns_waitcnt vmcnt(0)")
        b(mf(vr(SS,16), vr(K_,4), vr(QS,4), "0")); b(mf(vr(SS,16), vr(K_+4,4), vr(QS+4,4)))
    b(f"L_safe:\ns_lshl_b32 s54, {sH}, 18\ns_add_u32 s3, s54, {64*4096}\nv_mov_b32 v2, 0xff800000")
    b("L_safe_max:")
    ldt(2)
    for i in range(8): b(f"v_max3_f32 v2, v2, {vr(SS+2*i)}, {vr(SS+2*i+1)}")
    b("s_cmp_lt_u32 s54, s3\ns_cbranch_scc1 L_safe_max")
    b("v_mov_b32 v4, v2\nv_permlane32_swap_b32 v2, v4\nv_max_f32 v2, v2, v4\nv_sub_f32 v2, 0, v2")
    for t in split3("v2", "v4", "v5"): b(t)
    b(f"s_mov_b32 s54, 0x07060302\nv_perm_b32 v2, v4, v2, s54\nv_lshrrev_b32 v5, 16, v5")
    b(f"v_cndmask_b32 {vr(QS+6)}, {vr(QS+6)}, v2, {MHI}\nv_cndmask_b32 {vr(QS+7)}, {vr(QS+7)}, v5, {MHI}")
    for i in range(16): b(f"v_mov_b32 {vr(OO+i)}, 0")
    b(f"s_lshl_b32 s54, {sH}, 18")
    b("L_safe_pv:")
    ldt(4)
    for i in range(16): b(f"v_exp_f32 {vr(SS+i)}, {vr(SS+i)}")
    for i in range(8): b(f"v_cvt_pk_bf16_f32 {vr(P+i)}, {vr(SS+2*i)}, {vr(SS+2*i+1)}")
    b(mf(vr(OO,16), vr(K_+8,4), vr(P,4))); b(mf(vr(OO,16), vr(K_+12,4), vr(P+4,4)))
    b("s_nop 7\ns_cmp_lt_u32 s54, s3\ns_cbranch_scc1 L_safe_pv")
    b(f"v_mov_b32 v2, {vr(OO+12)}\nv_mov_b32 v4, {vr(OO+12)}\nv_permlane32_swap_b32 v2, v4\ns_branch L_safe_done")
    stubs.extend(b.L)

vW2 = [8, 9, 10, 11]; vT2 = [12, 13]; vT3 = [246, 247]
sG2 = "s54"; sXA = "s61"
RED = 0
def slot_m0(slot): return m0set(sAR, slot*4096) if slot < 6 else m0set(sXA, (slot-6)*4096)
def slot_rd(slot): return (vT2, slot*4096) if slot < 6 else (vT3, (slot-6)*4096)
def w2dma(g, slot):
    if "now2" in OPT: return ["s_nop 0"] * 4
    return [(slot_m0(slot) + f"\ns_add_u32 s59, {sG2}, {g*32*4096}\n" if i == 0 else "") + dmai(vr(vW2[i]), RW2, "s59", i*1024) for i in range(4)]
def w2rd(dst, va, off):
    return [f"ds_read_b64_tr_b16 {dst(4*sl+2*e)}, {vr(va[sl])} offset:{off+e*1024}" for sl in range(2) for e in range(2)]

def tagcheck(a, regs, t="v2"):
    regs = list(regs)
    a(f"v_max3_u32 {t}, {vr(regs[0])}, {vr(regs[1])}, {vr(regs[2])}"); regs = regs[3:]
    while len(regs) >= 2:
        a(f"v_max3_u32 {t}, {t}, {vr(regs[0])}, {vr(regs[1])}"); regs = regs[2:]
    if regs: a(f"v_max_u32 {t}, {t}, {vr(regs[0])}")
    a(f"v_cmp_eq_u32 vcc, -1, {t}")

def p3(a, w1rd, stubs):
    OF = RING; AC = AC0; WFB = [176, 184, 224, 232]
    vT0, vT1_ = 4, 5
    EXO = TRB = 5*4096
    def em(x): x() if callable(x) else a(x)
    T = [it for kind, it in w1rd if kind == "d"]; NL = len(T)
    for g in range(6):
        T.append((lambda slot, g=g: w2dma(g, slot),
                  lambda slot, g=g: sum([w2rd(lambda o, k=k: vr(PARK+16*g+8*k+o, 2), slot_rd(slot)[0], slot_rd(slot)[1] + k*2048) for k in range(2)], [])))
    RES = []
    def res(slot):
        RES.append(slot); return w2dma(5 + len(RES), slot)
    NA = max(optv("na", 2), NL); NB = min(optv("nb", 4), len(T) - NA); NX = len(T) - NA - NB
    assert NX <= 2 and NA <= 5
    asl = [3, 4, 0, 1, 2]; bsl = (asl[NA:] + asl)[:NB]
    def w2setup():
        swz128(a, vr(vW2[0]), 4096)
        for i in range(1, 4): a(f"v_add_u32 {vr(vW2[i])}, {i*(8*4096-1024)}, {vr(vW2[0])}")
        a(f"s_mul_i32 {sG2}, {sW}, {448*4096}\ns_lshl_b32 s3, {sSB}, 7\ns_add_u32 {sG2}, {sG2}, s3")
    for i in range(max(NA, 2) + 1):
        if i == NL: w2setup()
        if i == 2:
            for kind, items in w1rd:
                if kind == "r":
                    for x in items: em(x)
            if NA > 2: a("s_waitcnt lgkmcnt(0)")
        if i < NA:
            for x in T[i][0](asl[i]): a(x, tag="wa")
    a(f"v_bfe_u32 v15, {vL}, 4, 1\nv_lshlrev_b32 v15, 5, v15\nv_and_b32 v5, 3, {vL}\nv_lshl_add_u32 v15, v5, 3, v15\ns_lshl_b32 s3, {sST}, 6\nv_add_u32 v5, s3, v15")
    trbase(a, vr(vT2[0]), 4, "v5")
    a(f"v_add_u32 {vr(vT2[0])}, {sAR}, {vr(vT2[0])}\nv_xor_b32 {vr(vT2[1])}, 64, {vr(vT2[0])}")
    a(f"s_lshl_b32 s3, {sKH}, 5\nv_xor_b32 v15, s3, v15")
    trbase(a, vr(vT0), 4, "v15")
    a(f"s_mul_i32 s3, {sKH}, {224*128}\nv_add_u32 {vr(vT0)}, s3, {vr(vT0)}\nv_xor_b32 {vr(vT1_)}, 64, {vr(vT0)}")
    def rd(k):
        hh, j = k >> 1, k & 1
        for t, va in enumerate((vT0, vT1_)):
            for e in range(2):
                a(f"ds_read_b64_tr_b16 {vr(WFB[k&3]+4*t+2*e,2)}, {vr(va)} offset:{(28*hh+16*j+8*e)*128}")
        a.mark(f"wo{k}")
    if "g2" in OPT: a(f"buffer_load_dword v254, {vr(vL7)}, {WS}, {sP2} offen sc1")
    rd(0); rd(1)
    a(f"v_bfe_u32 v2, {vL}, 2, 3\nv_min_u32 v2, 6, v2\nv_lshlrev_b32 v2, 12, v2\nv_and_b32 v3, 3, {vL}\nv_lshl_add_u32 v15, v3, 2, v2\ns_lshl_b32 s60, {sSB}, 7\ns_add_u32 s60, s60, {HT + 32768}")
    for t in range(2):
        for i in range(2): a(f"v_permlane32_swap_b32 {vr(XR+4*t+i)}, {vr(XR+4*t+2+i)}")
    for t in range(2):
        for i in range(4): a(f"v_lshlrev_b32 {vr(AC+16*t+2*i)}, 16, {vr(XR+4*t+i)}\nv_and_b32 {vr(AC+16*t+2*i+1)}, 0xffff0000, {vr(XR+4*t+i)}")
    for i in range(8): a(f"v_mov_b32 {vr(AC+8+i)}, 0")
    vEW, vER, vSA = XR+3, XR+4, XR+5
    a(f"v_add_u32 {vr(vEW)}, {sAR}, {vL16}\ns_xor_b32 s3, {sW}, 2\ns_mul_i32 s3, s3, {ARENA}\ns_add_u32 s3, s3, {ARENA0}\nv_add_u32 {vr(vER)}, s3, {vL16}")
    a(f"v_lshlrev_b32 {vr(vSA)}, 3, {vL}\ns_lshl_b32 s62, {sTile}, 12\ns_add_u32 s62, s62, {ST}")
    a(f"s_lshl_b32 {sXA}, {sW}, 13\ns_add_u32 {sXA}, {sXA}, {RED + 24576}\ns_sub_u32 s3, {sXA}, {sAR}\nv_add_u32 {vr(vT3[0])}, s3, {vr(vT2[0])}\nv_xor_b32 {vr(vT3[1])}, 64, {vr(vT3[0])}")
    a(f"v_and_b32 v2, 31, {vL}\nv_mul_u32_u24 v2, 72, v2\nv_lshrrev_b32 v3, 5, {vL}\nv_lshl_add_u32 v2, v3, 3, v2\nv_add_u32 {vr(XR)}, {sAR}, v2")
    a(f"v_bfe_u32 v2, {vL}, 2, 2\nv_lshl_add_u32 v2, v3, 3, v2\nv_mul_u32_u24 v2, 72, v2\nv_bfe_u32 v3, {vL}, 4, 1\nv_lshl_add_u32 v2, v3, 5, v2\nv_and_b32 v3, 3, {vL}\nv_lshl_add_u32 v2, v3, 3, v2\nv_add_u32 {vr(XR+1)}, {sAR}, v2")
    a(f"s_lshl1_add_u32 s63, {sTile}, {sKH}\ns_lshl_b32 s63, s63, 14\ns_add_u32 s63, s63, {OB}")
    def old(x, masked=False, fill=[]):
        x("s_mov_b32 s3, s63")
        for k in range(16):
            if k and k % 4 == 0: x("s_add_u32 s3, s3, 4096")
            if masked: x(f"s_mov_b64 exec, -1\nv_cmpx_eq_u32 vcc, -1, {vr(OF+4*k)}")
            x(f"buffer_load_dwordx4 {vr(OF+4*k,4)}, {vL16}, {WS}, s3 offen offset:{(k%4)*1024} sc1", tag=f"o{k}")
            if k >= 6:
                for _ in range(6):
                    if fill: em(fill.pop(0))
        assert not fill
    if "g2" in OPT: gate2(a, "h2", "v6", "v254", vr(vL7), sP2, "h2")
    else: gate(a, "h2", "v6", vr(vL7), sP2, "h2")
    stamp(a, "p3_gate")
    fl = [lambda: rd(2), lambda: a.wait(vm="wa")] + sum([T[i][1](asl[i]) for i in range(NA)], []) + [lambda: a.mark("pr")] + [f"v_mov_b32 {vr(AC+24+i)}, 0" for i in range(8)]
    old(a, fill=fl)
    b = Asm()
    b(f"L_refo:\n{SPIN}\ns_waitcnt vmcnt(0)")
    old(b, True)
    b("s_mov_b64 exec, -1\ns_waitcnt vmcnt(0)\ns_setpc_b64 s[76:77]")
    stubs.extend(b.L)
    def ocheck(g):
        lb = a.lab("ock"); ls = a.lab("ort"); regs = [OF+16*g+4*i for i in range(4)]
        def pre(): a.wait(vm=f"o{4*g+3}"); tagcheck(a, regs)
        def post():
            a(f"s_cbranch_vccnz {ls}\n{lb}:")
            b = Asm(); b(f"{ls}:\ns_call_b64 s[76:77], L_refo"); tagcheck(b, regs); b(f"s_cbranch_vccnz {ls}\ns_branch {lb}")
            stubs.extend(b.L)
        return pre, post
    pre, post = ocheck(0); pre(); a.wait(ds="pr"); post()
    stamp(a, "p3_o")
    fill = sum([T[NA+i][0](bsl[i]) for i in range(NB)], [])
    F0 = min(optv("f0", 16), 16 - len(fill))
    for k in range(16):
        a.wait(ds=f"wo{k}")
        ck = ocheck((k+1)//4) if (k % 4 == 3 and k < 15) else None
        for t in range(2):
            a(mf(vr(AC+16*t,16), vr(WFB[k&3]+4*t,4), vr(OF+4*k,4)))
            if t == 0 and k + 3 < 16: rd(k+3)
            if t == 0 and ck: ck[0]()
            if t == 0 and k == optv("hsk", 10): a(hintn())
            if t == 1 and k >= F0 and fill: a(fill.pop(0), tag="b2")
        if ck: ck[1]()
    assert not fill
    stamp(a, "p3_mm")
    for t in range(2):
        for i in range(2): a(f"ds_write_b128 {vr(vEW)}, {vr(AC+16*t+8+4*i,4)} offset:{EXO+(2*t+i)*1024}")
    a("s_waitcnt lgkmcnt(0)\ns_barrier")
    for i in range(4): a(f"ds_read_b128 {vr(HH+4*i,4)}, {vr(vER)} offset:{EXO+i*1024}", tag=f"ex{i}")
    a(f"buffer_load_dword {vr(XR+2)}, v15, {WS}, s60 offen sc1", tag="hs")
    for i in range(8):
        if i % 2 == 0: a.wait(ds=f"ex{i//2}")
        a(f"v_pk_add_f32 {vr(HH+2*i,2)}, {vr(HH+2*i,2)}, {vr(AC+16*(i//4)+2*(i%4),2)}")
        if i == 1: a(f"v_pk_add_f32 v[2:3], {vr(HH,2)}, {vr(HH+2,2)}\nv_pk_mul_f32 v[4:5], {vr(HH,2)}, {vr(HH,2)}\nv_pk_fma_f32 v[4:5], {vr(HH+2,2)}, {vr(HH+2,2)}, v[4:5]")
        if i > 1: a(f"v_pk_add_f32 v[2:3], v[2:3], {vr(HH+2*i,2)}\nv_pk_fma_f32 v[4:5], {vr(HH+2*i,2)}, {vr(HH+2*i,2)}, v[4:5]")
    a("v_add_f32 v2, v2, v3\nv_add_f32 v3, v4, v5\nv_mov_b32 v4, v2\nv_mov_b32 v5, v3\ns_mov_b32 exec_hi, -1\nv_permlane32_swap_b32 v4, v2\nv_permlane32_swap_b32 v5, v3\nv_pk_add_f32 v[2:3], v[2:3], v[4:5]\nv_min_u32 v3, -2, v3")
    a(f"s_mov_b32 exec_hi, 0\nbuffer_store_dwordx2 v[2:3], {vr(vSA)}, {WS}, {sSo} offen sc1\ns_mov_b32 exec_hi, -1", tag="st")
    stamp(a, "p3_stpub")
    NC1 = max(optv("nc1", 2), NX)
    for i in range(NC1):
        for x in (T[NA+NB+i][0](6+i) if i < NX else res(6+i)): a(x, tag="c1")
    def sld(masked=False):
        for i in range(7):
            if masked: a(f"s_mov_b64 exec, -1\nv_cmpx_eq_u32 vcc, -1, {vr(OF+2*i+1)}")
            a(f"buffer_load_dwordx2 {vr(OF+2*i,2)}, {vr(vSA)}, {WS}, s62 offen offset:{i*512} sc1")
    if NB: a.wait(vm="b2")
    for i in range(NB):
        for x in T[NA+i][1](bsl[i]): a(x)
    a.wait(vm="st")
    gate(a, "hs", vr(XR+2), "v15", "s60", "hs")
    stamp(a, "p3_sgate")
    sld(); a.mark("sl")
    a(f"v_bfe_u32 v2, {vL}, 2, 3\nv_and_b32 v3, 3, {vL}\nv_lshlrev_b32 v3, 2, v3\nv_lshl_add_u32 v15, v2, 7, v3\ns_lshl2_add_u32 s60, {sDB}, {sW}\ns_lshl_b32 s60, s60, 10\ns_add_u32 s60, s60, {HT + 2*32768}")
    if NX:
        a.wait(vm="c1")
        for i in range(NX):
            for x in T[NA+NB+i][1](6+i): a(x)
    pool = [i for i in (0, 1, 2, 3, 4, 6, 7, 5) if i not in RES]
    NC = optv("nc", 0); ND = optv("nd", 3); NE = optv("ne", 3)
    if NC: a("s_waitcnt lgkmcnt(0)")
    for i in range(NC):
        for x in res(pool.pop(0)): a(x)
    d1 = sum([res(pool.pop(0)) for i in range(min(ND, len(pool)))], [])
    d2 = sum([res(pool.pop(0)) for i in range(max(0, len(pool) - NE))], [])
    d3 = sum([res(pool.pop(0)) for i in range(len(pool))], [])
    lp = a.lab("s"); lo = a.lab("so")
    a(f"s_mov_b32 s3, {fhex(1.0 + 1e-5)}\nv_mov_b32 v6, {fhex(1e-10)}")
    a.wait(vm="sl")
    tagcheck(a, [OF+2*i+1 for i in range(7)])
    b = Asm(); keep = a.L; a.L = []; nv = a.nvm
    a(f"{lp}:\n{SPIN}"); sld(True); a("s_mov_b64 exec, -1\ns_waitcnt vmcnt(0)"); tagcheck(a, [OF+2*i+1 for i in range(7)]); a(f"s_cbranch_vccnz {lp}\ns_branch {lo}")
    stubs.extend(a.L); a.L = keep; a.nvm = nv
    a(f"s_cbranch_vccnz {lp}\n{lo}:")
    if optv("h3p", 3) == 3: a(hintn())
    stamp(a, "p3_stats")
    for i, k in ((0, 1), (2, 3), (4, 5), (0, 2), (4, 6), (0, 4)):
        a(f"v_pk_add_f32 {vr(OF+2*i,2)}, {vr(OF+2*i,2)}, {vr(OF+2*k,2)}")
    a(f"v_mov_b32 v4, {vr(OF)}\nv_mov_b32 v5, {vr(OF+1)}\nv_permlane32_swap_b32 v4, {vr(OF)}\nv_permlane32_swap_b32 v5, {vr(OF+1)}\nv_pk_add_f32 v[2:3], {vr(OF,2)}, v[4:5]")
    a(f"v_mul_f32 v2, {fhex(-1.0/D)}, v2\nv_mul_f32 v3, {fhex(1.0/D)}, v3\nv_fma_f32 v3, -v2, v2, v3\nv_max_f32 v3, 0, v3\nv_fma_f32 v3, v3, s3, v6\nv_rsq_f32 v4, v3\nv_mul_f32 v2, v2, v4")
    for t in range(2):
        for i in range(4*t, 4*t+4): a(f"v_pk_fma_f32 {vr(AC+2*i,2)}, {vr(HH+2*i,2)}, v[4:5], v[2:3] op_sel_hi:[1,0,0]")
        for i in range(4*t, 4*t+4): a(f"v_cvt_pk_bf16_f32 {vr(AC+16+i)}, {vr(AC+2*i)}, {vr(AC+2*i+1)}")
        for i in range(2): a(f"ds_write_b64 {vr(XR)}, {vr(AC+16+4*t+2*i,2)} offset:{TRB+t*32+i*16}")
    for j in range(2):
        for e in range(2): a(f"ds_read_b64_tr_b16 {vr(AC1+4*j+2*e,2)}, {vr(XR+1)} offset:{TRB+(16*j+4*e)*72}")
    for j in range(2):
        a(f"s_waitcnt lgkmcnt({2-2*j})\nv_min_u32 {vr(AC1+4*j)}, -2, {vr(AC1+4*j)}")
        a(f"buffer_store_dwordx4 {vr(AC1+4*j,4)}, {vHS}, {WS}, {sHo} offen offset:{j*1024} sc1", tag="hst")
    if optv("h3p", 3) == 4: a(hintn())
    stamp(a, "p3_end")
    return d1, d2, RES, d3

def p45(a, stubs, WBLK, rest):
    vRW = [240, 241, 242]; vRW5 = [241, 240, 242]; vRR = 243; vU = 244; vOUT = 245
    sB = ["s64", "s65", "s66", "s67"]; sOUT = "s68"; sL = "s69"
    d1, rest, RES, d3 = rest
    NDEF = len(d3) // 2
    vH4, vHP = vr(vU), "v3"
    for x in d1: x() if callable(x) else a(x)
    a(f"v_bfe_u32 v2, {vL}, 2, 3\nv_and_b32 v4, 3, {vL}\nv_lshlrev_b32 v4, 2, v4\nv_min_u32 v2, 6, v2\nv_lshl_add_u32 {vH4}, v2, 7, v4")
    a(f"s_lshl3_add_u32 s3, {sDB}, {sW}\ns_lshl_b32 {sB[0]}, s3, 15\ns_add_u32 {sB[0]}, {sB[0]}, {HN}\ns_add_u32 {sB[1]}, {sB[0]}, {128*1024}")
    a(f"s_mul_i32 {sB[2]}, s3, {28*1024}\ns_add_u32 {sB[2]}, {sB[2]}, {UB}\ns_add_u32 {sB[3]}, {sB[2]}, {112*1024}")
    a(f"s_cmp_lt_u32 {sLQ}, 7\ns_cselect_b32 {sB[0]}, {sB[0]}, s14\ns_cselect_b32 {sB[1]}, {sB[1]}, s14")
    a(f"s_cmp_ge_u32 {sFB}, 14\ns_cselect_b32 s3, 256, 0\nv_xor_b32 {vr(vUS)}, s3, {vL16}")
    nks = [32, 32, 28, 28]
    wa = lambda k: 16*WBLK[k >> 1] + 8*(k & 1)
    steps = [(p, k) for p in range(4) for k in range(nks[p])]
    NS = len(steps); DEP = 12; GS = 4
    sLg = ["s71", "s72", "s73"]
    def ld(i):
        p, k = steps[i]
        sl_ = sLg[(i // 4) % 3]
        if k % 4 == 0:
            a(f"s_add_u32 {sl_}, {sB[p]}, {k*1024}")
        a(f"buffer_load_dwordx4 {vr(RING+4*(i%DEP),4)}, {vL16}, {WS}, {sl_} offen offset:{(k%4)*1024} sc1", tag=f"f{i}")
    b = Asm()
    b(f"L_refresh:\n{SPIN}\ns_waitcnt vmcnt(0)")
    for i in range(DEP):
        b(f"v_cmpx_eq_u32 vcc, -1, {vr(RING+4*i)}\nbuffer_load_dwordx4 {vr(RING+4*i,4)}, {vL16}, {WS}, {sLg[i//4]} offen offset:{(i%4)*1024} sc1\ns_mov_b64 exec, -1")
    b("s_waitcnt vmcnt(0)\ns_setpc_b64 s[76:77]")
    stubs.extend(b.L)
    def check(i0):
        idx = list(range(i0, i0+GS))
        lb = a.lab("ck"); ls = a.lab("rt")
        regs = [RING+4*(i % DEP) for i in idx]
        def pre():
            a.wait(vm=f"f{idx[-1]}")
            tagcheck(a, regs)
        def post():
            a(f"s_cbranch_vccnz {ls}\n{lb}:")
            b = Asm()
            b(f"{ls}:\ns_call_b64 s[76:77], L_refresh")
            tagcheck(b, regs)
            b(f"s_cbranch_vccnz {ls}\ns_branch {lb}")
            stubs.extend(b.L)
        return pre, post
    SETUP_HERE = len(a.L)
    for p_ in range(1, 4):
        a(f"s_xor_b32 s3, {sW}, {p_}\ns_mul_i32 s3, s3, 6144\nv_add_u32 {vr(vRW[p_-1])}, s3, {vL16}")
    a(f"s_mul_i32 s3, {sW}, 6144\nv_add_u32 {vr(vRR)}, s3, {vL16}")
    OUTB = ARENA0
    if "oold" in OPT:
        a(f"v_and_b32 v2, 31, {vL}\nv_mul_u32_u24 {vr(vOUT)}, 896, v2\nv_lshrrev_b32 v4, 5, {vL}\nv_lshl_add_u32 {vr(vOUT)}, v4, 4, {vr(vOUT)}")
        a(f"s_mul_i32 {sOUT}, {sTile}, {32*896}\ns_lshl_b32 s3, {sDB}, 7\ns_add_u32 {sOUT}, {sOUT}, s3\ns_lshl_b32 s3, {sKH}, 5\ns_add_u32 {sOUT}, {sOUT}, s3")
    else:
        a(f"v_and_b32 v2, 31, {vL}\nv_mul_u32_u24 {vr(vOUT)}, 144, v2\nv_lshrrev_b32 v4, 5, {vL}\nv_lshl_add_u32 {vr(vOUT)}, v4, 4, {vr(vOUT)}")
        a(f"s_mul_i32 s3, {sST}, {32*144}\ns_lshl_b32 {sOUT}, {sKH}, 5\ns_add_u32 s3, s3, {sOUT}\nv_add_u32 {vr(vOUT)}, s3, {vr(vOUT)}")
        a(f"s_lshl2_add_u32 s3, {sSB}, {sW}\ns_mul_i32 {sOUT}, s3, {16*896}\ns_lshl_b32 s3, {sDB}, 7\ns_add_u32 {sOUT}, {sOUT}, s3")
    a(f"v_lshlrev_b32 {vr(B2)}, 16, {vr(B2)}")
    for i in range(8): a(f"v_pk_add_f32 {vr(HH+2*i,2)}, {vr(HH+2*i,2)}, {vr(B2,2)} op_sel_hi:[1,0]")
    c0 = -2.0*math.sqrt(2.0/math.pi)*math.log2(math.e); c1 = c0*0.044715
    def epilogue(p):
        x = (AC0, AC1)[p & 1]; t = p & 1
        rw = vRW if p < 2 else vRW5
        it = ["s_barrier"] if p else []
        for p_ in range(1, 4):
            for i in range(2): it.append(f"ds_write_b128 {vr(rw[p_-1])}, {vr(x+8*p_+4*i,4)} offset:{RED+(p_-1)*2048+i*1024}")
        if p < 2:
            for i in range(4):
                it += [f"v_lshlrev_b32 v4, 16, {vr(B1+i)}", f"v_and_b32 v5, 0xffff0000, {vr(B1+i)}", f"v_pk_add_f32 {vr(x+2*i,2)}, {vr(x+2*i,2)}, v[4:5]"]
        else:
            it += [f"v_pk_add_f32 {vr(x+2*i,2)}, {vr(x+2*i,2)}, {vr(HH+8*t+2*i,2)}" for i in range(4)]
        it.append("s_waitcnt lgkmcnt(0)\ns_barrier")
        for i in range(6): it.append((lambda i=i: a(f"ds_read_b128 {vr(x+8+4*i,4)}, {vr(vRR)} offset:{RED+i*1024}", tag=f"rr{i}")))
        it.append("GAP")
        for p_ in range(1, 4):
            it.append(lambda p_=p_: a.wait(ds=f"rr{2*p_-1}"))
            it += [f"v_pk_add_f32 {vr(x+2*i,2)}, {vr(x+2*i,2)}, {vr(x+8*p_+2*i,2)}" for i in range(4)]
        if p < 2:
            it += [f"v_pk_mul_f32 {vr(x+8+2*i,2)}, {vr(x+2*i,2)}, {vr(x+2*i,2)}" for i in range(4)]
            it += [f"v_fma_f32 {vr(x+8+i)}, {vr(x+8+i)}, s70, v15" for i in range(8)]
            it += [f"v_pk_mul_f32 {vr(x+8+2*i,2)}, {vr(x+8+2*i,2)}, {vr(x+2*i,2)}" for i in range(4)]
            it += [f"v_exp_f32 {vr(x+8+i)}, {vr(x+8+i)}" for i in range(8)]
            it += [f"v_add_f32 {vr(x+8+i)}, 1.0, {vr(x+8+i)}" for i in range(8)]
            it += [f"v_rcp_f32 {vr(x+8+i)}, {vr(x+8+i)}" for i in range(8)]
            it += [f"v_pk_mul_f32 {vr(x+2*i,2)}, {vr(x+2*i,2)}, {vr(x+8+2*i,2)}" for i in range(4)]
            it += [f"v_cvt_pk_bf16_f32 {vr(x+16+i)}, {vr(x+2*i)}, {vr(x+2*i+1)}" for i in range(4)]
            it.append(f"v_min_u32 {vr(x+16)}, -2, {vr(x+16)}")
            if t: it.append(f"s_add_u32 {sUo}, {sUo}, {112*1024}")
            it.append(f"buffer_store_dwordx4 {vr(x+16,4)}, {vr(vUS)}, {WS4}, {sUo} offen sc1")
            if "h4late" in OPT: it.append(hintn())
        else:
            it += [f"v_cvt_pk_bf16_f32 {vr(x+16+i)}, {vr(x+2*i)}, {vr(x+2*i+1)}" for i in range(4)]
            it += ["s_nop 0", f"v_permlane32_swap_b32 {vr(x+16)}, {vr(x+18)}", f"v_permlane32_swap_b32 {vr(x+17)}, {vr(x+19)}"]
            pol = (" sc1" if "onosc" not in OPT else "") + (" nt" if "ont" in OPT else "")
            if "oold" in OPT:
                it.append(f"buffer_store_dwordx4 {vr(x+16,4)}, {vr(vOUT)}, {ROUT}, {sOUT} offen offset:{t*64}" + pol)
            else:
                it.append(f"ds_write_b128 {vr(vOUT)}, {vr(x+16,4)} offset:{OUTB + t*64}")
                if t == 0:
                    it += [f"v_lshrrev_b32 v4, 3, {vL}", f"v_and_b32 v5, 7, {vL}", "v_mul_u32_u24 v8, 144, v4", "v_mul_u32_u24 v9, 896, v4",
                           "v_lshl_add_u32 v8, v5, 4, v8", "v_lshl_add_u32 v9, v5, 4, v9", f"s_mul_i32 s3, {sW}, {16*144}\nv_add_u32 v8, s3, v8", f"v_add_u32 v10, {8*896}, v9"]
                else:
                    it += ["s_waitcnt lgkmcnt(0)\ns_barrier", f"ds_read_b128 {vr(x,4)}, v8 offset:{OUTB}", f"ds_read_b128 {vr(x+4,4)}, v8 offset:{OUTB + 8*144}",
                           "s_waitcnt lgkmcnt(1)", f"buffer_store_dwordx4 {vr(x,4)}, v9, {ROUT}, {sOUT} offen" + pol,
                           "s_waitcnt lgkmcnt(0)", f"buffer_store_dwordx4 {vr(x+4,4)}, v10, {ROUT}, {sOUT} offen" + pol]
        return it
    def unpk(items):
        import re
        out = []
        for x in items:
            m = re.fullmatch(r"v_pk_(add|mul)_f32 v\[(\d+):\d+\], v\[(\d+):\d+\], v\[(\d+):\d+\]", x) if isinstance(x, str) else None
            if m:
                d, p_, q_ = int(m.group(2)), int(m.group(3)), int(m.group(4))
                out += [f"v_{m.group(1)}_f32 v{d+i}, v{p_+i}, v{q_+i}" for i in range(2)]
            else: out.append(x)
        return out
    def emit(x): x() if callable(x) else a(x)
    def cost(x):
        if callable(x): return 1
        if x.startswith("ds_write"): return 3
        if x.startswith(("v_exp", "v_rcp")): return 2
        return 1
    if optv("h3p", 3) >= 3:
        a.wait(vm="hst")
        if optv("h3p", 3) == 5: a(hintn())
        a(f"buffer_load_dword v6, v15, {WS}, s60 offen sc1", tag="h3")
    gate(a, "h3", "v6", "v15", "s60", "h3")
    stamp(a, "p4_gate")
    for i in range(DEP): ld(i)
    a(f"s_mov_b32 s70, {fhex(c1)}\nv_mov_b32 v15, {fhex(c0)}")
    a(f"s_lshl2_add_u32 s3, {sDB}, {sW}\ns_lshl_b32 s3, s3, 10\ns_add_u32 s60, s3, {HT + 2*32768}")
    for x in rest: a(x)
    a.mark("w2all")
    pre, post = check(0)
    pre(); post()
    stamp(a, "p4_first")
    fill = []; mv = []; UK = optv("uk", 26); nxt = 64
    for i, (p, k) in enumerate(steps):
        if k == 0: assert not fill
        if (p, k) == (2, 0): assert nxt == 64 + DEP
        if k == 1 and p in (1, 3): fill += unpk(epilogue(p-1)) if "unpk" in OPT else epilogue(p-1)
        if p == 1 and k == UK:
            a.wait(vm="h4a")
            a(f"v_cmp_eq_u32 s[74:75], -1, {vHP}\ns_mov_b32 s79, {sB[2]}\ns_cmp_lg_u64 s[74:75], 0\ns_cselect_b32 {sB[2]}, s14, {sB[2]}")
        if p == 2 and k == 0:
            stamp(a, "subB_end")
            lj = a.lab("nj")
            a(f"s_mov_b32 {sB[2]}, s79")
            for x in epilogue(1):
                if x != "GAP": emit(x)
                else:
                    while d3: a(d3.pop(0), tag="w2def")
            a(f"s_cmp_eq_u64 s[74:75], 0\ns_cbranch_scc1 {lj}")
            nv = a.nvm; tg = dict(a.tags)
            a.mark("now"); gate(a, "h4a", vHP, vH4, "s60", "now")
            for q in range(DEP): ld(i + q)
            a("s_waitcnt vmcnt(0)")
            a.nvm = nv; a.tags = tg
            a(f"{lj}:")
            pre, post = check(i); pre(); post()
        if k == 0: stamp(a, f"sub{p}") if p else None
        if "bst" in OPT and p == 1 and k in (4, 8, 12, 16, 20, 24, 28): stamp(a, f"b{k}")
        if p == 1 and k == 14: a.wait(vm="w2all")
        if p == 2 and k == optv("mv2", 4) and NDEF: a.wait(vm="w2def")
        if (p == 1 and 15 <= k < 31 - NDEF) or (p == 2 and 0 <= k - optv("mv2", 4) < NDEF):
            kk = k - 15 if p == 1 else 16 - NDEF + k - optv("mv2", 4)
            mv += w2rd(lambda o: ar(wa(kk)+o, 2), slot_rd(RES[kk >> 1])[0], slot_rd(RES[kk >> 1])[1] + (kk & 1)*2048)
        if p == 2 and k == 12 + 16 - NDEF - 1 and NDEF: a("s_waitcnt lgkmcnt(0)")
        if p == 2 and k == nks[2] - DEP: gate(a, "h4b", vHP, vH4, "s60", "h4b")
        acc = (AC0, AC1)[p & 1]
        ck = check(i+1) if ((i+1) % GS == 0 and i + 1 < NS and steps[i+1] != (2, 0)) else None
        for sl in range(2):
            av = vr(RING+4*(i % DEP), 4)
            if p < 2: A_, B_ = ar(wa(k)+4*sl, 4), av
            else: A_, B_ = av, (vr(PARK+8*k+4*sl, 4) if k < 12 else ar(wa(k-12)+4*sl, 4))
            a(mf(vr(acc+16*sl,16), A_, B_, "0" if k == 0 else None))
            budget = optv("bud", 6)
            if sl == 0 and ck: ck[0](); budget -= 3
            if sl == 1 and i + DEP < NS and not (p == 1 and steps[i+DEP][0] == 2): ld(i + DEP); budget -= 2
            if p == 1 and k >= UK and nxt < 64 + DEP and nxt - DEP <= i - 1 + sl: ld(nxt); nxt += 1; budget -= 2
            if p == 1 and k >= 20 and d3 and (k < UK or "d3late" in OPT): a(d3.pop(0), tag="w2def"); budget -= 2
            if sl == 0 and i in (optv("hua", 26), optv("hub", 60)) and "h4late" not in OPT: a(hintn())
            if sl == 0 and (p, k) == (1, optv("h4ak", UK - 8)): a(f"s_add_u32 s60, s60, 32768\nbuffer_load_dword {vHP}, {vH4}, {WS}, s60 offen sc1", tag="h4a")
            if sl == 0 and (p, k) == (2, optv("h4bk", 6)): a(f"s_add_u32 s60, s60, 32768\nbuffer_load_dword {vHP}, {vH4}, {WS}, s60 offen sc1", tag="h4b")
            for _ in range(2):
                if mv: a(mv.pop(0)); budget -= 1
            while fill and budget > 0:
                if p == 1 and k < optv("ustk", 0) and isinstance(fill[0], str) and fill[0].startswith("buffer_store"): break
                x = fill.pop(0)
                if x == "GAP": break
                emit(x); budget -= cost(x)
        if ck: ck[1]()
    assert not fill and not mv
    stamp(a, "p5_mm")
    for x in epilogue(3):
        if x != "GAP": emit(x)

def build():
    hdr = open("cdna_kernels/" + NAME + ".s.ref").read().split("; Override launch")[0]
    kn = NAME + "_kernel"
    out = hdr + f"; @launch grid=(256,1,1) block=(256,1,1) lds={LDS_TOTAL}\n"
    out += '.amdgcn_target "amdgcn-amd-amdhsa--gfx950"\n'
    a = Asm()
    if PROFILE: a("s_memrealtime s[90:91]\ns_memtime s[94:95]")
    prologue(a, "L_end", "L_last")
    if PROFILE: STAMPS.append("entry")
    stubs = []
    wo, landed = p1(a, stubs)
    w1rd, WBLK = p2(a, stubs, wo, landed)
    b3 = p3(a, w1rd, stubs)
    p45(a, stubs, WBLK, b3)
    stamp(a, "issued")
    if PROFILE and "lite" not in OPT: a("s_waitcnt vmcnt(0)")
    stamp(a, "end")
    if SPINAT:
        a("L_spin:\ns_memrealtime s[88:89]\ns_waitcnt lgkmcnt(0)\ns_sub_u32 s88, s88, s90\ns_cmp_lt_u32 s88, 6000\ns_cbranch_scc1 L_spin")
    a("L_fin:")
    if PROFILE: a("v_writelane_b32 v255, s90, 0\nv_writelane_b32 v255, s94, 32")
    stamp_flush(a)
    a("L_end:\ns_endpgm")
    a.L += stubs
    a("L_last:\ns_endpgm")
    a.hazard_pass(verbose=("-v" in OPT))
    out += kernel_head(kn) + a.text() + kernel_desc(kn, 256, 256)
    return out

if __name__ == "__main__":
    open(sys.argv[1], "w").write(build())
    if PROFILE: open("stamps.txt", "w").write(" ".join(STAMPS))
```

```python
import re, struct

def f2u(x):
    return struct.unpack("<I", struct.pack("<f", x))[0]
def fhex(x):
    return "0x%08x" % f2u(x)

TRANS = ("v_exp_f32", "v_log_f32", "v_rcp_f32", "v_rsq_f32", "v_sqrt_f32", "v_sin_f32", "v_cos_f32", "v_rcp_iflag_f32", "v_exp_f16")

def regs_of(tok):
    tok = tok.strip()
    tok = tok.lstrip("-")
    m = re.fullmatch(r"\|(.*)\|", tok)
    if m: tok = m.group(1)
    m = re.fullmatch(r"abs\((.*)\)", tok)
    if m: tok = m.group(1)
    m = re.fullmatch(r"([vas])(\d+)", tok)
    if m: return {(m.group(1), int(m.group(2)))}
    m = re.fullmatch(r"([vas])\[(\d+):(\d+)\]", tok)
    if m: return {(m.group(1), k) for k in range(int(m.group(2)), int(m.group(3)) + 1)}
    if tok == "vcc": return {("s", "vcc")}
    if tok in ("vcc_lo", "vcc_hi"): return {("s", "vcc")}
    if tok in ("exec", "exec_lo", "exec_hi"): return {("s", "exec")}
    if tok == "m0": return {("s", "m0")}
    return set()

class Ins:
    def __init__(self, text):
        self.text = text
        t = text.split(";")[0].strip()
        self.label = None
        self.op = None
        self.w = set(); self.r = set()
        self.kind = None
        self.target = None
        if t.endswith(":"):
            self.label = t[:-1]; self.kind = "label"; return
        if t.startswith(".") or not t:
            self.kind = "dir"; return
        parts = t.split(None, 1)
        op = self.op = parts[0]
        rest = parts[1] if len(parts) > 1 else ""
        lmods = " ".join(re.findall(r"\b[a-z_]+:\[[^\]]*\]", rest))
        rest = re.sub(r"\s\b[a-z_]+:\[[^\]]*\]", "", rest)
        toks = [x.strip() for x in rest.split(",")] if rest else []
        mods = ""
        if toks:
            sp = toks[-1].split(None, 1)
            toks[-1] = sp[0]
            mods = sp[1] if len(sp) > 1 else ""
        mods = mods + " " + lmods
        self.mods = mods
        R = [regs_of(x) for x in toks]
        u = lambda l: set().union(*l) if l else set()
        self.srcc = set(); self.ab = set(); self.passes = 0
        self.dpp = ("row_" in mods or "quad_perm" in mods or "wave_" in mods or "_dpp" in op)
        if op.startswith("v_mfma"):
            self.kind = "mfma"; self.w = R[0]; self.ab = R[1] | R[2]; self.srcc = R[3]; self.r = self.ab | self.srcc
            self.passes = 8 if "32x32x16" in op else 4 if "16x16x32" in op else 2 if "4x4x4" in op else None
            assert self.passes
        elif op.startswith("v_"):
            self.kind = "valu"
            if op.startswith("v_cmpx"):
                self.w = R[0] | {("s", "exec")}; self.r = u(R[1:])
            elif op.startswith("v_permlane") and "swap" in op:
                self.w = R[0] | R[1]; self.r = R[0] | R[1]
            elif "_co_" in op:
                self.w = R[0] | R[1]; self.r = u(R[2:])
            elif op.startswith("v_nop"):
                pass
            else:
                self.w = R[0]; self.r = u(R[1:])
                if op.startswith(("v_fmac", "v_dot2c", "v_writelane", "v_pk_fmac")) or "UNUSED_PRESERVE" in mods or self.dpp:
                    self.r |= R[0]
                if op.startswith("v_cndmask") and len(toks) == 3:
                    self.r |= {("s", "vcc")}
        elif op.startswith("ds_"):
            self.kind = "ds"
            if op.startswith(("ds_read", "ds_bpermute", "ds_permute", "ds_swizzle")) or "_rtn" in op:
                self.w = R[0]; self.r = u(R[1:])
            else:
                self.r = u(R)
        elif op.startswith(("buffer_", "global_")):
            self.kind = "vmem"
            islds = re.search(r"\blds\b", mods) is not None or "_lds_" in op
            if op.startswith(("buffer_inv", "buffer_wbl2")):
                pass
            elif "load" in op and not islds:
                self.w = R[0]; self.r = u(R[1:])
            else:
                self.r = u(R)
                if islds: self.r |= {("s", "m0")}
                if "atomic" in op and "sc0" in mods: self.w = R[0]
            self.widestore = ("store" in op and ("x3" in op or "x4" in op))
            self.sdata = (R[0] if op.startswith("buffer_") else R[1]) if self.widestore else set()
        elif op.startswith("s_"):
            self.kind = "salu"
            if op.startswith(("s_cbranch", "s_branch")):
                self.kind = "branch"; self.target = toks[0]
                if "vcc" in op: self.r = {("s", "vcc")}
                if "exec" in op: self.r = {("s", "exec")}
            elif op.startswith(("s_cmp", "s_waitcnt", "s_barrier", "s_nop", "s_endpgm", "s_sleep", "s_setprio", "s_bitcmp")):
                self.r = u(R)
            elif "saveexec" in op:
                self.w = R[0] | {("s", "exec")}; self.r = u(R[1:]) | {("s", "exec")}
            else:
                self.w = R[0] if R else set(); self.r = u(R[1:])
        else:
            raise ValueError(text)
    def states(self):
        if self.kind in ("label", "dir"): return 0
        if self.op == "s_nop": return int(self.text.split(";")[0].split()[1], 0) + 1
        return 1

def vg(s): return {x for x in s if x[0] in "va"}
def sg(s): return {x for x in s if x[0] == "s"}

def need(p, c):
    n = 0
    if p.kind == "valu":
        isdl = p.op.startswith("v_dot")
        if c.kind == "mfma" and vg(p.w) & c.r: n = max(n, 3 if isdl else 2)
        if c.kind == "mfma" and ("s", "exec") in p.w: n = max(n, 4)
        if c.kind == "valu":
            if p.op.startswith(TRANS) and vg(p.w) & (c.r) and not c.op.startswith(TRANS): n = max(n, 1)
            if p.op.startswith(TRANS) and vg(p.w) & (c.r): n = max(n, 1)
            if c.op.startswith("v_permlane") and vg(p.w) & c.r: n = max(n, 2)
            if c.dpp and vg(p.w) & c.r: n = max(n, 2)
            if c.dpp and ("s", "exec") in p.w: n = max(n, 5)
            if c.op.startswith(("v_readlane", "v_readfirstlane")) and vg(p.w) & c.r: n = max(n, 1)
            if sg(p.w) & c.r:
                n = max(n, 4 if c.op.startswith(("v_readlane", "v_writelane", "v_div_fmas")) else 2)
            if ("s", "exec") in p.w and c.op.startswith(("v_readlane", "v_readfirstlane", "v_writelane", "v_permlane")): n = max(n, 4)
            if ("sdwa" in p.op or ("op_sel" in p.mods and not p.op.startswith("v_pk_"))) and vg(p.w) & (c.r | c.w): n = max(n, 1)
            if isdl and vg(p.w) & (c.r | c.w):
                if c.op != p.op: n = max(n, 3)
                else:
                    toks = [x.strip() for x in c.text.split(";")[0].split(None, 1)[1].split(",")]
                    ab = regs_of(toks[1]) | regs_of(toks[2].split()[0])
                    if vg(p.w) & ab: n = max(n, 3)
        if isdl and c.kind in ("ds", "vmem") and vg(p.w) & (c.r | c.w): n = max(n, 3)
        if c.kind == "vmem" and sg(p.w) & c.r: n = max(n, 5)
        if c.kind == "branch" and sg(p.w) & c.r: n = max(n, 5)
        if c.kind == "salu" and sg(p.w) & c.r: n = max(n, 2)
    if p.kind == "salu":
        if ("s", "m0") in p.w and c.kind in ("vmem", "ds") and ("s", "m0") in c.r: n = max(n, 1)
    if p.kind == "vmem" and getattr(p, "widestore", False):
        if p.sdata & c.w: n = max(n, 2 if c.kind in ("valu", "mfma") else 1)
    if p.kind == "mfma":
        big = {2: 5, 4: 8, 8: 12}[p.passes]
        if c.kind == "mfma":
            if p.w & c.ab: n = max(n, big)
            if p.w & c.srcc:
                if p.w == c.srcc and p.passes == c.passes: n = max(n, 2 if p.passes == 2 else 0)
                else: n = max(n, max(4, big - 2))
            elif p.w & c.w:
                n = max(n, 0 if p.passes == c.passes and p.w == c.w else big - 2)
        elif c.kind in ("valu", "ds", "vmem"):
            if p.w & (c.r | c.w): n = max(n, big)
            if c.kind == "valu" and p.srcc & c.w: n = max(n, {2: 1, 4: 3, 8: 7}[p.passes])
    return n

class Asm:
    def __init__(self):
        self.L = []
        self.uid = 0
        self.nvm = 0; self.nds = 0
        self.tags = {}
        self.dvm = -1; self.dds = -1
        self.smart = False
    def __call__(self, text, tag=None):
        for ln in text.split("\n"):
            ln = ln.strip()
            if ln:
                x = Ins(ln)
                self.L.append(x)
                if x.kind == "vmem": self.nvm += 1
                if x.kind == "ds": self.nds += 1
        if tag is not None: self.mark(tag)
    def mark(self, tag):
        self.tags[tag] = (self.nvm, self.nds)
    def wait(self, vm=None, ds=None):
        t = []
        if vm is not None and not (self.smart and self.tags[vm][0] <= self.dvm):
            n = self.nvm - self.tags[vm][0]; assert 0 <= n
            if n <= 63: t.append(f"vmcnt({n})")
            self.dvm = max(self.dvm, self.tags[vm][0])
        if ds is not None and not (self.smart and self.tags[ds][1] <= self.dds):
            n = self.nds - self.tags[ds][1]; assert 0 <= n
            t.append(f"lgkmcnt({min(n, 15)})")
            self.dds = max(self.dds, self.tags[ds][1])
        if not t: return
        if self.smart and self.L and self.L[-1].op == "s_waitcnt" and len(t) == 1 and t[0][:2] not in self.L[-1].text.split(None, 1)[1]:
            old = self.L.pop().text.split(None, 1)[1]
            t = sorted([old] + t, reverse=True)
        self("s_waitcnt " + " ".join(t))
    def lab(self, base):
        self.uid += 1
        return f"L_{base}_{self.uid}"
    def hazard_pass(self, verbose=False):
        MAXN = 12
        inserted = 0
        changed = True
        while changed:
            changed = False
            L = self.L
            labels = {x.label: i for i, x in enumerate(L) if x.kind == "label"}
            srcs = {}
            for i, x in enumerate(L):
                if x.kind == "branch": srcs.setdefault(labels[x.target], []).append(i)
            out = []
            fix = {}
            for i, c in enumerate(L):
                if c.kind in ("label", "dir"): continue
                worst = 0
                stack = [(i - 1, 0)]
                seen = {}
                while stack:
                    j, d = stack.pop()
                    if j < 0 or d >= MAXN: continue
                    if seen.get(j, 99) <= d: continue
                    seen[j] = d
                    p = L[j]
                    if p.kind == "label":
                        for b in srcs.get(j, []): stack.append((b, d))
                        k = j - 1
                        while k >= 0 and L[k].kind == "dir": k -= 1
                        if k >= 0 and not (L[k].op in ("s_branch", "s_endpgm", "s_setpc_b64")): stack.append((j - 1, d))
                        continue
                    if p.kind == "dir":
                        stack.append((j - 1, d)); continue
                    n = need(p, c)
                    if n - d > worst: worst = n - d; why = p
                    stack.append((j - 1, d + p.states() + fix.get(j, 0)))
                if worst > 0:
                    fix[i] = worst
                    if verbose: print(f"; hazard: +{worst} before '{c.text}' after '{why.text}'")
            if fix:
                for i, c in enumerate(L):
                    if i in fix:
                        out.append(Ins(f"s_nop {fix[i]-1}")); inserted += fix[i]
                    out.append(c)
                self.L = out
                changed = True
        return inserted
    def text(self):
        o = []
        for x in self.L:
            o.append(x.text if x.kind in ("label", "dir") else "  " + x.text)
        return "\n".join(o) + "\n"

def kernel_head(name):
    return f".text\n.globl {name}\n.p2align 8\n.type {name},@function\n{name}:\n"
def kernel_desc(name, vgpr, agpr, sgpr=102):
    acc = (vgpr + 3) // 4 * 4
    return f""".section .rodata,"a"
.p2align 6
.amdhsa_kernel {name}
  .amdhsa_next_free_vgpr {acc + agpr if agpr else vgpr}
  .amdhsa_next_free_sgpr {sgpr}
  .amdhsa_accum_offset {acc}
  .amdhsa_group_segment_fixed_size 0
  .amdhsa_kernarg_size 88
  .amdhsa_user_sgpr_count 2
  .amdhsa_user_sgpr_kernarg_segment_ptr 1
  .amdhsa_system_sgpr_workgroup_id_x 1
.end_amdhsa_kernel
"""
```

```python
import sys, math
from g import *

NAME = "sequential_preLN__softmax_full_mha__mixer_token_mlp__prompt"
S, D, H, DH, F = 2048, 448, 16, 28, 1792
OPT = set(sys.argv[2:])
def optv(name, dflt):
    for o in OPT:
        if o.startswith(name + "="): return int(o.split("=")[1])
    return dflt
KV   = 0x0000000
OB   = 0x0600000
ST   = 0x0800000
FL   = 0x0880000
HT   = 0x08A0000
HN   = 0x0900000
UB   = 0x0B00000
HB   = 0x0D00000
PROF = 0x1200000

sAR, sG, sH2 = "s0", "s1", "s2"
sW, sRB, sH, sDB, sSB, sFB, sST, sKH = "s4", "s5", "s6", "s7", "s8", "s9", "s10", "s11"
WS, RX, RWQ, RWO, RW1, RW2, RB1, RB2, ROUT, RDBG = ("s[12:15]", "s[16:19]", "s[20:23]", "s[24:27]", "s[28:31]", "s[32:35]", "s[36:39]", "s[40:43]", "s[44:47]", "s[48:51]")
sTile, sLQ, sH3 = "s52", "s53", "s57"
sO, sXR, sB1, sP2, sB2, sCN, sI1, sI2, sLO, sKF = "s64", "s65", "s66", "s67", "s68", "s69", "s70", "s71", "s72", "s73"
MHI = "s[74:75]"; sU2 = "s78"; WS3, WS4 = "s[80:83]", "s[84:87]"
sOo, sSo, sHo, sUo, sW4 = "s97", "s98", "s99", "s100", "s101"
vL = "v1"; vL16 = "v7"; vHS = "v14"
LDS_TOTAL = 163840
ARENA0, ARENA, INB = 59392, 24576, 12288
Q, O, SS, P, KVB = 16, 48, 112, 144, 152
PARK, RING, AC1, AC0, HH = 16, 112, 160, 192, 224
vWO = [212, 213, 214, 215]; vW1 = [216, 217, 218, 219]; vT1 = [220, 221]; vIT = 222
PZ, vL4, vCN, vHI, vL7, CNT, vPF, vIW = 224, 228, 229, 230, 231, 232, 233, 236
XR, B1, B2, vFL, vUS = 240, 248, 252, 253, 254
TBLK = [8, 9, 10, 11, 0, 1, 2, 3, 4, 5, 6, 7]
def kvr(t, off, n): return ar(16*TBLK[t] + off, n) if t < 12 else vr(KVB + 16*(t-12) + off, n)
def kvld(t, part): return f"global_load_dwordx4 {kvr(t, 4*part, 4)}, {vL16}, s[54:55] offset:{(t & 1)*4096 + part*1024 - 4096} sc1"
QX = ARENA0 + 3*ARENA + INB

def vr(b, n=1): return f"v{b}" if n == 1 else f"v[{b}:{b+n-1}]"
def ar(b, n=1): return f"a{b}" if n == 1 else f"a[{b}:{b+n-1}]"
def mf(d, A, B, C=None): return f"v_mfma_f32_32x32x16_bf16 {d}, {A}, {B}, {d if C is None else C}"

def m4(d, A, B, C=None): return f"v_mfma_f32_4x4x4_16b_bf16 {vr(d,4)}, {A}, {B}, {vr(d,4) if C is None else C}"

PROFILE = "prof" in OPT
STAMPS = []
SPINAT = [o[5:] for o in OPT if o.startswith("spin:")]
def stamp(a, name):
    if name in SPINAT: a("s_memrealtime s[90:91]\ns_waitcnt lgkmcnt(0)")
    if not PROFILE: return
    if "p2st" in OPT and name[:2] in ("p1", "su", "p5", "is"): return
    if "post" in OPT and name[:2] in ("p1", "st"): return
    if "pre" in OPT and name[:2] not in ("p1", "st", "p2", "en"): return
    if "bst" in OPT and name[:2] in ("p1", "st", "p2", "p3") and name not in ("p2_loop", "p2_end", "p3_end"): return
    if "lite" in OPT and name not in ("p1_kvst", "p2_loop", "p2_end", "p3_stpub", "p3_end", "p4_first", "sub2", "end"): return
    if name not in STAMPS: STAMPS.append(name)
    i = STAMPS.index(name); assert i < 32
    a(f"s_memrealtime s[88:89]\ns_memtime s[92:93]\ns_waitcnt lgkmcnt(0)\nv_writelane_b32 v255, s88, {i}\n" + ("s_sub_u32 s92, 0x100000, s96\n" if "cnt" in OPT else "") + f"v_writelane_b32 v255, s92, {32+i}")
def hint(sreg, off=0):
    return f"s_mov_b64 exec, 1\nbuffer_store_dword {vL}, off, {RWQ}, {sreg} sc1\ns_mov_b64 exec, -1"
def hintn():
    return hint(sH3) + f"\ns_add_u32 {sH3}, {sH3}, 32768"
def gate(a, name, vdst, vaddr, soff, tag):
    lp = a.lab(name); lo = a.lab(name + "o")
    a.wait(vm=tag)
    a(f"{lp}:\nv_cmp_eq_u32 vcc, -1, {vdst}\ns_cbranch_vccz {lo}")
    nv = a.nvm
    a(f"{SPIN}\nbuffer_load_dword {vdst}, {vaddr}, {WS}, {soff} offen sc1\ns_waitcnt vmcnt(0)\ns_branch {lp}\n{lo}:")
    a.nvm = nv
def gate2(a, name, va, vb, vaddr, soff, tag):
    lp = a.lab(name); lo = a.lab(name + "o")
    ld = lambda v: f"buffer_load_dword {v}, {vaddr}, {WS}, {soff} offen sc1"
    a.wait(vm=tag)
    nv = a.nvm
    a(f"{lp}:\nv_cmp_eq_u32 vcc, -1, {va}\ns_cbranch_vccz {lo}\n{ld(va)}\ns_waitcnt vmcnt(1)\nv_cmp_eq_u32 vcc, -1, {vb}\ns_cbranch_vccz {lo}")
    a(f"{SPIN}\n{ld(vb)}\ns_waitcnt vmcnt(1)\ns_branch {lp}\n{lo}:")
    a.nvm = nv
def stamp_flush(a, lo=0):
    if not PROFILE: return
    hi = len(STAMPS)
    mask = ((1 << hi) - 1) & ~((1 << lo) - 1)
    a(f"s_lshl2_add_u32 s3, s91, {sW}\ns_lshl_b32 s3, s3, 8\ns_add_u32 s3, s3, {PROF}\nv_lshlrev_b32 v2, 2, {vL}")
    a(f"s_mov_b32 exec_lo, {mask}\ns_mov_b32 exec_hi, {mask}\nbuffer_store_dword v255, v2, {WS}, s3 offen sc1\ns_mov_b64 exec, -1")
def show_prof(acc):
    import numpy as np
    names = open("stamps.txt").read().split()
    for r, p in enumerate(acc):
        if r < 5: continue
        fill = (r + 1) * 0x01010101
        t0 = p[:, :, 0].min()
        print("run", r)
        import os
        for nm in os.environ.get("SHOW", "").split():
            k = names.index(nm)
            print(nm, "by [xcd][loc] (wave0), 10ns")
            print((p[:, 0, k] - t0).reshape(32, 8).T)
        for i, n in enumerate(names):
            v = p[:, :, i]; ok = (v != fill) & (v != 0); v = v[ok] - t0
            if v.size == 0: continue
            ex = ""
            if i and not n.endswith("entry"):
                ok2 = ok & (p[:, :, i-1] != fill) & (p[:, :, i-1] != 0)
                if ok2.any():
                    dc = ((p[:, :, 32+i] - p[:, :, 31+i]) & 0xffffffff)[ok2]; dt = (p[:, :, i] - p[:, :, i-1])[ok2]
                    ex = f" dcyc med {np.median(dc):7.0f} max {dc.max():7.0f}  GHz {dc.sum()/max(1,dt.sum())/10:5.2f}"
            print(f"  {n:12s} min {v.min()/100:7.2f} med {np.median(v)/100:7.2f} max {v.max()/100:7.2f}  n={v.size}{ex}")

SPIN = "s_sub_u32 s96, s96, 1\ns_cbranch_scc1 L_end" + (f"\ns_sleep {optv('slp', 0)}" if optv('slp', 0) else "")
def m0set(sg_, c):
    return f"s_mov_b32 m0, {c}" if sg_ is None else f"s_add_u32 m0, {sg_}, {c}"
def dmai(vaddr, srd_, soff, off=0):
    return f"buffer_load_dwordx4 {vaddr}, {srd_}, {soff} offen" + (f" offset:{off}" if off else "") + " lds"

def swz128(a, dst, stride, t1="v2", t2="v3"):
    a(f"v_lshrrev_b32 {t1}, 3, {vL}\nv_mul_u32_u24 {dst}, {stride}, {t1}")
    a(f"v_lshrrev_b32 {t1}, 2, {vL}\nv_and_b32 {t1}, 4, {t1}\nv_and_b32 {t2}, 7, {vL}\nv_xor_b32 {t1}, {t1}, {t2}")
    a(f"v_lshl_add_u32 {dst}, {t1}, 4, {dst}")

def trbase(a, dst, hfmul, col, t1="v2", t2="v3", sw=6):
    a(f"v_bfe_u32 {t1}, {vL}, 2, 2\nv_lshrrev_b32 {t2}, 5, {vL}\nv_lshl_add_u32 {t2}, {t2}, {int(math.log2(hfmul))}, {t1}")
    a(f"v_lshrrev_b32 {t1}, 1, {t1}\nv_lshlrev_b32 {t1}, {sw}, {t1}\nv_xor_b32 {t1}, {t1}, {col}\nv_lshl_add_u32 {dst}, {t2}, 7, {t1}")

def xhalf_sum(a, v, t):
    a(f"v_mov_b32 {t}, {v}\nv_permlane32_swap_b32 {t}, {v}\nv_add_f32 {v}, {t}, {v}")

def weave(a, main, fill, start=0, per=1):
    fill = list(fill)
    def em(x): x() if callable(x) else a(x)
    for i, m in enumerate(main):
        em(m)
        if i >= start:
            for _ in range(per):
                if fill: em(fill.pop(0))
    for x in fill: em(x)

def split3(x, r1, r2):
    return [f"v_and_b32 {r1}, 0xffff0000, {x}", f"v_sub_f32 {r1}, {x}, {r1}", f"v_and_b32 {r2}, 0xffff0000, {r1}", f"v_sub_f32 {r2}, {r1}, {r2}"]
sPERM = "s62"
def splitA(dst, x, r1, r2):
    return split3(x, r1, r2) + [f"v_perm_b32 {vr(dst)}, {x}, {x}, {sPERM}", f"v_perm_b32 {vr(dst+1)}, {r1}, {r1}, {sPERM}", f"v_perm_b32 {vr(dst+2)}, {r2}, {x}, {sPERM}"]
def splitB(dst, x, r1, r2):
    return split3(x, r1, r2) + [f"v_perm_b32 {vr(dst)}, {r1}, {x}, {sPERM}", f"v_perm_b32 {vr(dst+1)}, {r1}, {x}, {sPERM}", f"v_perm_b32 {vr(dst+2)}, {x}, {r2}, {sPERM}"]

SRDS = {"ws": (12, 84, 1 << 28), "x": (16, 64, S*D*2), "wq": (20, 66, D*3*D*2), "wo": (24, 68, D*D*2),
        "w1": (28, 72, S*F*2), "w2": (32, 76, S*F*2), "b1": (36, 74, F*2), "b2": (40, 78, S*2), "out": (44, 80, S*D*2), "dbg": (48, 82, 256)}
def srd(a, n):
    b, p, sz = SRDS[n]
    a(f"s_mov_b64 s[{b}:{b+1}], s[{p}:{p+1}]\ns_mov_b32 s{b+2}, {sz}\ns_mov_b32 s{b+3}, 0x20000")

def prologue(a, endlab, codelab):
    a(f"s_cmp_ge_u32 s2, 256\ns_cbranch_scc1 {endlab}")
    a("s_load_dwordx16 s[64:79], s[0:1], 0\ns_load_dwordx4 s[80:83], s[0:1], 64\ns_load_dwordx2 s[84:85], s[0:1], 80")
    a(f"s_lshr_b32 s57, s2, 3\ns_lshl_b32 s3, s57, 11\nv_lshrrev_b32 v9, 4, v0\nv_lshl_add_u32 v9, v9, 7, s3")
    a(f"s_getpc_b64 s[62:63]\nL_pc:\nv_min_u32 v9, {codelab}-L_pc-4, v9\nglobal_load_dword v10, v9, s[62:63]")
    a(f"v_lshrrev_b32 v2, 6, v0\nv_and_b32 {vL}, 63, v0\nv_readfirstlane_b32 {sW}, v2\nv_lshlrev_b32 {vL16}, 4, {vL}")
    a(f"s_cmp_ge_u32 {sW}, 2\ns_cbranch_scc1 L_et")
    a("v_lshrrev_b32 v2, 1, v0\nv_min_u32 v3, 55, v2\nv_min_u32 v2, 36, v2\ns_mul_i32 s3, s2, 56\nv_add_lshl_u32 v3, v3, s3, 7\ns_mul_i32 s3, s2, 37\nv_add_u32 v2, s3, v2\nv_min_u32 v2, 9407, v2\nv_lshlrev_b32 v2, 7, v2")
    a("v_lshrrev_b32 v4, 3, v0\ns_lshl_b32 s3, s2, 4\nv_add_u32 v4, s3, v4\nv_min_u32 v4, 3135, v4\nv_lshlrev_b32 v4, 7, v4")
    a("v_lshlrev_b32 v5, 2, v0\nv_and_b32 v5, 0x180, v5\ns_and_b32 s3, s2, 7\ns_lshl_b32 s3, s3, 9\nv_add_u32 v5, s3, v5\nv_min_u32 v6, 3456, v5")
    a("s_waitcnt lgkmcnt(0)\nglobal_load_dword v10, v3, s[64:65]\nglobal_load_dword v10, v2, s[66:67]\nglobal_load_dword v10, v4, s[68:69]\nglobal_load_dword v10, v6, s[74:75]\nglobal_load_dword v10, v5, s[78:79]")
    a("s_branch L_et\n.p2align 12\nL_et:" if TOUR else "L_et:")
    if PROFILE: a("v_mov_b32 v255, 0")
    a(f"s_and_b32 s56, s2, 7\ns_and_b32 s58, s57, 3\ns_lshr_b32 {sLQ}, s57, 2")
    a(f"s_lshr_b32 s3, s56, 1\ns_lshl2_add_u32 {sH}, s3, s58")
    a(f"s_and_b32 s3, s56, 1\ns_lshl3_add_u32 {sRB}, s3, {sLQ}")
    a(f"s_lshr_b32 s3, s56, 2\ns_lshl2_add_u32 {sDB}, s3, s58")
    if "nobal" not in OPT: a(f"s_and_b32 s3, {sLQ}, 1\ns_lshl_b32 s3, s3, 2\ns_cmp_eq_u32 s58, 3\ns_cselect_b32 s3, s3, 0\ns_xor_b32 {sDB}, {sDB}, s3")

TOUR = "notour" not in OPT
def tour(a, r):
    if not TOUR: return
    a(f"s_mov_b64 exec, 0\ns_cmp_eq_u32 {sW}, 1\ns_cbranch_scc1 L_pad{4*r+1}\ns_cmp_eq_u32 {sW}, 2\ns_cbranch_scc1 L_pad{4*r+2}\ns_cmp_eq_u32 {sW}, 3\ns_cbranch_scc1 L_pad{4*r+3}\ns_branch L_pad{4*r}\nL_tour{r}:\ns_mov_b64 exec, -1")
def add_pads(a, kn):
    import subprocess, re, os, tempfile
    d = tempfile.mkdtemp()
    open(d + "/p.s", "w").write('.amdgcn_target "amdgcn-amd-amdhsa--gfx950"\n' + kernel_head(kn) + a.text())
    subprocess.check_call(["clang", "-x", "assembler", "-target", "amdgcn-amd-amdhsa", "-mcpu=gfx950", "-c", d + "/p.s", "-o", d + "/p.o"])
    o = subprocess.check_output(["llvm-objdump", "-d", "--mcpu=gfx950", d + "/p.o"]).decode()
    addrs = [int(m, 16) for m in re.findall(r"// ([0-9A-F]{12}):", o)]
    addrs = [x for x in addrs if x >= 4096]
    i0 = next(i for i, x in enumerate(a.L) if x.label == "L_et")
    idx = [i for i in range(i0, len(a.L)) if a.L[i].kind not in ("label", "dir")]
    assert len(idx) == len(addrs), (len(idx), len(addrs))
    stop = next(i for i, x in enumerate(a.L) if x.label == "L_fin")
    mid = next(i for i, x in enumerate(a.L) if x.label == "L_tour1")
    pads = []; shift = 0; page = 2
    forced = set()
    bad = set(); z = False
    for i, x in enumerate(a.L):
        if z: bad.add(i)
        if ("s", "exec") in x.w: z = x.text.replace(" ", "") == "s_mov_b64exec,0"
    n = 0
    while n < len(idx) and idx[n] < stop:
        i = idx[n]; ad = addrs[n] + shift
        if i - 1 in forced:
            pads.append(i); shift += 4
            if ad >= page*4096: page += 1
        elif ad >= page*4096:
            cand = [m for m in range(n, n + 16) if addrs[m] + shift <= page*4096 + 56 and idx[m] - 1 not in forced and idx[m] not in bad]
            best = next((m for m in cand if a.L[idx[m]-1].kind == "mfma" and a.L[idx[m]].kind == "valu"), cand[0])
            pads.append(idx[best]); shift += 4; page += 1; n = best
        n += 1
    assert not any((x.op or "").startswith("v_cmpx") for x in a.L[:stop])
    rounds = [[i for i in pads if i < mid], [i for i in pads if i > mid]]
    name = lambda r, k: f"L_pad{4*r+k}" if k < 4 else f"L_padx{r}_{k}"
    out = []
    for i, x in enumerate(a.L):
        if x.label and re.fullmatch(r"L_pad\d+", x.label): continue
        for r in range(2):
            if x.label == f"L_tour{r}": out += [Ins(f"L_pad{4*r+k}:") for k in range(len(rounds[r]), 4)]
            if i in rounds[r]:
                k = rounds[r].index(i)
                out += [Ins(name(r, k) + ":"), Ins("s_cbranch_execz " + (name(r, k+4) if k + 4 < len(rounds[r]) else f"L_tour{r}"))]
        out.append(x)
    a.L = out
    z = False
    for x in a.L:
        assert not (z and x.op == "s_cbranch_execz")
        if ("s", "exec") in x.w: z = x.text.replace(" ", "") == "s_mov_b64exec,0"

class Weaver:
    def __init__(self, a, items, gap):
        self.a, self.items, self.gap, self.n = a, list(items), gap, 10**6
        self.kick()
    def kick(self):
        if self.items and self.n >= self.gap:
            x = self.items.pop(0); x() if callable(x) else self.a(x); self.n = 0
    def __call__(self, t, tag=None):
        self.a(t, tag); self.n += t.count("\n") + 1; self.kick()
    def flush(self):
        while self.items: self.n = 10**6; self.kick()
    def __getattr__(self, k): return getattr(self.a, k)

class Chunks:
    def __init__(self): self.l = []
    def __call__(self, t): self.l.append(t)

def late_setup():
    a = Chunks()
    a(f"s_lshl2_add_u32 s3, {sRB}, {sW}\ns_lshl4_add_u32 s3, s3, {sH}\ns_lshl_b32 s3, s3, 11\ns_add_u32 {sOo}, s3, {OB}")
    a(f"s_lshl1_add_u32 s3, {sDB}, {sKH}\ns_lshl4_add_u32 s3, {sTile}, s3\ns_lshl_b32 s3, s3, 8\ns_add_u32 {sSo}, s3, {ST}")
    a(f"v_lshlrev_b32 {vr(vL4)}, 2, {vL}\nv_bfe_u32 v2, {vL}, 4, 1\nv_lshlrev_b32 v2, 17, v2\nv_lshrrev_b32 v3, 5, {vL}")
    a(f"v_lshl_add_u32 v2, v3, 9, v2\nv_and_b32 v3, 15, {vL}\nv_lshl_add_u32 {vHS}, v3, 4, v2")
    a(f"s_lshl_b32 s3, {sDB}, 7\ns_add_u32 s3, s3, {sTile}\ns_lshl3_add_u32 s3, s3, {sKH}\ns_lshl_b32 s3, s3, 8\ns_add_u32 {sHo}, s3, {HN}")
    a(f"s_mul_i32 s3, {sDB}, 56\ns_add_u32 s3, s3, {sFB}\ns_lshl2_add_u32 s3, s3, {sW}\ns_lshl_b32 s3, s3, 10\ns_add_u32 {sUo}, s3, {UB}")
    a(f"s_add_u32 {sU2}, {sUo}, {112*1024}\ns_lshl_b32 {sW4}, {sW}, 2\ns_lshl2_add_u32 {sO}, {sH}, {sW}\ns_lshl_b32 {sO}, {sO}, 16")
    a(f"s_lshl4_add_u32 s3, {sRB}, {sH}\ns_lshl_b32 s3, s3, 7\ns_add_u32 s3, s3, {sW4}\ns_add_u32 {sH2}, s3, {HT}")
    a(f"s_lshl_b32 s56, {sDB}, 5\ns_add_u32 s56, s56, {sSB}\ns_lshl_b32 s56, s56, 7\ns_add_u32 s3, s56, {sW4}\ns_add_u32 {sH3}, s3, {HT + 32768}")
    a(f"v_min_u32 v2, 4, {vL}\nv_lshlrev_b32 v2, 15, v2\ns_sub_u32 s3, {sH3}, 32768\nv_add_u32 {vr(vHI)}, s3, v2\nv_writelane_b32 {vr(vHI)}, {sH2}, 0")
    a(f"s_add_u32 s3, s56, {FL + 16}\nv_mov_b32 {vr(vPF)}, s3\ns_lshl4_add_u32 s3, {sH}, {sRB}\ns_lshl_b32 s3, s3, 7\ns_add_u32 s3, s3, {FL}\nv_writelane_b32 {vr(vPF)}, s3, 0\ns_add_u32 {sKF}, s3, {sW4}")
    a(f"s_lshr_b32 s3, {sSB}, 1\ns_lshl_b32 s3, s3, 7\ns_add_u32 {sCN}, s3, {FL + 16}\ns_mov_b32 s56, 2048")
    a(f"s_lshl1_add_u32 s3, {sDB}, {sW}\ns_lshl_b32 s3, s3, 11\ns_add_u32 s3, s3, {FL + 32 - 2048}\ns_cmp_lg_u32 {sW}, 0\ns_cselect_b32 {sCN}, s3, {sCN}\ns_cselect_b32 s56, 128, s56")
    a(f"s_lshl_b32 s3, {sSB}, 7\ns_add_u32 s3, s3, {FL + 32}\ns_cmp_eq_u32 {sW}, 3\ns_cselect_b32 {sCN}, s3, {sCN}\ns_cselect_b32 s56, 4096, s56\ns_cselect_b32 s3, 6, 15\nv_lshrrev_b32 v2, 2, {vL}\nv_min_u32 v2, s3, v2")
    a(f"v_mul_u32_u24 v2, s56, v2\nv_and_b32 v3, 3, {vL}\nv_lshl_add_u32 {vr(vCN)}, v3, 2, v2")
    a(f"s_lshr_b32 s3, {sH}, 1\ns_lshl2_add_u32 s3, s3, {sW}\ns_lshl_b32 s3, s3, 9\ns_add_u32 s3, s3, {FL}\nv_bfe_u32 v2, {vL}, 2, 1\nv_lshl_add_u32 v2, v2, 14, s3")
    a(f"v_mov_b32 v207, v2\nv_lshl_add_u32 {vr(vFL)}, v3, 7, v2")
    a(f"s_mul_i32 {sAR}, {sW}, {ARENA}\ns_add_u32 {sAR}, {sAR}, {ARENA0}\ns_mul_i32 {sG}, {sW}, {512*3584}\ns_lshl_b32 s3, {sFB}, 7\ns_add_u32 {sG}, {sG}, s3")
    a(f"v_lshrrev_b32 v2, 2, {vL}\nv_and_b32 v2, 4, v2\nv_and_b32 v3, 7, {vL}\nv_lshlrev_b32 {vr(vL7)}, 7, v3\nv_xor_b32 v2, v2, v3")
    a(f"v_lshrrev_b32 v3, 3, {vL}\nv_mul_u32_u24 v4, 3584, v3\nv_lshl_add_u32 {vr(vW1[0])}, v2, 4, v4\nv_mul_u32_u24 v4, 896, v3")
    a(f"v_and_b32 v3, 2, v3\nv_and_b32 v2, 7, {vL}\nv_xor_b32 v2, v2, v3\nv_lshl_add_u32 {vr(vWO[0])}, v2, 4, v4")
    a("\n".join(f"v_add_u32 {vr(vW1[i])}, {i*(8*3584-1024)}, {vr(vW1[0])}" for i in range(1, 4)))
    a("\n".join(f"v_add_u32 {vr(vWO[i])}, {i*(8*896-1024)}, {vr(vWO[0])}" for i in range(1, 4)))
    a(f"v_bfe_u32 v4, {vL}, 4, 1\nv_xor_b32 v4, {sW}, v4\nv_lshlrev_b32 v4, 5, v4\nv_and_b32 v5, 3, {vL}\nv_lshl_add_u32 v4, v5, 3, v4")
    trbase(a, vr(vT1[0]), 8, "v4")
    a(f"v_add_u32 {vr(vT1[0])}, {sAR}, {vr(vT1[0])}\nv_xor_b32 {vr(vT1[1])}, 64, {vr(vT1[0])}\ns_mul_i32 s79, {sW}, {14*1024}")
    a(f"v_and_b32 v2, 31, {vL}\nv_mul_u32_u24 v4, 896, v2\nv_lshrrev_b32 v3, 5, {vL}\nv_lshl_add_u32 {vr(XR+4)}, v3, 4, v4")
    a(f"v_lshlrev_b32 {vr(B1+2)}, 3, v3\nv_lshlrev_b32 {vr(B2)}, 1, v2\ns_lshl2_add_u32 {sB1}, {sFB}, {sW}\ns_lshl_b32 {sB1}, {sB1}, 5\ns_lshl_b32 {sB2}, {sTile}, 6")
    a(f"s_mul_i32 {sXR}, {sTile}, {32*896}\ns_lshl_b32 s3, {sDB}, 7\ns_add_u32 {sXR}, {sXR}, s3\ns_lshl_b32 s3, {sKH}, 5\ns_add_u32 {sXR}, {sXR}, s3")
    for j in range(3):
        a(f"s_add_u32 s56, {sW}, {j+1}\ns_and_b32 s56, s56, 3\ns_mul_i32 s3, s56, {ARENA}\ns_add_u32 s3, s3, {ARENA0+INB}\nv_add_u32 {vr(vIW+j)}, s3, {vL16}")
        a(f"s_lshl_b32 s3, s56, 11\ns_add_u32 s3, s3, {QX}\nv_add_u32 {vr(Q+8*j+4)}, s3, {vL16}")
    a(f"v_add_u32 {vr(vIW+3)}, {sAR}, {vL16}\ns_lshl_b32 s3, {sW}, 11\ns_add_u32 s3, s3, {QX}\nv_add_u32 v210, s3, {vL16}")
    a(f"s_add_u32 s3, {sDB}, 8\ns_cmp_eq_u32 {sDB}, 7\ns_cselect_b32 s3, {sLQ}, s3\ns_mul_i32 {sI1}, s3, {9*3584}\ns_mul_i32 {sI2}, s3, 15\ns_lshr_b32 {sI2}, {sI2}, 1\ns_lshl_b32 {sI2}, {sI2}, 12")
    a(f"s_mul_i32 s3, {sW}, {512*3584}\ns_add_u32 {sI1}, {sI1}, s3\ns_mul_i32 s3, {sW}, {448*4096}\ns_add_u32 {sI2}, {sI2}, s3")
    a(f"s_sub_u32 s56, {sSB}, {sFB}\ns_mul_i32 s3, s56, 896\ns_add_u32 {sI1}, {sI1}, s3\ns_lshl_b32 s3, s56, 10\ns_add_u32 {sI2}, {sI2}, s3\ns_mov_b32 {sLO}, {fhex(2.0**-30)}")
    a(f"v_min_u32 v2, 62, {vL}\nv_mul_u32_u24 v3, 37, v2\nv_lshrrev_b32 v3, 8, v3\nv_mul_u32_u24 v3, {3584 - 7*128}, v3\nv_lshl_add_u32 {vr(vIT)}, v2, 7, v3")
    a(f"v_lshrrev_b32 v2, 3, {vL}\nv_lshl_add_u32 {vr(vIT+1)}, v2, 12, {vr(vL7)}")
    a(f"s_lshr_b32 s3, {sTile}, 2\ns_lshl1_add_u32 s3, s3, {sKH}\ns_lshl_b32 s3, s3, 10\ns_add_u32 {sP2}, s3, {HT}")
    return a.l

def p1(a, stubs):
    WB, WQB, XB, CSB_ = 0, 58368, 87040, 160768
    ACA, ACB, GR, CSA, CSB, WF = 48, 64, 80, 96, 112, 128
    ONES = 160; FA, FB, FM = 164, 168, 172
    vX = [176, 177, 178, 179]; vW = 180; vWQ = 181
    vXR = [182, 183, 184, 185]; vWA = [186, 187, 188, 189]; vWB = [190, 191, 192, 193]; vQR = [194, 195, 196, 197]
    vCW, vCR, GATE, vWb, RS, PK = 198, 199, 200, 202, 204, 80
    vTW, vTR = 208, 209
    sXB, sWo, sT, sWm, sQo, sKVo = "s54", "s55", "s58", "s59", "s60", "s61"
    def em(x): x() if callable(x) else a(x)
    a(f"s_lshl2_add_u32 s3, {sRB}, {sW}\ns_mul_i32 s3, s3, {32*896}")
    a(f"v_lshrrev_b32 v5, 3, {vL}\nv_mul_u32_u24 v2, 896, v5\nv_add_u32 v2, s3, v2")
    a(f"v_lshrrev_b32 v3, 4, {vL}\nv_and_b32 v4, 7, {vL}\nv_xor_b32 v3, v3, v4")
    a(f"v_lshl_add_u32 {vr(vX[0])}, v3, 4, v2")
    a(f"v_xor_b32 v3, 4, v3\nv_lshl_add_u32 v3, v3, 4, v2\nv_add_u32 {vr(vX[1])}, {8*896 - 1024}, v3")
    a(f"v_add_u32 {vr(vX[2])}, {16*896 - 2048}, {vr(vX[0])}\nv_add_u32 {vr(vX[3])}, {16*896 - 2048}, {vr(vX[1])}")
    a(f"s_lshl_b32 {sXB}, {sW}, 14\ns_add_u32 {sXB}, {sXB}, {XB}")
    a(f"v_mul_u32_u24 {vr(vW)}, 2688, v5\nv_lshrrev_b32 v2, 2, {vL}\nv_and_b32 v2, 4, v2\nv_xor_b32 v2, v2, v4\nv_lshl_add_u32 {vr(vW)}, v2, 4, {vr(vW)}")
    a(f"v_cmp_ne_u32 vcc, 7, v2\nv_add_u32 {vr(vWb)}, {8*2688 - 1024}, {vr(vW)}")
    JX = 0 if "nojx" in OPT else 8
    a(f"s_xor_b32 s3, {sH}, {JX}\n{'s_min_u32 s3, s3, 13' if 'x1l' in OPT else ''}\ns_mul_i32 {sWo}, s3, {128 if 'x1l' in OPT else 112}\ns_mul_i32 {sQo}, {sW}, {16*2688}\ns_add_u32 {sWo}, {sWo}, {sQo}\ns_lshl_b32 {sWm}, {sW}, 11")
    a("s_waitcnt lgkmcnt(0)")
    srd(a, "x"); srd(a, "wq")
    if PROFILE: a("s_mov_b32 s91, s2")
    stamp(a, "start")
    def chunk_dma(c):
        l = [f"s_add_u32 {sT}, {sWo}, {896 + c*64*2688}\n" + m0set(sWm, WB + c*8192) + "\ns_mov_b64 exec, vcc\n" + dmai(vr(vW), RWQ, sT) + "\ns_mov_b64 exec, -1",
             "s_mov_b64 exec, vcc\n" + dmai(vr(vWb), RWQ, sT, 1024) + "\ns_mov_b64 exec, -1\n" + m0set(sXB, (c & 3)*4096 - c*128)]
        l += [dmai(vr(vX[o]), RX, "0", c*128 + o*1024) for o in range(4)]
        return l[:-1] + [lambda: a(l[-1], tag=f"c{c}")]
    qdma = [m0set("s63", WQB + i*4096) + f"\ns_add_u32 {sT}, {sQo}, {i*64*2688}\n" + dmai(vr(vWQ), RWQ, sT) for i in range(7)]
    for x in chunk_dma(0): em(x)
    a(f"s_and_b32 s3, s56, 3\ns_lshl3_add_u32 {sSB}, s3, {sLQ}\ns_sub_u32 {sFB}, {sSB}, s3")
    a(f"s_and_b32 {sST}, {sW}, 1\ns_lshr_b32 {sKH}, {sW}, 1\ns_lshl1_add_u32 {sTile}, {sSB}, {sST}\ns_mov_b32 s96, 0x100000")
    for n in ("ws", "dbg", "wo", "w1", "w2", "b1", "b2", "out"): srd(a, n)
    if "tlb" in OPT:
        a(f"v_lshrrev_b32 v2, 5, v0\ns_lshl_b32 s3, s57, 3\nv_add_lshl_u32 v2, v2, s3, 15\nbuffer_load_dword v10, v2, {RW1}, 0 offen\nbuffer_load_dword v10, v2, {RW2}, 0 offen")
        a(f"v_lshlrev_b32 v2, 1, v2\nbuffer_load_dword v10, v2, {WS}, 0 offen sc1")
    a(f"s_mov_b64 s[80:81], s[12:13]\ns_mov_b32 s83, 0x20000\ns_mov_b64 s[84:85], s[12:13]\ns_mov_b32 s87, 0x20000")
    a(f"s_cmp_lt_u32 {sDB}, 7\ns_cselect_b32 s82, s14, 0\ns_cselect_b32 s26, s26, 0\ns_cselect_b32 s30, s30, 0")
    a(f"s_cmp_lt_u32 {sLQ}, 7\ns_cselect_b32 s86, s82, 0\ns_cselect_b32 s30, s30, 0")
    for i in range(4): a(f"v_mov_b32 {vr(PZ+i)}, -1")
    a(f"s_and_b32 s3, {sH}, 7\ns_lshl_b32 s3, s3, 7\ns_lshl2_add_u32 s3, {sRB}, s3\ns_add_u32 s3, s3, {sW}\ns_lshl_b32 {sKVo}, s3, 12")
    nv = a.nvm
    a(f"s_cmp_lg_u32 {sH}, 0\ns_cbranch_scc1 L_nz\nv_mov_b32 v2, 0\nv_mov_b32 v3, 0\nv_lshlrev_b32 v12, 3, v0\ns_lshl_b32 s3, {sRB}, 11\ns_add_u32 s3, s3, {FL}")
    a(f"buffer_store_dwordx2 v[2:3], v12, {WS}, s3 offen sc1\nL_nz:")
    a.nvm = nv
    def kvmark():
        nv = a.nvm
        a(f"s_and_b32 s3, {sRB}, 3\ns_cbranch_scc1 L_np\ns_xor_b32 s3, {sH}, {JX}\ns_lshr_b32 s3, s3, 3\ns_lshl_b32 s3, s3, 11\ns_add_u32 s3, s3, {sKVo}")
        for i in range(2):
            for o in (0, 1024): a(f"buffer_store_dwordx4 {vr(PZ,4)}, {vL16}, {WS}, s3 offen offset:{o} sc1")
            if not i: a(f"s_add_u32 s3, s3, {64*4096}")
        a("L_np:"); a.nvm = nv
    KM = optv("km", -1)
    if KM < 0: kvmark()
    for i in range(4): a(f"v_mov_b32 {vr(ONES+i)}, 0x3f803f80")
    a(f"v_lshrrev_b32 v2, 1, v0\nv_and_b32 v2, 1, v2\nv_lshlrev_b32 v2, 6, v2\nv_xor_b32 v2, 0x70, v2\nv_lshl_add_u32 v2, v0, 7, v2")
    a(f"ds_write_b128 v2, {vr(ONES,4)} offset:{WB}\nds_write_b128 v2, {vr(ONES,4)} offset:{WB + 192*128}")
    a(f"v_and_b32 v2, 31, {vL}\nv_lshlrev_b32 v3, 7, v2\nv_add_u32 v3, {sXB}, v3")
    a(f"v_lshrrev_b32 v4, 1, v2\nv_and_b32 v4, 7, v4\nv_lshrrev_b32 v5, 5, {vL}\nv_xor_b32 v4, v4, v5\ns_lshl_b32 s3, {sW}, 1\nv_xor_b32 v4, s3, v4")
    for q in range(4):
        a(f"v_xor_b32 v6, {2*q}, v4\nv_lshl_add_u32 {vr(vXR[q])}, v6, 4, v3")
    a(f"v_add_u32 {vr(vCR)}, {CSB_}, {vL16}\ns_lshl_b32 s3, {sW}, 2\nv_add_u32 {vr(vCW)}, s3, {vr(vCR)}")
    a(f"v_mul_u32_u24 {vr(vTW)}, 72, v2\nv_lshl_add_u32 {vr(vTW)}, v5, 3, {vr(vTW)}\nv_add_u32 {vr(vTW)}, {sXB}, {vr(vTW)}")
    a(f"v_bfe_u32 v2, {vL}, 2, 2\nv_lshl_add_u32 v3, v5, 3, v2")
    a(f"v_bfe_u32 v4, {vL}, 4, 1\nv_lshlrev_b32 v4, 5, v4\nv_and_b32 v6, 3, {vL}\nv_lshl_add_u32 v4, v6, 3, v4")
    a(f"v_lshl_add_u32 v5, v5, 2, v2\nv_mul_u32_u24 v5, 72, v5\nv_add3_u32 {vr(vTR)}, v5, v4, {sXB}")
    a(f"v_lshrrev_b32 v2, 1, v2\nv_lshlrev_b32 v2, 6, v2")
    a(f"v_xor_b32 v6, v4, v2\nv_lshl_add_u32 v6, v3, 7, v6\nv_add_u32 {vr(vWA[0])}, {sWm}, v6")
    a(f"v_add_u32 v6, 56, v4\nv_xor_b32 v6, v6, v2\nv_lshl_add_u32 v6, v3, 7, v6\nv_add_u32 {vr(vWB[0])}, {sWm}, v6")
    a(f"s_lshl_b32 s63, {sW}, 10\nv_lshl_add_u32 v6, v3, 6, v4\nv_add_u32 v6, s63, v6")
    for q in range(1, 4):
        a(f"v_xor_b32 {vr(vWA[q])}, {q*2048}, {vr(vWA[0])}\nv_xor_b32 {vr(vWB[q])}, {q*2048}, {vr(vWB[0])}")
    post = [f"v_xor_b32 {vr(vQR[q])}, {q*1024}, v6\nv_add_u32 {vr(vQR[q])}, {WQB}, {vr(vQR[q])}" for q in range(4)]
    post += [f"v_lshrrev_b32 v2, 2, {vL}\nv_mul_u32_u24 v2, 2688, v2\nv_and_b32 v3, 3, {vL}\nv_lshl_add_u32 {vr(vWQ)}, v3, 4, v2",
             f"s_mul_i32 s3, {sH}, 56\ns_add_u32 {sQo}, {sQo}, s3\ns_mov_b32 {sPERM}, 0x07060302\ns_mov_b32 s74, 0\ns_mov_b32 s75, -1",
             f"v_mov_b32 {vr(FA+3)}, 0\nv_mov_b32 {vr(FB+3)}, 0\nv_mov_b32 {vr(FM+3)}, 0\nv_and_b32 {vr(GATE+1)}, 15, {vL}\nv_lshlrev_b32 {vr(GATE+1)}, 2, {vr(GATE+1)}"]
    post += late_setup()
    n1, n2 = optv("pa", 0), optv("pb", 0)
    for x in post[:n1]: a(x)
    for x in chunk_dma(1): em(x)
    for x in post[n1:n1+n2]: a(x)
    post = post[n1+n2:]
    tour(a, 0)
    stamp(a, "p1_pre")
    a("s_waitcnt lgkmcnt(0)")
    def reads(st):
        c, q = st >> 2, st & 3
        l = [f"ds_read_b64_tr_b16 {vr(WF+8*q+4*hd+2*e,2)}, {vr(va)} offset:{WB+c*8192+e*512}" for hd, va in enumerate((vWA[q], vWB[q])) for e in range(2)]
        return l + [lambda: a(f"ds_read_b128 {ar(4*st,4)}, {vr(vXR[q])} offset:{(c & 3)*4096}", tag=f"r{st}")]
    gld = f"buffer_load_dword {vr(GATE)}, {vr(GATE+1)}, {RDBG}, 0 offen sc1"
    EK = optv("ek", 0)
    p1ld = f"buffer_load_dword v206, v207, {WS}, 0 offen sc1"
    def gatecheck():
        b = Asm()
        b(f"L_gw:\n{SPIN}\n{gld}\ns_waitcnt vmcnt(0)\nv_cmp_ne_u32 vcc, 1, {vr(GATE)}\ns_cbranch_vccnz L_gw\ns_branch L_go")
        stubs.extend(b.L)
        a("s_cbranch_vccnz L_gw\nL_go:")
    fill = []
    def window(c):
        a.wait(vm=f"c{c}"); a("s_barrier")
        if c in (0, 3, 6): stamp(a, f"p1_c{c}")
        assert not fill
        if c == KM: fill.append(kvmark)
        if c == 5: fill.append(lambda: a(gld, tag="gate"))
        if c < 5: fill.extend(chunk_dma(c + 2))
        else:
            k = 4 if c < 6 else 3
            fill.extend(qdma[:k]); del qdma[:k]
        if c == 1:
            fill.append(f"v_mov_b32 v11, 1\ns_or_b32 s3, {sH}, {sW}\ns_cselect_b32 s50, 0, s50\ns_lshl_b32 s3, {sRB}, 2\ns_mov_b64 exec, 1\nbuffer_store_dword v11, off, {RDBG}, s3 sc1\ns_mov_b64 exec, -1\ns_mov_b32 s50, 256")
    window(0)
    for x in reads(0) + reads(1): em(x)
    for _ in range(3): em(fill.pop(0))
    for st in range(28):
        c, q = st >> 2, st & 3
        if q == 2 and c < 6:
            while fill: em(fill.pop(0))
            window(c + 1)
        rd = reads(st + 2) if st + 2 < 28 else []
        z = "0" if st == 0 else None
        x4 = ar(4*st, 4); wa, wb = vr(WF+8*q, 4), vr(WF+8*q+4, 4)
        gr = "\n".join(m4(GR+4*e, ar(4*st+2*e,2), ar(4*st+2*e,2), z) for e in range(2))
        l = [mf(vr(ACB,16), wb, x4, z), gr, mf(vr(ACA,16), wa, x4, z)]
        if q == 0: l = ["\n".join(m4(cs+4*e, vr(ONES,2), vr(WF+4*hd+2*e,2), z) for e in range(2)) for hd, cs in enumerate((CSA, CSB))] + l
        a.wait(ds=f"r{st}")
        for i, m in enumerate(l):
            a(m)
            for _ in range(2):
                if rd: em(rd.pop(0))
            if fill and (i & 1 or len(l) == 3 and i == 2 and len(fill) > 3): em(fill.pop(0))
            elif post: a(post.pop(0))
        assert not rd
        if st == 24: assert not post, len(post)
        if EK and st == 22:
            a.wait(vm="gate"); a(f"v_cmp_ne_u32 vcc, 1, {vr(GATE)}")
        if EK and st == 23:
            gatecheck()
            a(f"s_and_b32 s3, {sRB}, 3\ns_or_b32 s3, s3, {sW}\ns_cselect_b32 s14, 0, s14\ns_mov_b64 exec, 1\nbuffer_store_dword {vr(GATE)}, off, {WS}, {sKF} sc1\ns_mov_b64 exec, -1\ns_mov_b32 s14, {1 << 28}")
        if st == 25:
            a(f"v_add_f32 {vr(CSA)}, {vr(CSA)}, {vr(CSA+4)}\nv_add_f32 {vr(CSB)}, {vr(CSB)}, {vr(CSB+4)}")
            a(f"ds_write_b32 {vr(vCW)}, {vr(CSA)}\nds_write_b32 {vr(vCW)}, {vr(CSB)} offset:1024")
            if not EK: a.wait(vm="gate"); a(f"v_cmp_ne_u32 vcc, 1, {vr(GATE)}")
        if st == 26:
            if not EK: gatecheck()
            while fill: em(fill.pop(0))
            a.mark("wq")
            a(f"s_mov_b64 s[20:21], s[12:13]\ns_and_b32 s3, {sRB}, 3\ns_or_b32 s3, s3, {sW}\ns_cselect_b32 s22, 0, s14")
            a("s_waitcnt lgkmcnt(0)\ns_barrier")
            a(f"ds_read_b128 {vr(CSA,4)}, {vr(vCR)}\nds_read_b128 {vr(CSB,4)}, {vr(vCR)} offset:1024")
    kvhint = f"s_mov_b64 exec, 1\nbuffer_store_dword {vr(GATE)}, off, {RWQ}, {sKF} sc1\ns_mov_b64 exec, -1"
    H1 = optv("h1m", 1)
    if EK: kvhint = lambda: a(p1ld, tag="p0")
    else: kvhint = (lambda t=kvhint: a(t))
    if H1 == 0: kvhint()
    a("s_waitcnt lgkmcnt(0)")
    for x in [f"v_pk_add_f32 v[2:3], {vr(CSA,2)}, {vr(CSA+2,2)}", f"v_pk_add_f32 v[4:5], {vr(CSB,2)}, {vr(CSB+2,2)}", "v_add_f32 v2, v2, v3", "v_add_f32 v4, v4, v5"] + splitA(FA, "v2", "v8", "v9") + splitA(FB, "v4", "v10", "v11"): a(x)
    stamp(a, "p1_mm")
    a(f"v_mov_b32 v2, {vr(ACB+12)}\nv_mov_b32 v3, {vr(ACB+12)}\ns_mov_b32 vcc_lo, 0xaaaaaaaa\ns_mov_b32 vcc_hi, 0xaaaaaaaa\nv_permlane32_swap_b32 v2, v3\nv_mul_f32 v6, {fhex(-1.0/D)}, v3")
    for t in splitB(FM, "v6", "v8", "v9"): a(t)
    a(f"v_pk_add_f32 {vr(GR,2)}, {vr(GR,2)}, {vr(GR+4,2)}\nv_pk_add_f32 {vr(GR+2,2)}, {vr(GR+2,2)}, {vr(GR+6,2)}")
    a(mf(vr(ACA,16), vr(FA,4), vr(FM,4)))
    for i in range(2): a(f"v_cndmask_b32 {vr(GR+i)}, {vr(GR+2*i)}, {vr(GR+2*i+1)}, vcc")
    a("s_mov_b32 vcc_lo, 0xcccccccc\ns_mov_b32 vcc_hi, 0xcccccccc")
    a(mf(vr(ACB,16), vr(FB,4), vr(FM,4)))
    a(f"v_cndmask_b32 v2, {vr(GR)}, {vr(GR+1)}, vcc")
    xhalf_sum(a, "v2", "v3")
    a(f"v_mul_f32 v2, {fhex(1.0/D)}, v2\nv_fma_f32 v2, -v6, v6, v2\nv_max_f32 v2, 0, v2\nv_add_f32 v2, {fhex(1e-5)}, v2\nv_rsq_f32 {vr(RS)}, v2")
    def finish(acc, pk):
        for i in range(8): a(f"v_pk_mul_f32 {vr(acc+2*i,2)}, {vr(acc+2*i,2)}, {vr(RS,2)} op_sel_hi:[1,0]")
        for i in range(8): a(f"v_cvt_pk_bf16_f32 {vr(pk+i)}, {vr(acc+2*i)}, {vr(acc+2*i+1)}")
    if H1 == 1: kvhint()
    a(f"v_mov_b32 v2, 0x3f80\ns_add_u32 {sT}, {sKVo}, {64*4096}\ns_cmp_ge_u32 {sH}, 8\ns_cbranch_scc{0 if JX else 1} L_v")
    n0 = a.nvm
    for hd in range(2):
        finish((ACA, ACB)[hd], PK+8*hd)
        a(f"v_cndmask_b32 {vr(PK+8*hd+6)}, {vr(PK+8*hd+6)}, {vr(ONES)}, {MHI}\nv_cndmask_b32 {vr(PK+8*hd+7)}, {vr(PK+8*hd+7)}, v2, {MHI}")
        a(f"v_min_u32 {vr(PK+8*hd)}, -2, {vr(PK+8*hd)}\nv_min_u32 {vr(PK+8*hd+4)}, -2, {vr(PK+8*hd+4)}")
        a(f"buffer_store_dwordx4 {vr(PK+8*hd,4)}, {vL16}, {WS}, {(sKVo, sT)[hd]} offen sc1")
        a(f"buffer_store_dwordx4 {vr(PK+8*hd+4,4)}, {vL16}, {WS}, {(sKVo, sT)[hd]} offen offset:1024 sc1")
    a("s_branch L_q\nL_v:")
    a.nvm = n0
    for hd in range(2):
        finish((ACA, ACB)[hd], PK+8*hd)
        a(f"v_cndmask_b32 {vr(PK+8*hd+6)}, {vr(PK+8*hd+6)}, v2, {MHI}\nv_cndmask_b32 {vr(PK+8*hd+7)}, {vr(PK+8*hd+7)}, {vr(FM+3)}, {MHI}")
        if hd:
            a.wait(ds="tv0")
            a(f"v_min_u32 {vr(PK+16)}, -2, {vr(PK+16)}\nv_min_u32 {vr(PK+20)}, -2, {vr(PK+20)}")
        for i in range(4): a(f"ds_write_b64 {vr(vTW)}, {vr(PK+8*hd+2*i,2)} offset:{hd*4096 + i*16}")
        for j in range(2):
            for e in range(2):
                a(f"ds_read_b64_tr_b16 {vr(PK+16+8*hd+4*j+2*e,2)}, {vr(vTR)} offset:{hd*4096 + (16*j+8*e)*72}")
        a.mark(f"tv{hd}")
    for hd in range(2):
        if hd:
            a.wait(ds="tv1")
            a(f"v_min_u32 {vr(PK+24)}, -2, {vr(PK+24)}\nv_min_u32 {vr(PK+28)}, -2, {vr(PK+28)}")
        a(f"buffer_store_dwordx4 {vr(PK+16+8*hd,4)}, {vL16}, {WS}, {(sKVo, sT)[hd]} offen offset:2048 sc1")
        a(f"buffer_store_dwordx4 {vr(PK+16+8*hd+4,4)}, {vL16}, {WS}, {(sKVo, sT)[hd]} offen offset:3072 sc1")
    a("L_q:")
    if H1 == 2: kvhint()
    stamp(a, "p1_kvst")
    a.wait(vm="wq"); a("s_barrier")
    order = [(c, 0) for c in range(7)] + [(c, q) for q in range(1, 4) for c in range(7)]
    NB = 7
    def qrd(i):
        c, q = order[i]
        b = WF + 4*(i % 8)
        a(f"ds_read_b64_tr_b16 {vr(b,2)}, {vr(vQR[q])} offset:{c*4096}\nds_read_b64_tr_b16 {vr(b+2,2)}, {vr(vQR[q])} offset:{c*4096+256}", tag=f"q{i}")
    for i in range(NB - 1): qrd(i)
    a(f"s_mul_i32 s3, {sW}, {14*8*896}\ns_lshl_b32 {sT}, {sDB}, 7\ns_add_u32 {sT}, {sT}, s3")
    wo = [((m0set("s79", n*1024) + "\n" + (f"s_add_u32 {sT}, {sT}, {32*896}\n" if n else "")) if n % 4 == 0 else "") + dmai(vr(vWO[n % 4]), RWO, sT, (n % 4)*1024) for n in range(15)]
    for i in range(28):
        c, q = order[i]
        a.wait(ds=f"q{i}")
        b = vr(WF + 4*(i % 8), 4)
        if q == 0:
            for e in range(2): a(m4(CSB+4*e, vr(ONES,2), vr(WF + 4*(i % 8) + 2*e, 2), "0" if i == 0 else None))
        a(mf(vr(ACA,16), b, ar(16*c+4*q,4), "0" if i == 0 else None))
        if i + NB - 1 < 28: qrd(i + NB - 1)
        if i < optv("wo1", 8): a(wo.pop(0))
        if i == 9: a(f"v_add_f32 {vr(CSB)}, {vr(CSB)}, {vr(CSB+4)}\nds_write_b32 {vr(vCW)}, {vr(CSB)} offset:2048", tag="csq")
        if i == 13:
            a.wait(ds="csq"); a("s_barrier")
            a(f"ds_read_b128 {vr(CSB,4)}, {vr(vCR)} offset:2048", tag="csr")
        if i == 17:
            a.wait(ds="csr"); a(f"v_add_f32 v2, {vr(CSB)}, {vr(CSB+1)}\nv_add_f32 v3, {vr(CSB+2)}, {vr(CSB+3)}\nv_add_f32 v2, v2, v3")
            sp = splitA(FA, "v2", "v8", "v9") + [f"v_mul_f32 {vr(RS)}, {fhex(DH**-0.5 * math.log2(math.e))}, {vr(RS)}"]
        if i in (18, 19, 20):
            for t in sp[3*(i-18):3*(i-17)]: a(t)
        if i == 8: a(f"s_add_u32 s3, {sO}, 4096\ns_add_u32 s54, s12, s3\ns_addc_u32 s55, s13, 0")
        if EK and i == EK - 2: a.wait(vm="p0"); a("v_cmp_ne_u32 vcc, 1, v206")
        if EK and EK <= i < EK + 8:
            nv = a.nvm; l = a.lab("ek")
            a(f"s_cbranch_vccnz {l}\n{kvld((i - EK) // 4, (i - EK) % 4)}\n{l}:"); a.nvm = nv
        if not EK and i == optv("pl1", 24): a(p1ld)
    a(mf(vr(ACA,16), vr(FA,4), vr(FM,4)))
    finish(ACA, Q+24)
    a(f"v_cndmask_b32 {vr(Q+30)}, {vr(Q+30)}, {vr(FM+3)}, {MHI}\nv_cndmask_b32 {vr(Q+31)}, {vr(Q+31)}, {vr(FM+3)}, {MHI}")
    a(f"ds_write_b128 v210, {vr(Q+24,4)}\nds_write_b128 v210, {vr(Q+28,4)} offset:1024")
    stamp(a, "p1_q")
    a(f"s_cmp_eq_u32 {sW}, 0\ns_cselect_b32 s22, s14, 0\ns_waitcnt vmcnt(0) lgkmcnt(0)\ns_barrier")
    landed = f"s_mov_b64 exec, 1\nbuffer_store_dword {vr(GATE)}, off, {RWQ}, {sKF} offset:48 sc1\ns_mov_b64 exec, -1"
    if not EK: a("v_cmp_ne_u32 vcc, 1, v206")
    for j in range(3): a(f"ds_read_b128 {vr(Q+8*j,4)}, {vr(Q+8*j+4)}\nds_read_b128 {vr(Q+8*j+4,4)}, {vr(Q+8*j+4)} offset:1024")
    a("s_cbranch_vccnz L_flw\nL_flo:")
    b = Asm()
    b(f"L_flw:\n{p1ld}\n{landed}\ns_waitcnt vmcnt(1)\nL_fl:\nv_cmp_ne_u32 vcc, 1, v206\ns_cbranch_vccz L_fl2")
    b(f"{SPIN}\n{p1ld}\ns_waitcnt vmcnt(0)\ns_branch L_fl\nL_fl2:")
    if EK:
        for i in range(8): b(kvld(i // 4, i % 4))
        b("s_waitcnt vmcnt(0)")
    b("s_branch L_flo")
    stubs.extend(b.L)
    if EK:
        for i in range(8): a.mark(f"kv{i//4}_{i%4}")
    stamp(a, "p1_flag")
    return wo, landed

def p2(a, stubs, wo, landed):
    KB, WB1 = "s[54:55]", "s[60:61]"
    class LD:
        def __init__(s_, t, part):
            s_.t, s_.part = t, part
            s_.pre = "s_add_u32 s54, s54, 8192\ns_addc_u32 s55, s55, 0" if (part == 0 and t and t % 2 == 0) else None
        def __call__(s_):
            a(kvld(s_.t, s_.part), tag=f"kv{s_.t}_{s_.part}")
    ld = LD
    gdma = lambda i: f"global_load_lds_dwordx4 {vr(vW1[i])}, {WB1} offset:{i*1024}"
    z = vr(PZ, 4)
    pz = [f"s_mov_b64 exec, 31\nbuffer_store_dword {vr(PZ)}, {vr(vHI)}, {RWQ}, 0 offen sc1\ns_mov_b64 exec, -1",
          f"buffer_store_dwordx4 {z}, {vL16}, {WS}, {sOo} offen sc1", f"buffer_store_dwordx4 {z}, {vL16}, {WS}, {sOo} offen offset:1024 sc1",
          f"buffer_store_dword {vr(PZ)}, {vr(vL4)}, {WS3}, {sSo} offen sc1",
          f"buffer_store_dwordx4 {z}, {vHS}, {WS3}, {sHo} offen sc1", f"buffer_store_dwordx4 {z}, {vHS}, {WS3}, {sHo} offen offset:1024 sc1",
          f"buffer_store_dwordx4 {z}, {vL16}, {WS4}, {sUo} offen sc1", f"buffer_store_dwordx4 {z}, {vL16}, {WS4}, {sU2} offen sc1"]
    pz = [(lambda x=x: a(x, tag="poison")) for x in pz]
    side = [f"buffer_load_dwordx4 {vr(XR+4*t,4)}, {vr(XR+4)}, {RX}, {sXR} offen offset:{t*64}" for t in range(2)]
    side += [f"buffer_load_dwordx2 {vr(B1+2*i,2)}, {vr(B1+2)}, {RB1}, {sB1} offen offset:{i*16}" for i in range(2)]
    side += [f"buffer_load_ushort {vr(B2)}, {vr(B2)}, {RB2}, {sB2} offen"]
    pflag = lambda: (a.wait(vm="poison"), a(f"s_mov_b64 exec, 3\nbuffer_store_dword {vr(PZ)}, {vr(vPF)}, {WS}, {sW4} offen offset:16 sc1\ns_mov_b64 exec, -1"))
    cntld = f"buffer_load_dword {vr(CNT)}, {vr(vCN)}, {WS}, {sCN} offen sc1"
    TAIL = optv("tl", 4)
    units = [(t, j) for t in range(16-TAIL) for j in range(4)] + [(t, j) for j in range(4) for t in range(16-TAIL, 16)]
    nu = len(units)
    slots = {}
    def put(u, sl, x, who="both", front=False):
        l = slots.setdefault((u, sl), [])
        l.insert(0 if front else len(l), (who, x))
    def lay(u0, items, who, rate=2):
        for i, x in enumerate(items):
            u, sl = u0 + i//rate, ((0, 2) if rate == 2 else (0, 1, 2))[i % rate]
            pre = getattr(x, "pre", None)
            if pre:
                if sl == 0 and u: put(u - 1, 3, pre, who)
                elif sl == 2 and rate == 2: put(u, 1, pre, who)
                else: put(u, sl, pre, who)
            put(u, sl, x, who)
        return u0 + -(-len(items) // rate)
    EK = optv("ek", 0)
    NP0 = optv("np0", 2 if EK else 3); K0 = optv("k0", 8)
    tiles = lambda t0, t1: [ld(t, p_) for t in range(t0, t1) for p_ in range(4)]
    early = tiles(NP0, 4) + wo + pz
    ne = min(len(early), 2*K0)
    lay(0, early[:ne], "both"); early = early[ne:]
    kvl = tiles(4, 16); q = []; ex = early + side
    XE = optv("xe", 3)
    while kvl or ex:
        if ex and len(q) >= 4 and (len(q) % XE == 0 or not kvl): q.append(ex.pop(0))
        else: q.append(kvl.pop(0))
    lastp = max([i for i, x in enumerate(q) if x in pz], default=0)
    A3 = optv("a3", 20)
    AEND = lay(lay(K0, q[:A3], "stg"), q[A3:], "stg", 3)
    put(K0 + lastp//2 + 7, 3, pflag, "stg")
    tch = [f"buffer_load_dword v5, {vr(vIT)}, {RW1}, {sI1} offen\ns_add_u32 {sI1}, {sI1}, {128*3584}" for i in range(4)]
    tch += [f"buffer_load_dword v5, {vr(vIT+1)}, {RW2}, {sI2} offen\ns_add_u32 {sI2}, {sI2}, {112*4096}" for i in range(4)]
    IK = optv("ik", 7); u_ = K0; NT = optv("nt", 6); tch = tch[:NT]
    if IK >= 0:
        u_ = lay(K0, tiles(4, 4 + IK), "idle", 3)
        put(u_, 0, tch.pop(0), "idle"); u_ += optv("ip", 5)
    else: IK = 0
    qi = tiles(4 + IK, 6 + IK) + early + tiles(6 + IK, 16) + side
    ue = lay(u_, qi, "idle", 3)
    put(u_ + (8 + len(early))//3 + 6, 3, pflag, "idle")
    for i, x in enumerate(tch): put(min(nu - 2, ue + i*optv("is", 3)), 1, x, "idle")
    b = Asm()
    b(f"L_refkv:\n{SPIN}\ns_lshl2_add_u32 s3, {sH}, {sW}\ns_lshl_b32 s3, s3, 16")
    for t in range(4):
        for p_ in range(4): b(f"buffer_load_dwordx4 {kvr(t, 4*p_, 4)}, {vL16}, {WS}, s3 offen offset:{p_*1024} sc1")
        b("s_add_u32 s3, s3, 4096")
    b("s_waitcnt vmcnt(0)\ns_setpc_b64 s[76:77]")
    stubs.extend(b.L)
    def kvtag(x, t):
        for p_ in range(4): x(f"v_accvgpr_read_b32 v{(2, 3, 4, 10)[p_]}, {kvr(t, 4*p_, 1)}")
        x("v_max3_u32 v2, v2, v3, v4\nv_max_u32 v2, v2, v10\nv_cmp_eq_u32 vcc, -1, v2")
    def kvpost(t):
        lb = a.lab("kck"); ls = a.lab("krt")
        a(f"s_cbranch_vccnz {ls}\n{lb}:")
        b = Asm(); b(f"{ls}:\ns_call_b64 s[76:77], L_refkv"); kvtag(b, t); b(f"s_cbranch_vccnz {ls}\ns_branch {lb}")
        stubs.extend(b.L)
    for t in range(1, 16):
        uf = min(u for u, (tt, j) in enumerate(units) if tt == t)
        put(uf - 2, 1 if t < 4 else 3, (lambda t=t: a.wait(vm=f"kv{t}_3")), front=True)
        if t < 4:
            put(uf - 2, 1, lambda t=t: kvtag(a, t)); put(uf - 2, 3, lambda t=t: kvpost(t), front=True)
    def spin(name, load, cmp_):
        lb = a.lab(name); ls = a.lab(name + "r")
        a(f"s_cbranch_vccnz {ls}\n{lb}:")
        b = Asm(); b(f"{ls}:\n{SPIN}\n{load}\ns_waitcnt vmcnt(0)\n{cmp_}\ns_cbranch_vccnz {ls}\ns_branch {lb}")
        stubs.extend(b.L)
    fl2 = f"buffer_load_dword v11, {vr(vFL)}, {WS}, 0 offen offset:48 sc1"
    put(K0 - optv("pl2", 4), 1, lambda: a(fl2, tag="fl2"))
    assert (K0 - 1) % 4 != 2
    put(K0 - 1, 1, lambda: (a.wait(vm="fl2"), a("v_cmp_ne_u32 vcc, 1, v11")))
    put(K0 - 1, 3, lambda: spin("f2", fl2, "v_cmp_ne_u32 vcc, 1, v11"), front=True)
    put(optv("cntu", 53), 1, lambda: a(cntld, tag="cnt"), "stg")
    put(optv("cnti", 40), 0, lambda: a(cntld, tag="cnt"), "idle")
    WBLK = [12, 13, 14, 15] + TBLK
    RSL = []
    def w1rd(n):
        return [f"ds_read_b64_tr_b16 {ar(16*WBLK[n]+8*k+4*sl+2*e,2)}, {vr(vT1[sl])} offset:{RSL[n]*4096+k*2048+e*512}" for k in range(2) for sl in range(2) for e in range(2)]
    late = []
    LAG = optv("lag", 5)
    free = [0]*6; owner = [None]*6; u0 = optv("b0", AEND)
    adv = f"s_add_u32 {sG}, {sG}, {32*3584}"
    for n in range(16):
        cand = [x for x in range(6) if x < 3 or max(u0, free[x]) + LAG + 1 <= 55]
        sl_ = min(cand, key=lambda x: (max(u0, free[x]), -x))
        u0 = max(u0, free[sl_]); RSL.append(sl_)
        if u0 + 1 >= nu - 1 or n >= optv("w1n", 16):
            def mk(n=n):
                dma_ = lambda slot: [m0set(sAR, slot*4096) + f"\ns_add_u32 s59, {sG}, {n*32*3584}\n" + dmai(vr(vW1[0]), RW1, "s59")] + [dmai(vr(vW1[i]), RW1, "s59", i*1024) for i in range(1, 4)]
                def rd_(slot):
                    RSL[n] = slot; return w1rd(n)
                return dma_, rd_
            late.append(("d", mk())); u0 = 99
            continue
        if owner[sl_] is not None: put(u0 - 1, 1, (lambda m=owner[sl_]: a.wait(ds=f"w1r{m}")), "stg", front=True)
        owner[sl_] = n
        put(u0 - 1, 3, m0set(sAR, sl_*4096), "stg")
        bp = (60, 62)[n & 1]; bq = (60, 62)[~n & 1]
        if u0 < 60: put(u0, 1, f"s_add_u32 s{bq}, s{bp}, {32*3584}", "stg"); put(u0, 3, f"s_addc_u32 s{bq+1}, s{bp+1}, 0", "stg", front=True)
        for i in range(4): put(u0 + i//2, 2*(i & 1), (lambda n=n, i=i, bp=bp: a(gdma(i).replace(WB1, f"s[{bp}:{bp+1}]"), tag=f"g{n}")), "stg", front=True)
        rdi = [lambda n=n: a.wait(vm=f"g{n}")] + [(lambda x=x, n=n: a(x, tag=f"w1r{n}")) for x in w1rd(n)]
        ur = u0 + LAG
        assert n < 4 or ur > 4*(n - 4) + 5
        if ur + 1 < nu - 3:
            put(ur - 2, 3, rdi[0], "stg", front=True) if LAG % 2 == 0 and "wearly" in OPT else put(ur - 1, 1, rdi[0], "stg", front=True)
            for i, x in enumerate(rdi[1:]): put(ur + i//4, 2*((i >> 1) & 1), x, "stg")
            if sl_ >= 3: lastn = n
            free[sl_] = ur + 3
        else:
            late.append(("r", rdi)); free[sl_] = 70 + n
        u0 += 2
    put(56, 3, lambda: a.wait(ds=f"w1r{lastn}"), "stg")
    put(56, 3, "s_barrier")
    wr = lambda j, i: f"ds_write_b128 {vr(vIW+j)}, {vr(O+16*j+4*i,4)} offset:{j*4096+i*1024}"
    rdi_ = lambda i: f"ds_read_b128 {vr(O+4*i,4)}, {vr(vIW+3)} offset:{INB+i*1024}"
    if TAIL == 3:
        for j in range(3):
            for i in range(4):
                uu, sl = ((61, 3) if i == 0 else (62, i - 1)) if j == 2 else (57 + 2*j, i)
                put(uu, sl, wr(j, i))
        for i in range(12): put(nu - 1, i // 4, rdi_(i))
    else:
        for n in range(12): put(57 + n//2, 1 + 2*(n & 1) - (1 if n >= 10 else 0), wr(n // 4, n % 4))
        if "nor2b" not in OPT:
            put(61, 2, lambda: (a("s_waitcnt lgkmcnt(1)"), a("s_barrier")))
            for i in range(8): put(62, 1 + 2*(i // 4), rdi_(i))
            for i in range(8, 12): put(nu - 1, 1, rdi_(i))
        else:
            for i in range(12): put(nu - 1, 1 if i < 8 else 3, rdi_(i))
    put(61, 0, lambda: (a.wait(vm="cnt"), a(f"v_cmp_ne_u32 vcc, -1, {vr(CNT)}")))
    put(61, 1, (lambda: spin("cn", cntld, f"v_cmp_ne_u32 vcc, -1, {vr(CNT)}")), front=True)
    put(nu - 1, 0 if TAIL == 3 else 1, "s_waitcnt lgkmcnt(0)\ns_barrier", front=True)

    H2 = optv("h2", 62)
    if H2 < 64: put(H2, 3, hint(sH2))
    if not EK:
        for x in tiles(0, 1): x()
    a(landed)
    a(f"s_add_u32 s60, s28, {sG}\ns_addc_u32 s61, s29, 0")
    for x in tiles(2 if EK else 1, NP0):
        if x.pre: a(x.pre)
        x()
    a.wait(vm="kv0_3")
    kvtag(a, 0); a("s_waitcnt lgkmcnt(0)"); kvpost(0)
    a(mf(vr(SS,16), kvr(0,0,4), vr(Q,4), "0")); a(mf(vr(SS,16), kvr(0,4,4), vr(Q+4,4)))
    stamp(a, "p2_loop")
    def emit_units(me):
        a.smart = True; a.dvm = a.dds = -1
        emit_units_(me)
        a.smart = False
    def emit_units_(me):
        for u in range(nu):
            t, j = units[u]
            sc, sn = SS + 16*(u & 1), SS + 16*((u+1) & 1)
            def valu(g):
                for who, x in slots.get((u, g), []):
                    if who in ("both", me): x() if callable(x) else a(x)
                for i in range(4): a(f"v_exp_f32 {vr(sc+4*g+i)}, {vr(sc+4*g+i)}")
                for i in range(2): a(f"v_cvt_pk_bf16_f32 {vr(P+2*g+i)}, {vr(sc+4*g+2*i)}, {vr(sc+4*g+2*i+1)}")
            nx = units[u+1] if u + 1 < nu else None
            pv = units[u-1] if u else None
            if "p2st" in OPT and u and (u <= 14 if "head" in OPT else u % 8 == 0 if "tail" not in OPT else u >= 54): stamp(a, f"t{u}")
            if nx: a(mf(vr(sn,16), kvr(nx[0],0,4), vr(Q+8*nx[1],4), "0"))
            valu(0)
            if pv: a(mf(vr(O+16*pv[1],16), kvr(pv[0],12,4), vr(P+4,4)))
            valu(1)
            if nx: a(mf(vr(sn,16), kvr(nx[0],4,4), vr(Q+8*nx[1]+4,4)))
            valu(2)
            a(mf(vr(O+16*j,16), kvr(t,8,4), vr(P,4), None if u >= 4 else "0"))
            valu(3)
    assert all(0 <= u < nu for u, g in slots)
    a("s_cmp_eq_u32 s30, 0\ns_cbranch_scc1 L_idle")
    keep = (a.L, a.nvm, a.nds, dict(a.tags))
    a.L = []
    a(f"L_idle:\ns_mov_b32 s30, {S*F*2}"); emit_units("idle"); a("s_mov_b32 s30, 0\ns_branch L_att_end\nL_nopad:")
    stubs[:0] = a.L
    a.L, a.nvm, a.nds, a.tags = keep
    emit_units("stg")
    a("L_att_end:")
    a(mf(vr(O+48,16), kvr(15,12,4), vr(P+4,4)))
    stamp(a, "p2_loopend")
    if H2 == 64: a(hint(sH2))
    if optv("p2p", 1) == 0: a(f"buffer_load_dword v6, {vr(vL7)}, {WS}, {sP2} offen sc1", tag="h2")
    a("s_waitcnt lgkmcnt(0)")
    for i in range(8): a(f"v_pk_add_f32 {vr(O+2*i,2)}, {vr(O+2*i,2)}, {vr(O+16+2*i,2)}")
    for i in range(8): a(f"v_pk_add_f32 {vr(O+2*i,2)}, {vr(O+2*i,2)}, {vr(O+32+2*i,2)}")
    fin = [f"v_pk_add_f32 {vr(O+48+2*i,2)}, {vr(O+48+2*i,2)}, {vr(O+2*i,2)}" for i in (6, 0, 1, 2, 3, 4, 5, 7)]
    a(fin[0]); a(f"v_mov_b32 v2, {vr(O+48+12)}\nv_mov_b32 v4, {vr(O+48+12)}\nv_mov_b32 v3, {fhex(2.0**60)}"); a(fin[1])
    a(f"v_permlane32_swap_b32 v2, v4\nv_med3_f32 v2, v4, {sLO}, v3\nv_cmp_neq_f32 vcc, v2, v4")
    for x in fin[2:]: a(x)
    a("s_cbranch_vccnz L_safe\nL_safe_done:\nv_rcp_f32 v4, v4\nv_mov_b32 v3, 0")
    if H2 == 65: a(hint(sH2))
    safe_path(stubs)
    OP = 176
    for hlf in range(2):
        for i in range(4*hlf, 4*hlf+4): a(f"v_pk_mul_f32 {vr(O+48+2*i,2)}, {vr(O+48+2*i,2)}, v[4:5] op_sel_hi:[1,0]")
        for i in range(4*hlf, 4*hlf+4): a(f"v_cvt_pk_bf16_f32 {vr(OP+i)}, {vr(O+48+2*i)}, {vr(O+48+2*i+1)}")
        if hlf: a(f"v_cndmask_b32 {vr(OP+6)}, {vr(OP+6)}, v3, {MHI}\nv_cndmask_b32 {vr(OP+7)}, {vr(OP+7)}, v3, {MHI}")
        a(f"v_min_u32 {vr(OP+4*hlf)}, -2, {vr(OP+4*hlf)}")
        a(f"buffer_store_dwordx4 {vr(OP+4*hlf,4)}, {vL16}, {WS}, {sOo} offen offset:{1024*hlf} sc1")
    if H2 == 99: a(hint(sH2))
    stamp(a, "p2_end")
    a(f"s_cmp_ge_u32 {sDB}, 7\ns_cbranch_scc1 L_tail")
    b = Asm()
    b(f"L_tail:\ns_mul_i32 s3, {sW}, 448\ns_mul_i32 s56, {sLQ}, 14\ns_add_u32 s3, s3, s56\ns_lshl_b32 s3, s3, 12\ns_sub_u32 s56, {sSB}, {sFB}\ns_lshl_b32 s56, s56, 10\ns_add_u32 s3, s3, s56")
    if "notaildr" not in OPT: b("s_waitcnt vmcnt(0)")
    for i in range(NT - 4, 4 if "notail" not in OPT else 0):
        for k in range(2): b(f"s_add_u32 s56, s3, {(112*i + 6*k)*4096}\nbuffer_load_dword v5, {vr(vIT+1)}, {RW2}, s56 offen")
    b("s_waitcnt vmcnt(0)\ns_branch L_fin")
    stubs.extend(b.L)
    return late, WBLK

def safe_path(stubs):
    b = Asm(); b.uid = 900000
    QS = Q + 24; OO = O + 48; K_ = KVB
    def ldt(n):
        for p_ in range(n): b(f"buffer_load_dwordx4 {vr(K_+4*p_,4)}, {vL16}, {WS}, s54 offen offset:{p_*1024} sc1")
        b("s_add_u32 s54, s54, 4096\ns_waitcnt vmcnt(0)")
        b(mf(vr(SS,16), vr(K_,4), vr(QS,4), "0")); b(mf(vr(SS,16), vr(K_+4,4), vr(QS+4,4)))
    b(f"L_safe:\ns_lshl_b32 s54, {sH}, 18\ns_add_u32 s3, s54, {64*4096}\nv_mov_b32 v2, 0xff800000")
    b("L_safe_max:")
    ldt(2)
    for i in range(8): b(f"v_max3_f32 v2, v2, {vr(SS+2*i)}, {vr(SS+2*i+1)}")
    b("s_cmp_lt_u32 s54, s3\ns_cbranch_scc1 L_safe_max")
    b("v_mov_b32 v4, v2\nv_permlane32_swap_b32 v2, v4\nv_max_f32 v2, v2, v4\nv_sub_f32 v2, 0, v2")
    for t in split3("v2", "v4", "v5"): b(t)
    b(f"s_mov_b32 s54, 0x07060302\nv_perm_b32 v2, v4, v2, s54\nv_lshrrev_b32 v5, 16, v5")
    b(f"v_cndmask_b32 {vr(QS+6)}, {vr(QS+6)}, v2, {MHI}\nv_cndmask_b32 {vr(QS+7)}, {vr(QS+7)}, v5, {MHI}")
    for i in range(16): b(f"v_mov_b32 {vr(OO+i)}, 0")
    b(f"s_lshl_b32 s54, {sH}, 18")
    b("L_safe_pv:")
    ldt(4)
    for i in range(16): b(f"v_exp_f32 {vr(SS+i)}, {vr(SS+i)}")
    for i in range(8): b(f"v_cvt_pk_bf16_f32 {vr(P+i)}, {vr(SS+2*i)}, {vr(SS+2*i+1)}")
    b(mf(vr(OO,16), vr(K_+8,4), vr(P,4))); b(mf(vr(OO,16), vr(K_+12,4), vr(P+4,4)))
    b("s_nop 7\ns_cmp_lt_u32 s54, s3\ns_cbranch_scc1 L_safe_pv")
    b(f"v_mov_b32 v2, {vr(OO+12)}\nv_mov_b32 v4, {vr(OO+12)}\nv_permlane32_swap_b32 v2, v4\ns_branch L_safe_done")
    stubs.extend(b.L)

vW2 = [8, 9, 10, 11]; vT2 = [12, 13]; vT3 = [246, 247]
sG2 = "s54"; sXA = "s61"
RED = 0
def slot_m0(slot): return m0set(sAR, slot*4096) if slot < 6 else m0set(sXA, (slot-6)*4096)
def slot_rd(slot): return (vT2, slot*4096) if slot < 6 else (vT3, (slot-6)*4096)
def w2dma(g, slot):
    if "now2" in OPT: return ["s_nop 0"] * 4
    return [(slot_m0(slot) + f"\ns_add_u32 s59, {sG2}, {g*32*4096}\n" if i == 0 else "") + dmai(vr(vW2[i]), RW2, "s59", i*1024) for i in range(4)]
def w2rd(dst, va, off):
    return [f"ds_read_b64_tr_b16 {dst(4*sl+2*e)}, {vr(va[sl])} offset:{off+e*1024}" for sl in range(2) for e in range(2)]

def tagcheck(a, regs, t="v2"):
    regs = list(regs)
    a(f"v_max3_u32 {t}, {vr(regs[0])}, {vr(regs[1])}, {vr(regs[2])}"); regs = regs[3:]
    while len(regs) >= 2:
        a(f"v_max3_u32 {t}, {t}, {vr(regs[0])}, {vr(regs[1])}"); regs = regs[2:]
    if regs: a(f"v_max_u32 {t}, {t}, {vr(regs[0])}")
    a(f"v_cmp_eq_u32 vcc, -1, {t}")

def p3(a, w1rd, stubs):
    OF = RING; AC = AC0; WFB = [176, 184, 224, 232]
    vT0, vT1_ = 4, 5
    EXO = TRB = 5*4096
    def em(x): x() if callable(x) else a(x)
    T = [it for kind, it in w1rd if kind == "d"]; NL = len(T)
    for g in range(6):
        T.append((lambda slot, g=g: w2dma(g, slot),
                  lambda slot, g=g: sum([w2rd(lambda o, k=k: vr(PARK+16*g+8*k+o, 2), slot_rd(slot)[0], slot_rd(slot)[1] + k*2048) for k in range(2)], [])))
    RES = []
    def res(slot):
        RES.append(slot); return w2dma(5 + len(RES), slot)
    NA = max(optv("na", 2), NL); NB = min(optv("nb", 4), len(T) - NA); NX = len(T) - NA - NB
    assert NX <= 2 and NA <= 5
    asl = [3, 4, 0, 1, 2]; bsl = (asl[NA:] + asl)[:NB]
    def w2setup():
        swz128(a, vr(vW2[0]), 4096)
        for i in range(1, 4): a(f"v_add_u32 {vr(vW2[i])}, {i*(8*4096-1024)}, {vr(vW2[0])}")
        a(f"s_mul_i32 {sG2}, {sW}, {448*4096}\ns_lshl_b32 s3, {sSB}, 7\ns_add_u32 {sG2}, {sG2}, s3")
    A = a
    if NL == 0: w2setup()
    its = []
    for i in range(NA):
        l = [(lambda x=x: A(x, tag="wa")) for x in T[i][0](asl[i])]
        if i == 2: l[0] = (lambda f=l[0]: (A.wait(ds="lr"), f()))
        its += l
    a = Weaver(A, its, optv("ga", 10))
    if NL: w2setup()
    for kind, items in w1rd:
        if kind == "r":
            for x in items: x(); a.n += 1; a.kick()
    A.mark("lr")
    assert len(a.items) >= len(its) - 8 and (not NL or True)
    a(f"v_bfe_u32 v15, {vL}, 4, 1\nv_lshlrev_b32 v15, 5, v15\nv_and_b32 v5, 3, {vL}\nv_lshl_add_u32 v15, v5, 3, v15\ns_lshl_b32 s3, {sST}, 6\nv_add_u32 v5, s3, v15")
    trbase(a, vr(vT2[0]), 4, "v5")
    a(f"v_add_u32 {vr(vT2[0])}, {sAR}, {vr(vT2[0])}\nv_xor_b32 {vr(vT2[1])}, 64, {vr(vT2[0])}")
    a(f"v_and_b32 v5, 32, v15\ns_lshl_b32 s3, {sKH}, 5\nv_add3_u32 v15, v15, v5, s3")
    trbase(a, vr(vT0), 4, "v15", sw=5)
    a(f"s_mul_i32 s3, {sKH}, {224*128}\nv_add_u32 {vr(vT0)}, s3, {vr(vT0)}\nv_xor_b32 {vr(vT1_)}, 32, {vr(vT0)}")
    def rd(k):
        hh, j = k >> 1, k & 1
        for t, va in enumerate((vT0, vT1_)):
            for e in range(2):
                a(f"ds_read_b64_tr_b16 {vr(WFB[k&3]+4*t+2*e,2)}, {vr(va)} offset:{(28*hh+16*j+8*e)*128}")
        a.mark(f"wo{k}")
    if "g2" in OPT: a(f"buffer_load_dword v254, {vr(vL7)}, {WS}, {sP2} offen sc1")
    if optv("p2p", 1) == 1: a(f"buffer_load_dword v6, {vr(vL7)}, {WS}, {sP2} offen sc1", tag="h2")
    rd(0); rd(1)
    a(f"v_min_u32 v2, 6, {vL}\nv_lshlrev_b32 v15, 12, v2\ns_lshl_b32 s60, {sSB}, 7\ns_add_u32 s60, s60, {HT + 32768}")
    for t in range(2):
        for i in range(2): a(f"v_permlane32_swap_b32 {vr(XR+4*t+i)}, {vr(XR+4*t+2+i)}")
    for t in range(2):
        for i in range(4): a(f"v_lshlrev_b32 {vr(AC+8*t+2*i)}, 16, {vr(XR+4*t+i)}\nv_and_b32 {vr(AC+8*t+2*i+1)}, 0xffff0000, {vr(XR+4*t+i)}")
    if optv("p2p", 1) == 2: a(f"buffer_load_dword v6, {vr(vL7)}, {WS}, {sP2} offen sc1", tag="h2")
    vEW, vER, vSA = XR+3, XR+4, XR+5
    a(f"v_add_u32 {vr(vEW)}, {sAR}, {vL16}\ns_xor_b32 s3, {sW}, 2\ns_mul_i32 s3, s3, {ARENA}\ns_add_u32 s3, s3, {ARENA0}\nv_add_u32 {vr(vER)}, s3, {vL16}")
    a(f"v_lshlrev_b32 {vr(vSA)}, 3, {vL}\ns_lshl_b32 s62, {sTile}, 12\ns_add_u32 s62, s62, {ST}")
    a(f"s_lshl_b32 {sXA}, {sW}, 13\ns_add_u32 {sXA}, {sXA}, {RED + 24576}\ns_sub_u32 s3, {sXA}, {sAR}\nv_add_u32 {vr(vT3[0])}, s3, {vr(vT2[0])}\nv_xor_b32 {vr(vT3[1])}, 64, {vr(vT3[0])}")
    a(f"v_and_b32 v2, 31, {vL}\nv_mul_u32_u24 v2, 72, v2\nv_lshrrev_b32 v3, 5, {vL}\nv_lshl_add_u32 v2, v3, 3, v2\nv_add_u32 {vr(XR)}, {sAR}, v2")
    a(f"v_bfe_u32 v2, {vL}, 2, 2\nv_lshl_add_u32 v2, v3, 3, v2\nv_mul_u32_u24 v2, 72, v2\nv_bfe_u32 v3, {vL}, 4, 1\nv_lshl_add_u32 v2, v3, 5, v2\nv_and_b32 v3, 3, {vL}\nv_lshl_add_u32 v2, v3, 3, v2\nv_add_u32 {vr(XR+1)}, {sAR}, v2")
    a(f"s_lshl1_add_u32 s63, {sTile}, {sKH}\ns_lshl_b32 s63, s63, 14\ns_add_u32 s63, s63, {OB}")
    a.flush(); a = A
    tour(a, 1)
    if optv("p2p", 1) == 3: a(f"buffer_load_dword v6, {vr(vL7)}, {WS}, {sP2} offen sc1", tag="h2")
    def old(x, masked=False, fill=[]):
        x("s_mov_b32 s3, s63")
        for k in range(16):
            if k and k % 4 == 0: x("s_add_u32 s3, s3, 4096")
            if masked: x(f"s_mov_b64 exec, -1\nv_cmpx_eq_u32 vcc, -1, {vr(OF+4*k)}")
            x(f"buffer_load_dwordx4 {vr(OF+4*k,4)}, {vL16}, {WS}, s3 offen offset:{(k%4)*1024} sc1", tag=f"o{k}")
            if k >= 6:
                for _ in range(6):
                    if fill: em(fill.pop(0))
        assert not fill
    if "g2" in OPT: gate2(a, "h2", "v6", "v254", vr(vL7), sP2, "h2")
    else: gate(a, "h2", "v6", vr(vL7), sP2, "h2")
    stamp(a, "p3_gate")
    fl = [lambda: rd(2), lambda: a.wait(vm="wa")] + sum([T[i][1](asl[i]) for i in range(NA)], []) + [lambda: a.mark("pr")]
    old(a, fill=fl)
    b = Asm()
    b(f"L_refo:\n{SPIN}\ns_waitcnt vmcnt(0)")
    old(b, True)
    b("s_mov_b64 exec, -1\ns_waitcnt vmcnt(0)\ns_setpc_b64 s[76:77]")
    stubs.extend(b.L)
    def ocheck(g):
        lb = a.lab("ock"); ls = a.lab("ort"); regs = [OF+16*g+4*i for i in range(4)]
        def pre(): a.wait(vm=f"o{4*g+3}"); tagcheck(a, regs)
        def post():
            a(f"s_cbranch_vccnz {ls}\n{lb}:")
            b = Asm(); b(f"{ls}:\ns_call_b64 s[76:77], L_refo"); tagcheck(b, regs); b(f"s_cbranch_vccnz {ls}\ns_branch {lb}")
            stubs.extend(b.L)
        return pre, post
    pre, post = ocheck(0); pre(); a.wait(ds="pr"); post()
    stamp(a, "p3_o")
    fill = sum([T[NA+i][0](bsl[i]) for i in range(NB)], [])
    F0 = min(optv("f0", 16), 16 - len(fill))
    mm = lambda k, t: mf(vr(AC+16*t,16), vr(WFB[k&3]+4*t,4), vr(OF+4*k,4), "0" if (k == 0 and t == 1) else None)
    SK3 = optv("sk3", 0)
    for k in range(16 - SK3):
        a.wait(ds=f"wo{k}")
        ck = ocheck((k+1)//4) if (k % 4 == 3 and k < 15) else None
        for t in range(2):
            a(mm(k, t))
            if t == 0 and k + 3 < 16: rd(k+3)
            if t == 0 and ck: ck[0]()
            if t == 0 and k == optv("hsk", 10): a("s_barrier\n" + hintn())
            if t == 1 and k >= F0 and fill: a(fill.pop(0), tag="b2")
        if ck: ck[1]()
    exw = [f"ds_write_b128 {vr(vEW)}, {vr(AC+16+4*i,4)} offset:{EXO+i*1024}" for i in range(4)]
    for k in range(16 - SK3, 16):
        a.wait(ds=f"wo{k}"); a(mm(k, 1))
        if k == 12: rd(15)
        if fill: a(fill.pop(0), tag="b2")
    for k in range(16 - SK3, 16):
        a(mm(k, 0))
        if k >= 16 - SK3 + 1: a(exw.pop(0))
    assert not fill
    stamp(a, "p3_mm")
    for x in exw: a(x)
    a("s_waitcnt lgkmcnt(0)\ns_barrier")
    for i in range(4): a(f"ds_read_b128 {vr(HH+4*i,4)}, {vr(vER)} offset:{EXO+i*1024}", tag=f"ex{i}")
    a(f"buffer_load_dword {vr(XR+2)}, v15, {WS}, s60 offen sc1", tag="hs")
    for i in range(8):
        if i % 2 == 0: a.wait(ds=f"ex{i//2}")
        a(f"v_pk_add_f32 {vr(HH+2*i,2)}, {vr(HH+2*i,2)}, {vr(AC+2*i,2)}")
        if i == 1: a(f"v_pk_add_f32 v[2:3], {vr(HH,2)}, {vr(HH+2,2)}\nv_pk_mul_f32 v[4:5], {vr(HH,2)}, {vr(HH,2)}\nv_pk_fma_f32 v[4:5], {vr(HH+2,2)}, {vr(HH+2,2)}, v[4:5]")
        if i > 1: a(f"v_pk_add_f32 v[2:3], v[2:3], {vr(HH+2*i,2)}\nv_pk_fma_f32 v[4:5], {vr(HH+2*i,2)}, {vr(HH+2*i,2)}, v[4:5]")
    a("v_add_f32 v2, v2, v3\nv_add_f32 v3, v4, v5\nv_mov_b32 v4, v2\nv_mov_b32 v5, v3\ns_mov_b32 exec_hi, -1\nv_permlane32_swap_b32 v4, v2\nv_permlane32_swap_b32 v5, v3\nv_pk_add_f32 v[2:3], v[2:3], v[4:5]\nv_min_u32 v3, -2, v3")
    a(f"s_mov_b32 exec_hi, 0\nbuffer_store_dwordx2 v[2:3], {vr(vSA)}, {WS}, {sSo} offen sc1\ns_mov_b32 exec_hi, -1", tag="st")
    stamp(a, "p3_stpub")
    NC1 = max(optv("nc1", 2), NX)
    a = Weaver(A, [(lambda x=x: A(x, tag="c1")) for i in range(NC1) for x in (T[NA+NB+i][0](6+i) if i < NX else res(6+i))], optv("gc", 4))
    def sld(masked=False):
        for i in range(7):
            if masked: a(f"s_mov_b64 exec, -1\nv_cmpx_eq_u32 vcc, -1, {vr(OF+2*i+1)}")
            a(f"buffer_load_dwordx2 {vr(OF+2*i,2)}, {vr(vSA)}, {WS}, s62 offen offset:{i*512} sc1")
    if NB: a.wait(vm="b2")
    for i in range(NB):
        for x in T[NA+i][1](bsl[i]): a(x)
    a.flush(); a = A
    if "nodr" not in OPT: a.wait(vm="st")
    gate(a, "hs", vr(XR+2), "v15", "s60", "hs")
    stamp(a, "p3_sgate")
    sld(); a.mark("sl")
    a(f"v_min_u32 v2, 7, {vL}\nv_lshlrev_b32 v15, 7, v2\ns_lshl2_add_u32 s60, {sDB}, {sW}\ns_lshl_b32 s60, s60, 10\ns_add_u32 s60, s60, {HT + 2*32768}")
    if NX:
        a.wait(vm="c1")
        for i in range(NX):
            for x in T[NA+NB+i][1](6+i): a(x)
    pool = [i for i in (0, 1, 2, 3, 4, 6, 7, 5) if i not in RES]
    NC = optv("nc", 1); ND = optv("nd", 3); NE = optv("ne", 3)
    if NC: a("s_waitcnt lgkmcnt(0)")
    for i in range(NC):
        for x in res(pool.pop(0)): a(x)
    d1 = sum([res(pool.pop(0)) for i in range(min(ND, len(pool)))], [])
    d2 = sum([res(pool.pop(0)) for i in range(max(0, len(pool) - NE))], [])
    d3 = sum([res(pool.pop(0)) for i in range(len(pool))], [])
    lp = a.lab("s"); lo = a.lab("so")
    a(f"s_mov_b32 s3, {fhex(1.0 + 1e-5)}\nv_mov_b32 v6, {fhex(1e-10)}")
    if optv("h3p", 2) == 2: a("s_barrier\n" + hintn())
    a.wait(vm="sl")
    tagcheck(a, [OF+2*i+1 for i in range(7)])
    b = Asm(); keep = a.L; a.L = []; nv = a.nvm
    a(f"{lp}:\n{SPIN}"); sld(True); a("s_mov_b64 exec, -1\ns_waitcnt vmcnt(0)"); tagcheck(a, [OF+2*i+1 for i in range(7)]); a(f"s_cbranch_vccnz {lp}\ns_branch {lo}")
    stubs.extend(a.L); a.L = keep; a.nvm = nv
    a(f"s_cbranch_vccnz {lp}\n{lo}:")
    if optv("h3p", 2) == 3: a("s_barrier\n" + hintn())
    stamp(a, "p3_stats")
    for i, k in ((0, 1), (2, 3), (4, 5), (0, 2), (4, 6), (0, 4)):
        a(f"v_pk_add_f32 {vr(OF+2*i,2)}, {vr(OF+2*i,2)}, {vr(OF+2*k,2)}")
    a(f"v_mov_b32 v4, {vr(OF)}\nv_mov_b32 v5, {vr(OF+1)}\nv_permlane32_swap_b32 v4, {vr(OF)}\nv_permlane32_swap_b32 v5, {vr(OF+1)}\nv_pk_add_f32 v[2:3], {vr(OF,2)}, v[4:5]")
    a(f"v_mul_f32 v2, {fhex(-1.0/D)}, v2\nv_mul_f32 v3, {fhex(1.0/D)}, v3\nv_fma_f32 v3, -v2, v2, v3\nv_max_f32 v3, 0, v3\nv_fma_f32 v3, v3, s3, v6\nv_rsq_f32 v4, v3\nv_mul_f32 v2, v2, v4")
    for t in range(2):
        for i in range(4*t, 4*t+4): a(f"v_pk_fma_f32 {vr(AC+2*i,2)}, {vr(HH+2*i,2)}, v[4:5], v[2:3] op_sel_hi:[1,0,0]")
        for i in range(4*t, 4*t+4): a(f"v_cvt_pk_bf16_f32 {vr(AC+16+i)}, {vr(AC+2*i)}, {vr(AC+2*i+1)}")
        for i in range(2): a(f"ds_write_b64 {vr(XR)}, {vr(AC+16+4*t+2*i,2)} offset:{TRB+t*32+i*16}")
    for j in range(2):
        for e in range(2): a(f"ds_read_b64_tr_b16 {vr(AC1+4*j+2*e,2)}, {vr(XR+1)} offset:{TRB+(16*j+4*e)*72}")
    for j in range(2):
        a(f"s_waitcnt lgkmcnt({2-2*j})\nv_min_u32 {vr(AC1+4*j)}, -2, {vr(AC1+4*j)}")
        a(f"buffer_store_dwordx4 {vr(AC1+4*j,4)}, {vHS}, {WS}, {sHo} offen offset:{j*1024} sc1", tag="hst")
    if optv("h3p", 2) == 4: a("s_barrier\n" + hintn())
    stamp(a, "p3_end")
    return d1, d2, RES, d3

def p45(a, stubs, WBLK, rest):
    vRW = [240, 241, 242]; vRW5 = [241, 240, 242]; vRR = 243; vU = 244; vOUT = 245
    sB = ["s64", "s65", "s66", "s67"]; sOUT = "s68"; sL = "s69"
    d1, rest, RES, d3 = rest
    NDEF = len(d3) // 2
    vH4, vHP = vr(vU), "v3"
    A = a
    if optv("p3i", -1) >= 0: d1.insert(optv("p3i", -1), lambda: A(f"buffer_load_dword v6, v15, {WS}, s60 offen sc1", tag="h3"))
    a = Weaver(A, d1, optv("gd", 5))
    a(f"v_min_u32 v2, 6, {vL}\nv_lshlrev_b32 {vH4}, 7, v2")
    a(f"s_lshl3_add_u32 s3, {sDB}, {sW}\ns_lshl_b32 {sB[0]}, s3, 15\ns_add_u32 {sB[0]}, {sB[0]}, {HN}\ns_add_u32 {sB[1]}, {sB[0]}, {128*1024}")
    a(f"s_mul_i32 {sB[2]}, s3, {28*1024}\ns_add_u32 {sB[2]}, {sB[2]}, {UB}\ns_add_u32 {sB[3]}, {sB[2]}, {112*1024}")
    a(f"s_cmp_lt_u32 {sLQ}, 7\ns_cselect_b32 {sB[0]}, {sB[0]}, s14\ns_cselect_b32 {sB[1]}, {sB[1]}, s14")
    a(f"s_cmp_ge_u32 {sFB}, 14\ns_cselect_b32 s3, 256, 0\nv_xor_b32 {vr(vUS)}, s3, {vL16}")
    nks = [32, 32, 28, 28]
    wa = lambda k: 16*WBLK[k >> 1] + 8*(k & 1)
    steps = [(p, k) for p in range(4) for k in range(nks[p])]
    NS = len(steps); DEP = 12; GS = 4
    sLg = ["s71", "s72", "s73"]
    def ld(i):
        p, k = steps[i]
        sl_ = sLg[(i // 4) % 3]
        if k % 4 == 0:
            a(f"s_add_u32 {sl_}, {sB[p]}, {k*1024}")
        a(f"buffer_load_dwordx4 {vr(RING+4*(i%DEP),4)}, {vL16}, {WS}, {sl_} offen offset:{(k%4)*1024} sc1", tag=f"f{i}")
    b = Asm()
    b(f"L_refresh:\n{SPIN}\ns_waitcnt vmcnt(0)")
    for i in range(DEP):
        b(f"v_cmpx_eq_u32 vcc, -1, {vr(RING+4*i)}\nbuffer_load_dwordx4 {vr(RING+4*i,4)}, {vL16}, {WS}, {sLg[i//4]} offen offset:{(i%4)*1024} sc1\ns_mov_b64 exec, -1")
    b("s_waitcnt vmcnt(0)\ns_setpc_b64 s[76:77]")
    stubs.extend(b.L)
    def check(i0):
        idx = list(range(i0, i0+GS))
        lb = a.lab("ck"); ls = a.lab("rt")
        regs = [RING+4*(i % DEP) for i in idx]
        def pre():
            a.wait(vm=f"f{idx[-1]}")
            tagcheck(a, regs)
        def post():
            a(f"s_cbranch_vccnz {ls}\n{lb}:")
            b = Asm()
            b(f"{ls}:\ns_call_b64 s[76:77], L_refresh")
            tagcheck(b, regs)
            b(f"s_cbranch_vccnz {ls}\ns_branch {lb}")
            stubs.extend(b.L)
        return pre, post
    for p_ in range(1, 4):
        a(f"s_xor_b32 s3, {sW}, {p_}\ns_mul_i32 s3, s3, 6144\nv_add_u32 {vr(vRW[p_-1])}, s3, {vL16}")
    a(f"s_mul_i32 s3, {sW}, 6144\nv_add_u32 {vr(vRR)}, s3, {vL16}")
    OUTB = ARENA0
    HALF = "ohalf" in OPT
    a(f"v_and_b32 v2, 31, {vL}\nv_mul_u32_u24 {vr(vOUT)}, 144, v2\nv_lshrrev_b32 v4, 5, {vL}\nv_lshl_add_u32 {vr(vOUT)}, v4, 4, {vr(vOUT)}")
    a(f"s_mul_i32 s3, {sST}, {32*144}\ns_lshl_b32 {sOUT}, {sKH}, 5\ns_add_u32 s3, s3, {sOUT}\nv_add_u32 {vr(vOUT)}, s3, {vr(vOUT)}")
    a(f"s_lshl2_add_u32 s3, {sSB}, {sW}\ns_mul_i32 {sOUT}, s3, {16*896}\ns_lshl_b32 s3, {sDB}, 7\ns_add_u32 {sOUT}, {sOUT}, s3")
    a(f"v_lshlrev_b32 {vr(B2)}, 16, {vr(B2)}")
    for i in range(8): a(f"v_pk_add_f32 {vr(HH+2*i,2)}, {vr(HH+2*i,2)}, {vr(B2,2)} op_sel_hi:[1,0]")
    a.flush(); a = A
    if optv("inj", 0):
        a(f"s_or_b32 s3, {sDB}, {sSB}\ns_or_b32 s3, s3, {sW}\ns_cselect_b32 s3, 0, {fhex(optv('inj', 0)/1000)}\ns_mov_b64 exec, 1\nv_add_f32 {vr(HH)}, s3, {vr(HH)}\ns_mov_b64 exec, -1")
    c0 = -2.0*math.sqrt(2.0/math.pi)*math.log2(math.e); c1 = c0*0.044715
    def writes(p):
        x = (AC0, AC1)[p & 1]; rw = vRW if p < 2 else vRW5
        return [f"ds_write_b128 {vr(rw[p_-1])}, {vr(x+8*p_+4*i,4)} offset:{RED+(p_-1)*2048+i*1024}" for p_ in (2, 3, 1) for i in range(2)]
    def own(p):
        x = (AC0, AC1)[p & 1]; t = p & 1
        if p >= 2: return [f"v_pk_add_f32 {vr(x+2*i,2)}, {vr(x+2*i,2)}, {vr(HH+8*t+2*i,2)}" for i in range(4)]
        return sum([[f"v_lshlrev_b32 v4, 16, {vr(B1+i)}", f"v_and_b32 v5, 0xffff0000, {vr(B1+i)}", f"v_pk_add_f32 {vr(x+2*i,2)}, {vr(x+2*i,2)}, v[4:5]"] for i in range(4)], [])
    def reads(p):
        x = (AC0, AC1)[p & 1]
        return [(lambda i=i: a(f"ds_read_b128 {vr(x+8+4*i,4)}, {vr(vRR)} offset:{RED+i*1024}", tag=f"rr{i}")) for i in range(6)]
    def finish(p):
        x = (AC0, AC1)[p & 1]; t = p & 1; it = []
        for p_ in range(1, 4):
            it.append(lambda p_=p_: a.wait(ds=f"rr{2*p_-1}"))
            it += [f"v_pk_add_f32 {vr(x+2*i,2)}, {vr(x+2*i,2)}, {vr(x+8*p_+2*i,2)}" for i in range(4)]
        if p < 2:
            it += [f"v_pk_mul_f32 {vr(x+8+2*i,2)}, {vr(x+2*i,2)}, {vr(x+2*i,2)}" for i in range(4)]
            it += [f"v_pk_fma_f32 {vr(x+8+2*i,2)}, {vr(x+8+2*i,2)}, v[14:15], v[14:15] op_sel:[0,0,1] op_sel_hi:[1,0,1]" for i in range(4)]
            it += [f"v_pk_mul_f32 {vr(x+8+2*i,2)}, {vr(x+8+2*i,2)}, {vr(x+2*i,2)}" for i in range(4)]
            it += [f"v_exp_f32 {vr(x+8+i)}, {vr(x+8+i)}" for i in range(8)]
            it += [f"v_pk_add_f32 {vr(x+8+2*i,2)}, {vr(x+8+2*i,2)}, 1.0 op_sel_hi:[1,0]" for i in range(4)]
            it += [f"v_rcp_f32 {vr(x+8+i)}, {vr(x+8+i)}" for i in range(8)]
            it += [f"v_pk_mul_f32 {vr(x+2*i,2)}, {vr(x+2*i,2)}, {vr(x+8+2*i,2)}" for i in range(4)]
            it += [f"v_cvt_pk_bf16_f32 {vr(x+16+i)}, {vr(x+2*i)}, {vr(x+2*i+1)}" for i in range(4)]
            it.append(f"v_min_u32 {vr(x+16)}, -2, {vr(x+16)}")
            it.append(f"buffer_store_dwordx4 {vr(x+16,4)}, {vr(vUS)}, {WS4}, {(sUo, sU2)[t]} offen sc1")
        else:
            it += [f"v_cvt_pk_bf16_f32 {vr(x+16+i)}, {vr(x+2*i)}, {vr(x+2*i+1)}" for i in (0, 2, 1, 3)]
            it += [f"v_permlane32_swap_b32 {vr(x+16)}, {vr(x+18)}", f"v_permlane32_swap_b32 {vr(x+17)}, {vr(x+19)}"]
            it.append(f"ds_write_b128 {vr(vOUT)}, {vr(x+16,4)} offset:{OUTB + t*64}")
            sh, m = (2, 3) if HALF else (3, 7)
            if t == 0:
                it += [f"v_lshrrev_b32 v4, {sh}, {vL}", f"v_and_b32 v5, {m}, {vL}", "v_mul_u32_u24 v8, 144, v4", "v_mul_u32_u24 v9, 896, v4",
                       "v_lshl_add_u32 v8, v5, 4, v8", "v_lshl_add_u32 v9, v5, 4, v9", f"s_mul_i32 s3, {sW}, {16*144}\nv_add_u32 v8, s3, v8", f"v_add_u32 v10, {8*896}, v9"]
            if HALF:
                it += [("D", 2), "s_waitcnt lgkmcnt(0)\ns_barrier", f"ds_read_b128 {vr(x,4)}, v8 offset:{OUTB + t*64}", ("D", 4),
                       "s_waitcnt lgkmcnt(0)", f"buffer_store_dwordx4 {vr(x,4)}, v9, {ROUT}, {sOUT} offen offset:{t*64} sc1"]
            elif t:
                it += ["s_waitcnt lgkmcnt(0)\ns_barrier", f"ds_read_b128 {vr(x,4)}, v8 offset:{OUTB}", f"ds_read_b128 {vr(x+4,4)}, v8 offset:{OUTB + 8*144}",
                       "s_waitcnt lgkmcnt(1)", f"buffer_store_dwordx4 {vr(x,4)}, v9, {ROUT}, {sOUT} offen sc1",
                       "s_waitcnt lgkmcnt(0)", f"buffer_store_dwordx4 {vr(x+4,4)}, v10, {ROUT}, {sOUT} offen sc1"]
        return it
    def unpk(items):
        import re
        out = []
        for x in items:
            m = re.fullmatch(r"v_pk_(add|mul)_f32 v\[(\d+):\d+\], v\[(\d+):\d+\], v\[(\d+):\d+\]", x) if isinstance(x, str) else None
            if m:
                d, p_, q_ = int(m.group(2)), int(m.group(3)), int(m.group(4))
                out += [f"v_{m.group(1)}_f32 v{d+i}, v{p_+i}, v{q_+i}" for i in range(2)]
            elif isinstance(x, str) and x.startswith("v_pk_fma_f32"):
                d = int(re.search(r"v\[(\d+):", x).group(1)); out += [f"v_fma_f32 v{d+i}, v{d+i}, v14, v15" for i in range(2)]
            elif isinstance(x, str) and x.startswith("v_pk_add_f32") and "1.0" in x:
                d = int(re.search(r"v\[(\d+):", x).group(1)); out += [f"v_add_f32 v{d+i}, 1.0, v{d+i}" for i in range(2)]
            else: out.append(x)
        return out
    def woven(p):
        o = unpk(own(p)); it = ["s_barrier"] if p else []
        WD = optv("wd", 1) if p == 0 else optv("wdd", 2); n = -(-len(o) // 6)
        for w_ in writes(p):
            it += [w_] + o[:n] + [("D", WD)]; o = o[n:]
        it += [("D", optv("bd", 1)), "s_waitcnt lgkmcnt(0)\ns_barrier"]
        r = reads(p)
        it += r[:3] + [("D", 1)] + r[3:] + [("D", optv("rd", 3))]
        return it + (unpk(finish(p)) if "pk" not in OPT else finish(p))
    def emit(x):
        if isinstance(x, tuple): return
        x() if callable(x) else a(x)
    def cost(x):
        if callable(x): return 1
        if x.startswith("ds_write"): return 2
        if x.startswith(("v_exp", "v_rcp")): return 2
        return 1
    if optv("p3i", -1) < 0:
        a.wait(vm="hst")
        a(f"buffer_load_dword v6, v15, {WS}, s60 offen sc1", tag="h3")
    gate(a, "h3", "v6", "v15", "s60", "h3")
    stamp(a, "p4_gate")
    if "skip4" in OPT:
        assert optv("nmb", 0) == 0
        a(f"s_cmp_ge_u32 {sLQ}, 7\ns_cbranch_scc1 L_no4")
        b = Asm()
        b("L_no4:")
        for x in rest + d3: b(x)
        b(f"s_lshl2_add_u32 s3, {sDB}, {sW}\ns_lshl_b32 s3, s3, 10\ns_add_u32 s60, s3, {HT + 3*32768}\ns_add_u32 s3, s60, 32768")
        b(f"L_no4w:\n{SPIN}\nbuffer_load_dword {vHP}, {vH4}, {WS}, s3 offen sc1\ns_waitcnt vmcnt(0)\nv_cmp_eq_u32 vcc, -1, {vHP}\ns_cbranch_vccnz L_no4w\ns_branch L_wait4")
        stubs.extend(b.L)
    for i in range(DEP): ld(i)
    a(f"v_mov_b32 v14, {fhex(c1)}\nv_mov_b32 v15, {fhex(c0)}")
    a(f"s_lshl2_add_u32 s3, {sDB}, {sW}\ns_lshl_b32 s3, s3, 10\ns_add_u32 s60, s3, {HT + 2*32768}")
    for x in rest: a(x)
    a.mark("w2all")
    pre, post = check(0)
    pre(); post()
    stamp(a, "p4_first")
    poll = lambda tg: (lambda: a(f"s_add_u32 s60, s60, 32768\nbuffer_load_dword {vHP}, {vH4}, {WS}, s60 offen sc1", tag=tg))
    UG = optv("ug", 64)
    SK = optv("sk", 8); MV2 = optv("mv2", 4)
    NMB = min(optv("nmb", 0), 16 - NDEF)
    base = [0, 32, 64, 92]
    for p in range(4):
        n = nks[p]; acc = (AC0, AC1)[p & 1]
        sk = SK if p & 1 else 0
        seq = [(k, sl) for k in range(n - sk) for sl in range(2)] + [(k, 1) for k in range(n - sk, n)] + [(k, 0) for k in range(n - sk, n)]
        before = {}; after = {}
        def bf(g, x): before.setdefault(g, []).append(x)
        def af(g, x, c=1): after.setdefault(g, []).append((x, c))
        first = {k: min(g for g, (kk, sl) in enumerate(seq) if kk == k) for k in range(n)}
        last = {k: max(g for g, (kk, sl) in enumerate(seq) if kk == k) for k in range(n)}
        for k in range(4, n + 1, 4):
            if base[p] + k >= NS or (p == 1 and k == n): continue
            pre, post = check(base[p] + k)
            g = (first[k] if k < n else len(seq))
            af(g - 2, pre, 3); bf(g, post)
        for k in range(n):
            i = base[p] + k
            if i + DEP < NS and not (p == 1 and k + DEP >= n): af(last[k], (lambda i=i: ld(i + DEP)), 2)
        mvk = lambda kk: w2rd(lambda o: ar(wa(kk)+o, 2), slot_rd(RES[kk >> 1])[0], slot_rd(RES[kk >> 1])[1] + (kk & 1)*2048)
        prime = []
        HUA = optv("hua", 60)
        if p == HUA // 64: af(HUA % 64, ("s_barrier\n" if HUA < 80 else "") + hintn(), 3)
        if p == 1:
            M0 = optv("mv1", 40)
            af(M0 - 1, lambda: a.wait(vm="w2all"))
            for j, x in enumerate(sum([mvk(kk) for kk in range(NMB)], [])): af(min(63, M0 + j // optv("mvr", 2)), x)
            for j, x in enumerate(d3[:12]): af(40 + 2*j, (lambda x=x: a(x, tag="w2def")), 2)
            d3 = d3[12:]
            af(optv("hub", 56), hintn(), 3)
            af(min(UG, 64) - optv("h4ag", 14), poll("h4a"), 2)
            bf(min(UG, 64), lambda: (a.wait(vm="h4a"), a(f"v_cmp_eq_u32 s[74:75], -1, {vHP}\ns_mov_b32 s79, {sB[2]}\ns_cmp_lg_u64 s[74:75], 0\ns_cselect_b32 {sB[2]}, s14, {sB[2]}")))
            g = UG
            for q in range(DEP):
                g = max(g, last[n - DEP + q])
                if g < 64: af(g, (lambda q=q: ld(64 + q)), 2)
                else: prime.append(lambda q=q: ld(64 + q))
                g += 1
        if p == 2:
            g = 0
            for kk in range(NMB, 16):
                if kk == 16 - NDEF:
                    g = max(g, 2*MV2); bf(g, lambda: a.wait(vm="w2def"))
                l = mvk(kk)
                for j, x in enumerate(l): af(g + j // 2, x if j < 3 else (lambda x=x, kk=kk: a(x, tag=f"mv{kk}")))
                g += 2
                assert g + 2 <= first[12 + kk]
                if (kk - NMB) % 4 == 0: bf(first[12 + kk], lambda kk=kk: a.wait(ds=f"mv{min(15, kk + 3)}"))
            af(2*optv("h4bk", 6), poll("h4b"), 2)
            bf(2*(n - DEP), lambda: gate(a, "h4b", vHP, vH4, "s60", "h4b"))
        wr = []
        if p & 1:
            wr = writes(p)
            if sk:
                for j in range(4):
                    g = len(seq) - sk + 2 + (j * (sk - 2)) // 4
                    af(g, wr.pop(0), 2)
        fill = woven(p - 1) if p & 1 else []
        hold = 2; barr = not (p & 1)
        for g, (k, sl) in enumerate(seq):
            for x in before.get(g, []): emit(x)
            if "bst" in OPT and g and g % 16 == 0: stamp(a, f"{'abcd'[p]}{g//2}")
            av = vr(RING+4*((base[p] + k) % DEP), 4)
            if p < 2: A_, B_ = ar(wa(k)+4*sl, 4), av
            else: A_, B_ = av, (vr(PARK+8*k+4*sl, 4) if k < 12 else ar(wa(k-12)+4*sl, 4))
            a(mf(vr(acc+16*sl,16), A_, B_, "0" if k == 0 else None))
            budget = optv("bud", 7) if p < 3 else optv("budd", 5)
            for x, c in after.get(g, []):
                if isinstance(x, str) and x.startswith("ds_write"): assert barr
                emit(x); budget -= c
            if hold: hold -= 1
            while fill and budget > 0 and not hold:
                x = fill.pop(0)
                if isinstance(x, tuple): hold = x[1]; break
                emit(x); budget -= cost(x)
            if not fill and not barr:
                a("s_barrier"); barr = True
        for x in before.get(len(seq), []): emit(x)
        assert not fill and barr
        if p & 1:
            stamp(a, "subB_end" if p == 1 else "p5_mm")
            mem = prime + [(lambda x=x: a(x, tag="w2def")) for x in (d3 if p == 1 else [])]
            m1, m2 = optv("m1", 0), optv("m2", 4)
            for x in mem[:m1]: x()
            mem = mem[m1:]
            for x in wr + own(p): emit(x)
            for x in mem[:m2]: x()
            mem = mem[m2:]
            a("s_waitcnt lgkmcnt(0)\ns_barrier")
            for x in reads(p): emit(x)
            for x in mem[:2]: x()
            mem = mem[2:]
            fin = finish(p); every = max(1, (len(fin) - 8) // max(1, len(mem)))
            for j, x in enumerate(fin):
                emit(x)
                if mem and j % every == every - 1: mem.pop(0)()
            assert not mem
        if p == 1:
            lj = a.lab("nj")
            a(f"s_mov_b32 {sB[2]}, s79\ns_cmp_eq_u64 s[74:75], 0\ns_cbranch_scc1 {lj}")
            nv = a.nvm; tg = dict(a.tags)
            a("L_wait4:")
            a.mark("now"); gate(a, "h4a", vHP, vH4, "s60", "now")
            for q in range(DEP): ld(64 + q)
            a("s_waitcnt vmcnt(0)")
            a.nvm = nv; a.tags = tg
            a(f"{lj}:")
            pre, post = check(64); pre(); post()
        if p < 3: stamp(a, f"sub{p+1}")

def build():
    hdr = open("cdna_kernels/" + NAME + ".s.ref").read().split("; Override launch")[0]
    kn = NAME + "_kernel"
    out = hdr + f"; @launch grid=(256,1,1) block=(256,1,1) lds={LDS_TOTAL}\n"
    out += '.amdgcn_target "amdgcn-amd-amdhsa--gfx950"\n'
    a = Asm()
    if PROFILE: a("s_memrealtime s[90:91]\ns_memtime s[94:95]")
    prologue(a, "L_end", "L_last")
    if PROFILE: STAMPS.append("entry")
    stubs = []
    wo, landed = p1(a, stubs)
    w1rd, WBLK = p2(a, stubs, wo, landed)
    b3 = p3(a, w1rd, stubs)
    p45(a, stubs, WBLK, b3)
    stamp(a, "issued")
    if PROFILE and "lite" not in OPT: a("s_waitcnt vmcnt(0)")
    stamp(a, "end")
    if SPINAT:
        a("L_spin:\ns_memrealtime s[88:89]\ns_waitcnt lgkmcnt(0)\ns_sub_u32 s88, s88, s90\ns_cmp_lt_u32 s88, 6000\ns_cbranch_scc1 L_spin")
    a("L_fin:")
    if PROFILE: a("v_writelane_b32 v255, s90, 0\nv_writelane_b32 v255, s94, 32")
    stamp_flush(a)
    a("L_end:\ns_endpgm")
    a.L += stubs
    if TOUR: a("\n".join(f"L_pad{k}:" for k in range(8)))
    a("L_last:\ns_endpgm")
    import re
    L = [x.text for x in a.L]
    for i, l in enumerate(L):
        if l.startswith("s_addc_u32"):
            j = i - 1
            while not re.match(r"s_(add|sub|cmp|and|or|xor|lsh|cbranch|call|bcnt|min|max)", L[j]) and not L[j].endswith(":"): j -= 1
            assert L[j].startswith("s_add_u32 s%d," % (int(re.match(r"s_addc_u32 s(\d+)", l).group(1)) - 1)), (L[j], l)
    a.hazard_pass(verbose=("-v" in OPT))
    if TOUR: add_pads(a, kn)
    out += kernel_head(kn) + a.text() + kernel_desc(kn, 256, 256)
    return out

if __name__ == "__main__":
    open(sys.argv[1], "w").write(build())
    if PROFILE: open("stamps.txt", "w").write(" ".join(STAMPS))
```

```python
import sys, math
from g import *

NAME = "sequential_preLN__softmax_full_mha__mixer_token_mlp__prompt"
S, D, H, DH, F = 2048, 448, 16, 28, 1792
OPT = set(sys.argv[2:]) if __name__ == "__main__" else set()
def optv(name, dflt):
    for o in OPT:
        if o.startswith(name + "="): return int(o.split("=")[1])
    return dflt
KV   = 0x0000000
OB   = 0x0600000
ST   = 0x0800000
FL   = 0x0880000
HT   = 0x08A0000
HN   = 0x0900000
UB   = 0x0B00000
HB   = 0x0D00000
PROF = 0x1200000

sAR, sG, sH2 = "s0", "s1", "s2"
sW, sRB, sH, sDB, sSB, sFB, sST, sKH = "s4", "s5", "s6", "s7", "s8", "s9", "s10", "s11"
WS, RX, RWQ, RWO, RW1, RW2, RB1, RB2, ROUT, RDBG = ("s[12:15]", "s[16:19]", "s[20:23]", "s[24:27]", "s[28:31]", "s[32:35]", "s[36:39]", "s[40:43]", "s[44:47]", "s[48:51]")
sTile, sLQ, sH3 = "s52", "s53", "s57"
sO, sXR, sB1, sP2, sB2, sCN, sI1, sI2, sLO, sKF = "s64", "s65", "s66", "s67", "s68", "s69", "s70", "s71", "s72", "s73"
sD4 = "s95"
MHI = "s[74:75]"; sU2 = "s78"; WS3, WS4 = "s[80:83]", "s[84:87]"
sOo, sSo, sHo, sUo, sW4 = "s97", "s98", "s99", "s100", "s101"
vL = "v1"; vL16 = "v7"; vHS = "v14"
LI = optv("li", 3)
MA = "ma" in OPT
LDS_TOTAL = 163840
ARENA0, ARENA, INB = 59392, 24576, 12288
Q, O, SS, P, KVB = 16, 48, 112, 144, 152
PARK, RING, AC1, AC0, HH = 16, 112, 160, 192, 224
vWO = [212, 213, 214, 215]; vW1 = [216, 217, 218, 219]; vT1 = [220, 221]; vIT = 222
PZ, vL4, vCN, vHI, vL7, CNT, vPF, vIW = 224, 228, 229, 230, 231, 232, 233, 236
XR, B1, B2, vFL, vUS = 240, 248, 252, 253, 254
TBLK = [8, 9, 10, 11, 0, 1, 2, 3, 4, 5, 6, 7]
def kvr(t, off, n): return ar(16*TBLK[t] + off, n) if t < 12 else vr(KVB + 16*(t-12) + off, n)
def kvld(t, part): return f"global_load_dwordx4 {kvr(t, 4*part, 4)}, {vL16}, s[54:55] offset:{(t & 1)*4096 + part*1024 - 4096} sc1"
QX = ARENA0 + 3*ARENA + INB

def vr(b, n=1): return f"v{b}" if n == 1 else f"v[{b}:{b+n-1}]"
def ar(b, n=1): return f"a{b}" if n == 1 else f"a[{b}:{b+n-1}]"
def mf(d, A, B, C=None): return f"v_mfma_f32_32x32x16_bf16 {d}, {A}, {B}, {d if C is None else C}"

def m4(d, A, B, C=None): return f"v_mfma_f32_4x4x4_16b_bf16 {vr(d,4)}, {A}, {B}, {vr(d,4) if C is None else C}"

PROFILE = "prof" in OPT
STAMPS = []
SPINAT = [o[5:] for o in OPT if o.startswith("spin:")]
def stamp(a, name):
    if name in SPINAT: a("s_memrealtime s[90:91]\ns_waitcnt lgkmcnt(0)")
    if not PROFILE: return
    if "p2st" in OPT and name[:2] in ("p1", "su", "p5", "is"): return
    if "post" in OPT and name[:2] in ("p1", "st"): return
    if "pre" in OPT and name[:2] not in ("p1", "st", "p2", "en"): return
    if "bst" in OPT and name[:2] in ("p1", "st", "p2", "p3") and name not in ("p2_loop", "p2_end", "p3_end"): return
    if "lite" in OPT and name not in ("p1_kvst", "p2_loop", "p2_end", "p3_stpub", "p3_end", "p4_first", "sub2", "end"): return
    if name not in STAMPS: STAMPS.append(name)
    i = STAMPS.index(name); assert i < 32
    a(f"s_memrealtime s[88:89]\ns_memtime s[92:93]\ns_waitcnt lgkmcnt(0)\nv_writelane_b32 v255, s88, {i}\n" + ("s_sub_u32 s92, 0x100000, s96\n" if "cnt" in OPT else "") + f"v_writelane_b32 v255, s92, {32+i}")
def hint(sreg, off=0):
    return f"s_mov_b64 exec, 1\nbuffer_store_dword {vL}, off, {RWQ}, {sreg} sc1\ns_mov_b64 exec, -1"
def hintn():
    return hint(sH3) + f"\ns_add_u32 {sH3}, {sH3}, 32768"
def gate(a, name, vdst, vaddr, soff, tag):
    lp = a.lab(name); lo = a.lab(name + "o")
    a.wait(vm=tag)
    a(f"{lp}:\nv_cmp_eq_u32 vcc, -1, {vdst}\ns_cbranch_vccz {lo}")
    nv = a.nvm
    a(f"{SPIN}\nbuffer_load_dword {vdst}, {vaddr}, {WS}, {soff} offen sc1\ns_waitcnt vmcnt(0)\ns_branch {lp}\n{lo}:")
    a.nvm = nv
def gate2(a, name, va, vb, vaddr, soff, tag):
    lp = a.lab(name); lo = a.lab(name + "o")
    ld = lambda v: f"buffer_load_dword {v}, {vaddr}, {WS}, {soff} offen sc1"
    a.wait(vm=tag)
    nv = a.nvm
    a(f"{lp}:\nv_cmp_eq_u32 vcc, -1, {va}\ns_cbranch_vccz {lo}\n{ld(va)}\ns_waitcnt vmcnt(1)\nv_cmp_eq_u32 vcc, -1, {vb}\ns_cbranch_vccz {lo}")
    a(f"{SPIN}\n{ld(vb)}\ns_waitcnt vmcnt(1)\ns_branch {lp}\n{lo}:")
    a.nvm = nv
def stamp_flush(a, lo=0):
    if not PROFILE: return
    hi = len(STAMPS)
    mask = ((1 << hi) - 1) & ~((1 << lo) - 1)
    a(f"s_lshl2_add_u32 s3, s91, {sW}\ns_lshl_b32 s3, s3, 8\ns_add_u32 s3, s3, {PROF}\nv_lshlrev_b32 v2, 2, {vL}")
    a(f"s_mov_b32 exec_lo, {mask}\ns_mov_b32 exec_hi, {mask}\nbuffer_store_dword v255, v2, {WS}, s3 offen sc1\ns_mov_b64 exec, -1")
def show_prof(acc):
    import numpy as np
    names = open("stamps.txt").read().split()
    for r, p in enumerate(acc):
        if r < 5: continue
        fill = (r + 1) * 0x01010101
        t0 = p[:, :, 0].min()
        print("run", r)
        import os
        for nm in os.environ.get("SHOW", "").split():
            k = names.index(nm)
            print(nm, "by [xcd][loc] (wave0), 10ns")
            print((p[:, 0, k] - t0).reshape(32, 8).T)
        for i, n in enumerate(names):
            v = p[:, :, i]; ok = (v != fill) & (v != 0); v = v[ok] - t0
            if v.size == 0: continue
            ex = ""
            if i and not n.endswith("entry"):
                ok2 = ok & (p[:, :, i-1] != fill) & (p[:, :, i-1] != 0)
                if ok2.any():
                    dc = ((p[:, :, 32+i] - p[:, :, 31+i]) & 0xffffffff)[ok2]; dt = (p[:, :, i] - p[:, :, i-1])[ok2]
                    ex = f" dcyc med {np.median(dc):7.0f} max {dc.max():7.0f}  GHz {dc.sum()/max(1,dt.sum())/10:5.2f}"
            print(f"  {n:12s} min {v.min()/100:7.2f} med {np.median(v)/100:7.2f} max {v.max()/100:7.2f}  n={v.size}{ex}")

SPIN = "s_sub_u32 s96, s96, 1\ns_cbranch_scc1 L_end" + (f"\ns_sleep {optv('slp', 0)}" if optv('slp', 0) else "")
def m0set(sg_, c):
    return f"s_mov_b32 m0, {c}" if sg_ is None else f"s_add_u32 m0, {sg_}, {c}"
def dmai(vaddr, srd_, soff, off=0):
    return f"buffer_load_dwordx4 {vaddr}, {srd_}, {soff} offen" + (f" offset:{off}" if off else "") + " lds"

def swz128(a, dst, stride, t1="v2", t2="v3"):
    a(f"v_lshrrev_b32 {t1}, 3, {vL}\nv_mul_u32_u24 {dst}, {stride}, {t1}")
    a(f"v_lshrrev_b32 {t1}, 2, {vL}\nv_and_b32 {t1}, 4, {t1}\nv_and_b32 {t2}, 7, {vL}\nv_xor_b32 {t1}, {t1}, {t2}")
    a(f"v_lshl_add_u32 {dst}, {t1}, 4, {dst}")

def trbase(a, dst, hfmul, col, t1="v2", t2="v3", sw=6):
    a(f"v_bfe_u32 {t1}, {vL}, 2, 2\nv_lshrrev_b32 {t2}, 5, {vL}\nv_lshl_add_u32 {t2}, {t2}, {int(math.log2(hfmul))}, {t1}")
    a(f"v_lshrrev_b32 {t1}, 1, {t1}\nv_lshlrev_b32 {t1}, {sw}, {t1}\nv_xor_b32 {t1}, {t1}, {col}\nv_lshl_add_u32 {dst}, {t2}, 7, {t1}")

def xhalf_sum(a, v, t):
    a(f"v_mov_b32 {t}, {v}\nv_permlane32_swap_b32 {t}, {v}\nv_add_f32 {v}, {t}, {v}")

def weave(a, main, fill, start=0, per=1):
    fill = list(fill)
    def em(x): x() if callable(x) else a(x)
    for i, m in enumerate(main):
        em(m)
        if i >= start:
            for _ in range(per):
                if fill: em(fill.pop(0))
    for x in fill: em(x)

def split3(x, r1, r2):
    return [f"v_and_b32 {r1}, 0xffff0000, {x}", f"v_sub_f32 {r1}, {x}, {r1}", f"v_and_b32 {r2}, 0xffff0000, {r1}", f"v_sub_f32 {r2}, {r1}, {r2}"]
sPERM = "s62"
def splitA(dst, x, r1, r2):
    return split3(x, r1, r2) + [f"v_perm_b32 {vr(dst)}, {x}, {x}, {sPERM}", f"v_perm_b32 {vr(dst+1)}, {r1}, {r1}, {sPERM}", f"v_perm_b32 {vr(dst+2)}, {r2}, {x}, {sPERM}"]
def splitB(dst, x, r1, r2):
    return split3(x, r1, r2) + [f"v_perm_b32 {vr(dst)}, {r1}, {x}, {sPERM}", f"v_perm_b32 {vr(dst+1)}, {r1}, {x}, {sPERM}", f"v_perm_b32 {vr(dst+2)}, {x}, {r2}, {sPERM}"]

SRDS = {"ws": (12, 84, 1 << 28), "x": (16, 64, S*D*2), "wq": (20, 66, D*3*D*2), "wo": (24, 68, D*D*2),
        "w1": (28, 72, S*F*2), "w2": (32, 76, S*F*2), "b1": (36, 74, F*2), "b2": (40, 78, S*2), "out": (44, 80, S*D*2), "dbg": (48, 82, 256)}
def srd(a, n):
    b, p, sz = SRDS[n]
    a(f"s_mov_b64 s[{b}:{b+1}], s[{p}:{p+1}]\ns_mov_b32 s{b+2}, {sz}\ns_mov_b32 s{b+3}, 0x20000")

def prologue(a, endlab, codelab):
    a(f"s_cmp_ge_u32 s2, 256\ns_cbranch_scc1 {endlab}")
    a("s_load_dwordx16 s[64:79], s[0:1], 0\ns_load_dwordx4 s[80:83], s[0:1], 64\ns_load_dwordx2 s[84:85], s[0:1], 80")
    a(f"s_lshr_b32 s57, s2, 3\ns_lshl_b32 s3, s57, 11\nv_lshrrev_b32 v9, 4, v0\nv_lshl_add_u32 v9, v9, 7, s3")
    a(f"s_getpc_b64 s[62:63]\nL_pc:\nv_min_u32 v9, {codelab}-L_pc-4, v9\nglobal_load_dword v10, v9, s[62:63]")
    a(f"v_lshrrev_b32 v2, 6, v0\nv_and_b32 {vL}, 63, v0\nv_readfirstlane_b32 {sW}, v2\nv_lshlrev_b32 {vL16}, 4, {vL}")
    a(f"s_cmp_ge_u32 {sW}, 2\ns_cbranch_scc1 L_et")
    a("v_lshrrev_b32 v2, 1, v0\nv_min_u32 v3, 55, v2\nv_min_u32 v2, 36, v2\ns_mul_i32 s3, s2, 56\nv_add_lshl_u32 v3, v3, s3, 7\ns_mul_i32 s3, s2, 37\nv_add_u32 v2, s3, v2\nv_min_u32 v2, 9407, v2\nv_lshlrev_b32 v2, 7, v2")
    a("v_lshrrev_b32 v4, 3, v0\ns_lshl_b32 s3, s2, 4\nv_add_u32 v4, s3, v4\nv_min_u32 v4, 3135, v4\nv_lshlrev_b32 v4, 7, v4")
    a("v_lshlrev_b32 v5, 2, v0\nv_and_b32 v5, 0x180, v5\ns_and_b32 s3, s2, 7\ns_lshl_b32 s3, s3, 9\nv_add_u32 v5, s3, v5\nv_min_u32 v6, 3456, v5")
    a("s_waitcnt lgkmcnt(0)\nglobal_load_dword v10, v3, s[64:65]\nglobal_load_dword v10, v2, s[66:67]\nglobal_load_dword v10, v4, s[68:69]\nglobal_load_dword v10, v6, s[74:75]\nglobal_load_dword v10, v5, s[78:79]")
    a("s_branch L_et\n.p2align 12\nL_et:" if TOUR else "L_et:")
    if PROFILE: a("v_mov_b32 v255, 0")
    a(f"s_and_b32 s56, s2, 7\ns_and_b32 s58, s57, 3\ns_lshr_b32 {sLQ}, s57, 2")
    if "map48" in OPT:
        a(f"s_lshr_b32 s3, s56, 2\ns_lshl3_add_u32 {sH}, s3, {sLQ}\ns_and_b32 s3, s56, 3\ns_lshl2_add_u32 {sRB}, s3, s58")
    elif "map162" in OPT:
        a(f"s_and_b32 s3, s57, 1\ns_lshl1_add_u32 {sH}, s56, s3\ns_lshr_b32 {sRB}, s57, 1")
    else:
        a(f"s_lshr_b32 s3, s56, 1\ns_lshl2_add_u32 {sH}, s3, s58")
        a(f"s_and_b32 s3, s56, 1\ns_lshl3_add_u32 {sRB}, s3, {sLQ}")
    if optv("px", 0): a(f"s_and_b32 s3, s56, 1\ns_xor_b32 s3, s3, {optv('px', 0) & 1}\ns_lshr_b32 s56, s56, 1\ns_lshl2_add_u32 s56, s3, s56")
    a(f"s_lshr_b32 s3, s56, 2\ns_lshl2_add_u32 {sDB}, s3, s58")
    if "nobal" not in OPT: a(f"s_and_b32 s3, {sLQ}, 1\ns_lshl_b32 s3, s3, 2\ns_cmp_eq_u32 s58, 3\ns_cselect_b32 s3, s3, 0\ns_xor_b32 {sDB}, {sDB}, s3")

TOUR = "notour" not in OPT
def tour(a, r):
    if not TOUR: return
    a(f"s_mov_b64 exec, 0\ns_cmp_eq_u32 {sW}, 1\ns_cbranch_scc1 L_pad{4*r+1}\ns_cmp_eq_u32 {sW}, 2\ns_cbranch_scc1 L_pad{4*r+2}\ns_cmp_eq_u32 {sW}, 3\ns_cbranch_scc1 L_pad{4*r+3}\ns_branch L_pad{4*r}\nL_tour{r}:\ns_mov_b64 exec, -1")
def add_pads(a, kn):
    import subprocess, re, os, tempfile
    d = tempfile.mkdtemp()
    open(d + "/p.s", "w").write('.amdgcn_target "amdgcn-amd-amdhsa--gfx950"\n' + kernel_head(kn) + a.text())
    subprocess.check_call(["clang", "-x", "assembler", "-target", "amdgcn-amd-amdhsa", "-mcpu=gfx950", "-c", d + "/p.s", "-o", d + "/p.o"])
    o = subprocess.check_output(["llvm-objdump", "-d", "--mcpu=gfx950", d + "/p.o"]).decode()
    addrs = [int(m, 16) for m in re.findall(r"// ([0-9A-F]{12}):", o)]
    addrs = [x for x in addrs if x >= 4096]
    i0 = next(i for i, x in enumerate(a.L) if x.label == "L_et")
    idx = [i for i in range(i0, len(a.L)) if a.L[i].kind not in ("label", "dir")]
    assert len(idx) == len(addrs), (len(idx), len(addrs))
    stop = next(i for i, x in enumerate(a.L) if x.label == "L_fin")
    mid = next(i for i, x in enumerate(a.L) if x.label == "L_tour1")
    pads = []; shift = 0; page = 2
    forced = set()
    bad = set(); z = False
    for i, x in enumerate(a.L):
        if z: bad.add(i)
        if ("s", "exec") in x.w: z = x.text.replace(" ", "") == "s_mov_b64exec,0"
    n = 0
    while n < len(idx) and idx[n] < stop:
        i = idx[n]; ad = addrs[n] + shift
        if i - 1 in forced:
            pads.append(i); shift += 4
            if ad >= page*4096: page += 1
        elif ad >= page*4096:
            cand = [m for m in range(n, n + 16) if addrs[m] + shift <= page*4096 + 56 and idx[m] - 1 not in forced and idx[m] not in bad]
            best = next((m for m in cand if a.L[idx[m]-1].kind == "mfma" and a.L[idx[m]].kind == "valu"), cand[0])
            pads.append(idx[best]); shift += 4; page += 1; n = best
        n += 1
    assert not any((x.op or "").startswith("v_cmpx") for x in a.L[:stop])
    rounds = [[i for i in pads if i < mid], [i for i in pads if i > mid]]
    name = lambda r, k: f"L_pad{4*r+k}" if k < 4 else f"L_padx{r}_{k}"
    out = []
    for i, x in enumerate(a.L):
        if x.label and re.fullmatch(r"L_pad\d+", x.label): continue
        for r in range(2):
            if x.label == f"L_tour{r}": out += [Ins(f"L_pad{4*r+k}:") for k in range(len(rounds[r]), 4)]
            if i in rounds[r]:
                k = rounds[r].index(i)
                out += [Ins(name(r, k) + ":"), Ins("s_cbranch_execz " + (name(r, k+4) if k + 4 < len(rounds[r]) else f"L_tour{r}"))]
        out.append(x)
    a.L = out
    z = False
    for x in a.L:
        assert not (z and x.op == "s_cbranch_execz")
        if ("s", "exec") in x.w: z = x.text.replace(" ", "") == "s_mov_b64exec,0"

class Weaver:
    def __init__(self, a, items, gap):
        self.a, self.items, self.gap, self.n = a, list(items), gap, 10**6
        self.kick()
    def kick(self):
        if self.items and self.n >= self.gap:
            x = self.items.pop(0); x() if callable(x) else self.a(x); self.n = 0
    def __call__(self, t, tag=None):
        self.a(t, tag); self.n += t.count("\n") + 1; self.kick()
    def flush(self):
        while self.items: self.n = 10**6; self.kick()
    def __getattr__(self, k): return getattr(self.a, k)

class Chunks:
    def __init__(self): self.l = []
    def __call__(self, t): self.l.append(t)

def late_setup():
    a = Chunks()
    a(f"s_lshl2_add_u32 s3, {sRB}, {sW}\ns_lshl4_add_u32 s3, s3, {sH}\ns_lshl_b32 s3, s3, 11\ns_add_u32 {sOo}, s3, {OB}")
    a(f"s_lshl1_add_u32 s3, {sDB}, {sKH}\ns_lshl4_add_u32 s3, {sTile}, s3\ns_lshl_b32 s3, s3, 8\ns_add_u32 {sSo}, s3, {ST}")
    a(f"v_lshlrev_b32 {vr(vL4)}, 2, {vL}\nv_bfe_u32 v2, {vL}, 4, 1\nv_lshlrev_b32 v2, 17, v2\nv_lshrrev_b32 v3, 5, {vL}")
    a(f"v_lshl_add_u32 v2, v3, 9, v2\nv_and_b32 v3, 15, {vL}\nv_lshl_add_u32 {vHS}, v3, 4, v2")
    a(f"s_lshl_b32 s3, {sDB}, 7\ns_add_u32 s3, s3, {sTile}\ns_lshl3_add_u32 s3, s3, {sKH}\ns_lshl_b32 s3, s3, 8\ns_add_u32 {sHo}, s3, {HN}")
    a(f"s_mul_i32 s3, {sD4}, 56\ns_add_u32 s3, s3, {sFB}\ns_lshl2_add_u32 s3, s3, {sW}\ns_lshl_b32 s3, s3, 10\ns_add_u32 {sUo}, s3, {UB}")
    a(f"s_add_u32 {sU2}, {sUo}, {112*1024}\ns_lshl_b32 {sW4}, {sW}, 2\ns_lshl2_add_u32 {sO}, {sH}, {sW}\ns_lshl_b32 {sO}, {sO}, 16")
    a(f"s_lshl4_add_u32 s3, {sRB}, {sH}\ns_lshl_b32 s3, s3, 7\ns_add_u32 s3, s3, {sW4}\ns_add_u32 {sH2}, s3, {HT}")
    a(f"s_lshl_b32 s56, {sDB}, 5\ns_add_u32 s56, s56, {sSB}\ns_lshl_b32 s56, s56, 7\ns_add_u32 s3, s56, {sW4}\ns_add_u32 {sH3}, s3, {HT + 32768}")
    a(f"v_min_u32 v2, 4, {vL}\nv_lshlrev_b32 v2, 15, v2\ns_sub_u32 s3, {sH3}, 32768\nv_add_u32 {vr(vHI)}, s3, v2\nv_writelane_b32 {vr(vHI)}, {sH2}, 0")
    a(f"s_add_u32 s3, s56, {FL + 16}\nv_mov_b32 {vr(vPF)}, s3\ns_lshl4_add_u32 s3, {sH}, {sRB}\ns_lshl_b32 s3, s3, 7\ns_add_u32 s3, s3, {FL}\nv_writelane_b32 {vr(vPF)}, s3, 0\ns_add_u32 {sKF}, s3, {sW4}")
    a(f"s_bfe_u32 s3, {sSB}, 0x20002\ns_lshl2_add_u32 s3, {sD4}, s3\ns_lshl3_add_u32 s3, s3, {sLQ}\ns_lshl_b32 s56, s3, 7\ns_add_u32 s3, s56, {FL + 48}\nv_writelane_b32 {vr(vPF)}, s3, 2")
    a(f"s_add_u32 s3, s56, {HT + 3*32768}\nv_writelane_b32 {vr(vHI)}, s3, 3\ns_add_u32 s3, s3, 32768\nv_writelane_b32 {vr(vHI)}, s3, 4\ns_add_u32 s3, s3, 32768\nv_writelane_b32 {vr(vHI)}, s3, 5")
    a(f"s_cmp_eq_u32 {sD4}, 7\ns_cselect_b32 s3, 3, {sD4}\ns_lshl_b32 {sCN}, s3, 12\ns_add_u32 {sCN}, {sCN}, {FL + 32}\ns_lshl_b32 s3, {sDB}, 12\ns_add_u32 s3, s3, {FL + 64}\ns_cmp_eq_u32 {sW}, 2\ns_cselect_b32 {sCN}, s3, {sCN}")
    a(f"s_lshr_b32 s3, {sSB}, 1\ns_lshl_b32 s3, s3, 7\ns_add_u32 s3, s3, {FL + 16}\ns_cmp_eq_u32 {sW}, 0\ns_cselect_b32 {sCN}, s3, {sCN}\ns_cselect_b32 s56, 11, 7\ns_cselect_b32 s3, 15, 31\nv_min_u32 v2, s3, {vL}")
    a(f"s_lshl_b32 s3, {sSB}, 7\ns_add_u32 s3, s3, {FL + 32}\ns_cmp_eq_u32 {sW}, 3\ns_cselect_b32 {sCN}, s3, {sCN}\ns_cselect_b32 s56, 12, s56\ns_cselect_b32 s3, 6, 31\nv_min_u32 v2, s3, v2")
    a(f"v_lshlrev_b32 {vr(vCN)}, s56, v2\nv_and_b32 v3, 3, {vL}")
    a(f"s_lshr_b32 s3, {sH}, 1\ns_lshl2_add_u32 s3, s3, {sW}\ns_lshl_b32 s3, s3, 9\ns_add_u32 s3, s3, {FL}\nv_bfe_u32 v2, {vL}, 2, 1\nv_lshl_add_u32 v2, v2, 14, s3")
    a(f"v_mov_b32 v207, v2\nv_lshl_add_u32 {vr(vFL)}, v3, 7, v2")
    a(f"s_mul_i32 {sAR}, {sW}, {ARENA}\ns_add_u32 {sAR}, {sAR}, {ARENA0}\ns_mul_i32 {sG}, {sW}, {512*3584}\ns_lshl_b32 s3, {sFB}, 7\ns_add_u32 {sG}, {sG}, s3")
    a(f"v_lshrrev_b32 v2, 2, {vL}\nv_and_b32 v2, 4, v2\nv_and_b32 v3, 7, {vL}\nv_lshlrev_b32 {vr(vL7)}, 7, v3\nv_xor_b32 v2, v2, v3")
    a(f"v_lshrrev_b32 v3, 3, {vL}\nv_mul_u32_u24 v4, 3584, v3\nv_lshl_add_u32 {vr(vW1[0])}, v2, 4, v4\nv_mul_u32_u24 v4, 896, v3")
    a(f"v_and_b32 v3, 2, v3\nv_and_b32 v2, 7, {vL}\nv_xor_b32 v2, v2, v3\nv_lshl_add_u32 {vr(vWO[0])}, v2, 4, v4")
    a("\n".join(f"v_add_u32 {vr(vW1[i])}, {i*(8*3584-1024)}, {vr(vW1[0])}" for i in range(1, 4)))
    a("\n".join(f"v_add_u32 {vr(vWO[i])}, {i*(8*896-1024)}, {vr(vWO[0])}" for i in range(1, 4)))
    a(f"v_bfe_u32 v4, {vL}, 4, 1\nv_xor_b32 v4, {sW}, v4\nv_lshlrev_b32 v4, 5, v4\nv_and_b32 v5, 3, {vL}\nv_lshl_add_u32 v4, v5, 3, v4")
    trbase(a, vr(vT1[0]), 8, "v4")
    a(f"v_add_u32 {vr(vT1[0])}, {sAR}, {vr(vT1[0])}\nv_xor_b32 {vr(vT1[1])}, 64, {vr(vT1[0])}\ns_mul_i32 s79, {sW}, {14*1024}")
    a(f"v_and_b32 v2, 31, {vL}\nv_mul_u32_u24 v4, 896, v2\nv_lshrrev_b32 v3, 5, {vL}\nv_lshl_add_u32 {vr(XR+4)}, v3, 4, v4")
    a(f"v_lshlrev_b32 {vr(B1+2)}, 3, v3\nv_lshlrev_b32 {vr(B2)}, 1, v2\ns_lshl2_add_u32 {sB1}, {sFB}, {sW}\ns_lshl_b32 {sB1}, {sB1}, 5\ns_lshl_b32 {sB2}, {sTile}, 6")
    a(f"s_mul_i32 {sXR}, {sTile}, {32*896}\ns_lshl_b32 s3, {sDB}, 7\ns_add_u32 {sXR}, {sXR}, s3\ns_lshl_b32 s3, {sKH}, 5\ns_add_u32 {sXR}, {sXR}, s3")
    for j in range(3):
        a(f"s_add_u32 s56, {sW}, {j+1}\ns_and_b32 s56, s56, 3\ns_mul_i32 s3, s56, {ARENA}\ns_add_u32 s3, s3, {ARENA0+INB}\nv_add_u32 {vr(vIW+j)}, s3, {vL16}")
        a(f"s_lshl_b32 s3, s56, 11\ns_add_u32 s3, s3, {QX}\nv_add_u32 {vr(Q+8*j+4)}, s3, {vL16}")
    a(f"v_add_u32 {vr(vIW+3)}, {sAR}, {vL16}\ns_lshl_b32 s3, {sW}, 11\ns_add_u32 s3, s3, {QX}\nv_add_u32 v210, s3, {vL16}")
    a(f"s_add_u32 s3, {sD4}, 8\ns_cmp_eq_u32 {sD4}, 7\ns_cselect_b32 s3, {sLQ}, s3\ns_mul_i32 {sI1}, s3, {9*3584}\ns_mul_i32 s3, {sW}, {512*3584}\ns_add_u32 {sI1}, {sI1}, s3")
    a(f"s_bfe_u32 s3, {sSB}, 0x20002\ns_mul_i32 s3, s3, 896\ns_add_u32 {sI1}, {sI1}, s3\ns_mov_b32 {sLO}, {fhex(2.0**-30)}")
    a(f"s_lshr_b32 s3, {sLQ}, 2\ns_and_b32 s3, s3, {sLQ}\ns_lshr_b32 s56, {sLQ}, 1\ns_sub_u32 s56, s56, s3\ns_add_u32 s56, s56, 4\ns_and_b32 s3, {sSB}, 3\ns_cmp_eq_u32 {sLQ}, {LI}\ns_cselect_b32 s56, s3, s56")
    a(f"s_mul_i32 s3, {sW}, 28\ns_add_u32 s3, s3, s56\ns_lshl_b32 {sI2}, s3, 16\ns_lshr_b32 s3, {sSB}, 2\ns_lshl_b32 s3, s3, 9\ns_add_u32 {sI2}, {sI2}, s3")
    a(f"v_min_u32 v2, 62, {vL}\nv_mul_u32_u24 v3, 37, v2\nv_lshrrev_b32 v3, 8, v3\nv_mul_u32_u24 v3, {3584 - 7*128}, v3\nv_lshl_add_u32 {vr(vIT)}, v2, 7, v3")
    a(f"v_lshrrev_b32 v2, 2, {vL}\nv_and_b32 v3, 3, {vL}\nv_lshlrev_b32 v3, 7, v3\nv_lshl_add_u32 {vr(vIT+1)}, v2, 12, v3")
    a(f"s_lshr_b32 s3, {sTile}, 2\ns_lshl1_add_u32 s3, s3, {sKH}\ns_lshl_b32 s3, s3, 10\ns_add_u32 {sP2}, s3, {HT}")
    return a.l

def p1(a, stubs):
    WB, WQB, XB, CSB_ = 0, 58368, 87040, 160768
    ACA, ACB, GR, CSA, CSB, WF = 48, 64, 80, 96, 112, 128
    ONES = 160; FA, FB, FM = 164, 168, 172
    vX = [176, 177, 178, 179]; vW = 180; vWQ = 181
    vXR = [182, 183, 184, 185]; vWA = [186, 187, 188, 189]; vWB = [190, 191, 192, 193]; vQR = [194, 195, 196, 197]
    vCW, vCR, GATE, vWb, RS, PK = 198, 199, 200, 202, 204, 80
    vTW, vTR = 208, 209
    sXB, sWo, sT, sWm, sQo, sKVo = "s54", "s55", "s58", "s59", "s60", "s61"
    def em(x): x() if callable(x) else a(x)
    a(f"s_lshl2_add_u32 s3, {sRB}, {sW}\ns_mul_i32 s3, s3, {32*896}")
    a(f"v_lshrrev_b32 v5, 3, {vL}\nv_mul_u32_u24 v2, 896, v5\nv_add_u32 v2, s3, v2")
    a(f"v_lshrrev_b32 v3, 4, {vL}\nv_and_b32 v4, 7, {vL}\nv_xor_b32 v3, v3, v4")
    a(f"v_lshl_add_u32 {vr(vX[0])}, v3, 4, v2")
    a(f"v_xor_b32 v3, 4, v3\nv_lshl_add_u32 v3, v3, 4, v2\nv_add_u32 {vr(vX[1])}, {8*896 - 1024}, v3")
    a(f"v_add_u32 {vr(vX[2])}, {16*896 - 2048}, {vr(vX[0])}\nv_add_u32 {vr(vX[3])}, {16*896 - 2048}, {vr(vX[1])}")
    a(f"s_lshl_b32 {sXB}, {sW}, 14\ns_add_u32 {sXB}, {sXB}, {XB}")
    a(f"v_mul_u32_u24 {vr(vW)}, 2688, v5\nv_lshrrev_b32 v2, 2, {vL}\nv_and_b32 v2, 4, v2\nv_xor_b32 v2, v2, v4\nv_lshl_add_u32 {vr(vW)}, v2, 4, {vr(vW)}")
    a(f"v_cmp_ne_u32 vcc, 7, v2\nv_add_u32 {vr(vWb)}, {8*2688 - 1024}, {vr(vW)}")
    JX = 0 if "nojx" in OPT else 8
    a(f"s_xor_b32 s3, {sH}, {JX}\n{'s_min_u32 s3, s3, 13' if 'x1l' in OPT else ''}\ns_mul_i32 {sWo}, s3, {128 if 'x1l' in OPT else 112}\ns_mul_i32 {sQo}, {sW}, {16*2688}\ns_add_u32 {sWo}, {sWo}, {sQo}\ns_lshl_b32 {sWm}, {sW}, 11")
    def mark_setup():
        for i in range(4): a(f"v_mov_b32 {vr(PZ+i)}, -1")
        if MA:
            a(f"s_and_b32 s3, {sH}, 7\ns_lshl_b32 s3, s3, 3\ns_lshr_b32 {sKVo}, {sRB}, 2\ns_add_u32 s3, s3, {sKVo}\ns_lshl2_add_u32 s3, s3, {sW}\ns_and_b32 {sKVo}, {sRB}, 3\ns_lshl2_add_u32 s3, s3, {sKVo}\ns_lshl_b32 {sKVo}, s3, 12")
        else: a(f"s_and_b32 s3, {sH}, 7\ns_lshl_b32 s3, s3, 7\ns_lshl2_add_u32 s3, {sRB}, s3\ns_add_u32 s3, s3, {sW}\ns_lshl_b32 {sKVo}, s3, 12")
    def kvmark():
        if MA:
            a(f"s_xor_b32 s3, {sH}, {JX}\ns_lshr_b32 s3, s3, 3\ns_lshl_b32 s3, s3, 11\ns_add_u32 s3, s3, {sKVo}\ns_lshl_b32 s63, {sW}, 14\ns_sub_u32 s3, s3, s63")
            a(f"s_and_b32 s63, {sW}, 1\ns_lshl_b32 s63, s63, 10\ns_add_u32 s3, s3, s63\ns_lshr_b32 s63, {sW}, 1\ns_lshl_b32 s63, s63, 18\ns_add_u32 s3, s3, s63")
            a(f"buffer_store_dwordx4 {vr(PZ,4)}, {vL16}, {WS}, s3 offen sc1")
            return
        nv = a.nvm
        a(f"s_and_b32 s3, {sRB}, 3\ns_cbranch_scc1 L_np\ns_xor_b32 s3, {sH}, {JX}\ns_lshr_b32 s3, s3, 3\ns_lshl_b32 s3, s3, 11\ns_add_u32 s3, s3, {sKVo}")
        for i in range(2):
            for o in (0, 1024): a(f"buffer_store_dwordx4 {vr(PZ,4)}, {vL16}, {WS}, s3 offen offset:{o} sc1")
            if not i: a(f"s_add_u32 s3, s3, {64*4096}")
        a("L_np:"); a.nvm = nv
    KM = optv("km", -1)
    if KM == -2: mark_setup()
    a("s_waitcnt lgkmcnt(0)")
    srd(a, "x"); srd(a, "wq")
    if KM == -2: srd(a, "ws"); kvmark()
    if PROFILE: a("s_mov_b32 s91, s2")
    stamp(a, "start")
    def chunk_dma(c):
        l = [f"s_add_u32 {sT}, {sWo}, {896 + c*64*2688}\n" + m0set(sWm, WB + c*8192) + "\ns_mov_b64 exec, vcc\n" + dmai(vr(vW), RWQ, sT) + "\ns_mov_b64 exec, -1",
             "s_mov_b64 exec, vcc\n" + dmai(vr(vWb), RWQ, sT, 1024) + "\ns_mov_b64 exec, -1\n" + m0set(sXB, (c & 3)*4096 - c*128)]
        l += [dmai(vr(vX[o]), RX, "0", c*128 + o*1024) for o in range(4)]
        return l[:-1] + [lambda: a(l[-1], tag=f"c{c}")]
    qdma = [m0set("s63", WQB + i*4096) + f"\ns_add_u32 {sT}, {sQo}, {i*64*2688}\n" + dmai(vr(vWQ), RWQ, sT) for i in range(7)]
    for x in chunk_dma(0): em(x)
    a(f"s_mov_b32 {sD4}, {sDB}\ns_and_b32 s3, s57, 3\ns_lshl2_add_u32 {sSB}, s56, s3\ns_cmp_gt_u32 {sLQ}, {LI}\ns_subb_u32 {sDB}, {sLQ}, 0")
    a(f"s_and_b32 s3, s56, 3\ns_mul_i32 s3, s3, 7\ns_add_u32 {sFB}, s3, {sDB}\ns_cmp_eq_u32 {sLQ}, {LI}\ns_cselect_b32 {sDB}, 7, {sDB}")
    a(f"s_and_b32 {sST}, {sW}, 1\ns_lshr_b32 {sKH}, {sW}, 1\ns_lshl1_add_u32 {sTile}, {sSB}, {sST}\ns_mov_b32 s96, 0x100000")
    for n in ("ws", "dbg", "wo", "w1", "w2", "b1", "b2", "out")[KM == -2:]: srd(a, n)
    if "tlb" in OPT:
        a(f"v_lshrrev_b32 v2, 5, v0\ns_lshl_b32 s3, s57, 3\nv_add_lshl_u32 v2, v2, s3, 15\nbuffer_load_dword v10, v2, {RW1}, 0 offen\nbuffer_load_dword v10, v2, {RW2}, 0 offen")
        a(f"v_lshlrev_b32 v2, 1, v2\nbuffer_load_dword v10, v2, {WS}, 0 offen sc1")
    a(f"s_mov_b64 s[80:81], s[12:13]\ns_mov_b32 s83, 0x20000\ns_mov_b64 s[84:85], s[12:13]\ns_mov_b32 s87, 0x20000")
    a(f"s_cmp_lt_u32 {sDB}, 7\ns_cselect_b32 s82, s14, 0\ns_cselect_b32 s26, s26, 0\ns_cselect_b32 s30, s30, 0")
    a(f"s_cmp_lt_u32 {sD4}, 7\ns_cselect_b32 s86, s82, 0\ns_cselect_b32 s30, s30, 0")
    if KM != -2: mark_setup()
    nv = a.nvm
    a(f"s_cmp_lg_u32 {sH}, 0\ns_cbranch_scc1 L_nz\nv_mov_b32 v2, 0\nv_mov_b32 v3, 0\nv_lshlrev_b32 v12, 3, v0\ns_lshl_b32 s3, {sRB}, 11\ns_add_u32 s3, s3, {FL}")
    a(f"buffer_store_dwordx2 v[2:3], v12, {WS}, s3 offen sc1\nL_nz:")
    a.nvm = nv
    if KM == -1: kvmark()
    for i in range(4): a(f"v_mov_b32 {vr(ONES+i)}, 0x3f803f80")
    a(f"v_lshrrev_b32 v2, 1, v0\nv_and_b32 v2, 1, v2\nv_lshlrev_b32 v2, 6, v2\nv_xor_b32 v2, 0x70, v2\nv_lshl_add_u32 v2, v0, 7, v2")
    a(f"ds_write_b128 v2, {vr(ONES,4)} offset:{WB}\nds_write_b128 v2, {vr(ONES,4)} offset:{WB + 192*128}")
    a(f"v_and_b32 v2, 31, {vL}\nv_lshlrev_b32 v3, 7, v2\nv_add_u32 v3, {sXB}, v3")
    a(f"v_lshrrev_b32 v4, 1, v2\nv_and_b32 v4, 7, v4\nv_lshrrev_b32 v5, 5, {vL}\nv_xor_b32 v4, v4, v5\ns_lshl_b32 s3, {sW}, 1\nv_xor_b32 v4, s3, v4")
    for q in range(4):
        a(f"v_xor_b32 v6, {2*q}, v4\nv_lshl_add_u32 {vr(vXR[q])}, v6, 4, v3")
    a(f"v_add_u32 {vr(vCR)}, {CSB_}, {vL16}\ns_lshl_b32 s3, {sW}, 2\nv_add_u32 {vr(vCW)}, s3, {vr(vCR)}")
    a(f"v_mul_u32_u24 {vr(vTW)}, 72, v2\nv_lshl_add_u32 {vr(vTW)}, v5, 3, {vr(vTW)}\nv_add_u32 {vr(vTW)}, {sXB}, {vr(vTW)}")
    a(f"v_bfe_u32 v2, {vL}, 2, 2\nv_lshl_add_u32 v3, v5, 3, v2")
    a(f"v_bfe_u32 v4, {vL}, 4, 1\nv_lshlrev_b32 v4, 5, v4\nv_and_b32 v6, 3, {vL}\nv_lshl_add_u32 v4, v6, 3, v4")
    a(f"v_lshl_add_u32 v5, v5, 2, v2\nv_mul_u32_u24 v5, 72, v5\nv_add3_u32 {vr(vTR)}, v5, v4, {sXB}")
    a(f"v_lshrrev_b32 v2, 1, v2\nv_lshlrev_b32 v2, 6, v2")
    a(f"v_xor_b32 v6, v4, v2\nv_lshl_add_u32 v6, v3, 7, v6\nv_add_u32 {vr(vWA[0])}, {sWm}, v6")
    a(f"v_add_u32 v6, 56, v4\nv_xor_b32 v6, v6, v2\nv_lshl_add_u32 v6, v3, 7, v6\nv_add_u32 {vr(vWB[0])}, {sWm}, v6")
    a(f"s_lshl_b32 s63, {sW}, 10\nv_lshl_add_u32 v6, v3, 6, v4\nv_add_u32 v6, s63, v6")
    for q in range(1, 4):
        a(f"v_xor_b32 {vr(vWA[q])}, {q*2048}, {vr(vWA[0])}\nv_xor_b32 {vr(vWB[q])}, {q*2048}, {vr(vWB[0])}")
    post = [f"v_xor_b32 {vr(vQR[q])}, {q*1024}, v6\nv_add_u32 {vr(vQR[q])}, {WQB}, {vr(vQR[q])}" for q in range(4)]
    post += [f"v_lshrrev_b32 v2, 2, {vL}\nv_mul_u32_u24 v2, 2688, v2\nv_and_b32 v3, 3, {vL}\nv_lshl_add_u32 {vr(vWQ)}, v3, 4, v2",
             f"s_mul_i32 s3, {sH}, 56\ns_add_u32 {sQo}, {sQo}, s3\ns_mov_b32 {sPERM}, 0x07060302\ns_mov_b32 s74, 0\ns_mov_b32 s75, -1",
             f"v_mov_b32 {vr(FA+3)}, 0\nv_mov_b32 {vr(FB+3)}, 0\nv_mov_b32 {vr(FM+3)}, 0\nv_and_b32 {vr(GATE+1)}, 15, {vL}\nv_lshlrev_b32 {vr(GATE+1)}, 2, {vr(GATE+1)}"]
    post += late_setup()
    n1, n2 = optv("pa", 0), optv("pb", 0)
    for x in post[:n1]: a(x)
    for x in chunk_dma(1): em(x)
    for x in post[n1:n1+n2]: a(x)
    post = post[n1+n2:]
    tour(a, 0)
    stamp(a, "p1_pre")
    a("s_waitcnt lgkmcnt(0)")
    def reads(st):
        c, q = st >> 2, st & 3
        l = [f"ds_read_b64_tr_b16 {vr(WF+8*q+4*hd+2*e,2)}, {vr(va)} offset:{WB+c*8192+e*512}" for hd, va in enumerate((vWA[q], vWB[q])) for e in range(2)]
        return l + [lambda: a(f"ds_read_b128 {ar(4*st,4)}, {vr(vXR[q])} offset:{(c & 3)*4096}", tag=f"r{st}")]
    gld = f"buffer_load_dword {vr(GATE)}, {vr(GATE+1)}, {RDBG}, 0 offen sc1"
    EK = optv("ek", 0)
    p1ld = f"buffer_load_dword v206, {vr(vFL) if MA else 'v207'}, {WS}, 0 offen sc1"
    def gatecheck():
        b = Asm()
        b(f"L_gw:\n{SPIN}\n{gld}\ns_waitcnt vmcnt(0)\nv_cmp_ne_u32 vcc, 1, {vr(GATE)}\ns_cbranch_vccnz L_gw\ns_branch L_go")
        stubs.extend(b.L)
        a("s_cbranch_vccnz L_gw\nL_go:")
    fill = []
    def window(c):
        a.wait(vm=f"c{c}"); a("s_barrier")
        if c in (0, 3, 6): stamp(a, f"p1_c{c}")
        assert not fill
        if c == KM: fill.append(kvmark)
        if c == 5: fill.append(lambda: a(gld, tag="gate"))
        if c < 5: fill.extend(chunk_dma(c + 2))
        else:
            k = 4 if c < 6 else 3
            fill.extend(qdma[:k]); del qdma[:k]
        if c == 1:
            fill.append(f"v_mov_b32 v11, 1\ns_or_b32 s3, {sH}, {sW}\ns_cselect_b32 s50, 0, s50\ns_lshl_b32 s3, {sRB}, 2\ns_mov_b64 exec, 1\nbuffer_store_dword v11, off, {RDBG}, s3 sc1\ns_mov_b64 exec, -1\ns_mov_b32 s50, 256")
    window(0)
    for x in reads(0) + reads(1): em(x)
    for _ in range(3): em(fill.pop(0))
    for st in range(28):
        c, q = st >> 2, st & 3
        if q == 2 and c < 6:
            while fill: em(fill.pop(0))
            window(c + 1)
        rd = reads(st + 2) if st + 2 < 28 else []
        z = "0" if st == 0 else None
        x4 = ar(4*st, 4); wa, wb = vr(WF+8*q, 4), vr(WF+8*q+4, 4)
        gr = "\n".join(m4(GR+4*e, ar(4*st+2*e,2), ar(4*st+2*e,2), z) for e in range(2))
        l = [mf(vr(ACB,16), wb, x4, z), gr, mf(vr(ACA,16), wa, x4, z)]
        if q == 0: l = ["\n".join(m4(cs+4*e, vr(ONES,2), vr(WF+4*hd+2*e,2), z) for e in range(2)) for hd, cs in enumerate((CSA, CSB))] + l
        a.wait(ds=f"r{st}")
        for i, m in enumerate(l):
            a(m)
            for _ in range(2):
                if rd: em(rd.pop(0))
            if fill and (i & 1 or len(l) == 3 and i == 2 and len(fill) > 3): em(fill.pop(0))
            elif post: a(post.pop(0))
        assert not rd
        if st == 24:
            for x in post: a(x)
            post = []
        if st == 25:
            a(f"v_add_f32 {vr(CSA)}, {vr(CSA)}, {vr(CSA+4)}\nv_add_f32 {vr(CSB)}, {vr(CSB)}, {vr(CSB+4)}")
            a(f"ds_write_b32 {vr(vCW)}, {vr(CSA)}\nds_write_b32 {vr(vCW)}, {vr(CSB)} offset:1024")
            a.wait(vm="gate"); a(f"v_cmp_ne_u32 vcc, 1, {vr(GATE)}")
        if st == 26:
            gatecheck()
            a(f"s_mov_b64 s[48:49], s[12:13]\ns_and_b32 s3, {sRB}, {3 if EK else 0}\ns_cselect_b32 s50, 0, s14")
            while fill: em(fill.pop(0))
            a.mark("wq")
            a(f"s_mov_b64 s[20:21], s[12:13]\ns_and_b32 s3, {sRB}, {0 if MA else 3}\ns_or_b32 s3, s3, {sW}\ns_cselect_b32 s22, 0, s14")
            a("s_waitcnt lgkmcnt(0)\ns_barrier")
            a(f"ds_read_b128 {vr(CSA,4)}, {vr(vCR)}\nds_read_b128 {vr(CSB,4)}, {vr(vCR)} offset:1024")
    kvhint = f"s_mov_b64 exec, 1\nbuffer_store_dword {vr(GATE)}, off, {RWQ}, {sKF} sc1\ns_mov_b64 exec, -1"
    H1 = optv("h1m", 1)
    kvhint = (lambda t=kvhint: a(t))
    if H1 == 0: kvhint()
    a("s_waitcnt lgkmcnt(0)")
    for x in [f"v_pk_add_f32 v[2:3], {vr(CSA,2)}, {vr(CSA+2,2)}", f"v_pk_add_f32 v[4:5], {vr(CSB,2)}, {vr(CSB+2,2)}", "v_add_f32 v2, v2, v3", "v_add_f32 v4, v4, v5"] + splitA(FA, "v2", "v8", "v9") + splitA(FB, "v4", "v10", "v11"): a(x)
    stamp(a, "p1_mm")
    a(f"v_mov_b32 v2, {vr(ACB+12)}\nv_mov_b32 v3, {vr(ACB+12)}\ns_mov_b32 vcc_lo, 0xaaaaaaaa\ns_mov_b32 vcc_hi, 0xaaaaaaaa\nv_permlane32_swap_b32 v2, v3\nv_mul_f32 v6, {fhex(-1.0/D)}, v3")
    for t in splitB(FM, "v6", "v8", "v9"): a(t)
    a(f"v_pk_add_f32 {vr(GR,2)}, {vr(GR,2)}, {vr(GR+4,2)}\nv_pk_add_f32 {vr(GR+2,2)}, {vr(GR+2,2)}, {vr(GR+6,2)}")
    a(mf(vr(ACA,16), vr(FA,4), vr(FM,4)))
    for i in range(2): a(f"v_cndmask_b32 {vr(GR+i)}, {vr(GR+2*i)}, {vr(GR+2*i+1)}, vcc")
    a("s_mov_b32 vcc_lo, 0xcccccccc\ns_mov_b32 vcc_hi, 0xcccccccc")
    a(mf(vr(ACB,16), vr(FB,4), vr(FM,4)))
    a(f"v_cndmask_b32 v2, {vr(GR)}, {vr(GR+1)}, vcc")
    xhalf_sum(a, "v2", "v3")
    a(f"v_mul_f32 v2, {fhex(1.0/D)}, v2\nv_fma_f32 v2, -v6, v6, v2\nv_max_f32 v2, 0, v2\nv_add_f32 v2, {fhex(1e-5)}, v2\nv_rsq_f32 {vr(RS)}, v2")
    def finish(acc, pk):
        for i in range(8): a(f"v_pk_mul_f32 {vr(acc+2*i,2)}, {vr(acc+2*i,2)}, {vr(RS,2)} op_sel_hi:[1,0]")
        for i in range(8): a(f"v_cvt_pk_bf16_f32 {vr(pk+i)}, {vr(acc+2*i)}, {vr(acc+2*i+1)}")
    if H1 == 1: kvhint()
    kvst = [f"buffer_store_dwordx4 {vr(PK+16+4*i,4)}, {vL16}, {RDBG}, {(sKVo, sQo)[i >> 1]} offen offset:{(i & 1)*1024} sc1" for i in range(4)]
    a(f"v_mov_b32 v2, 0x3f80\ns_cmp_ge_u32 {sH}, 8\ns_cbranch_scc{0 if JX else 1} L_v\ns_add_u32 {sQo}, {sKVo}, {64*4096}")
    n0 = a.nvm
    for hd in range(2):
        pk = PK+16+8*hd
        finish((ACA, ACB)[hd], pk)
        a(f"v_cndmask_b32 {vr(pk+6)}, {vr(pk+6)}, {vr(ONES)}, {MHI}\nv_cndmask_b32 {vr(pk+7)}, {vr(pk+7)}, v2, {MHI}")
        a(f"v_min_u32 {vr(pk)}, -2, {vr(pk)}\nv_min_u32 {vr(pk+4)}, -2, {vr(pk+4)}")
        a(kvst[2*hd]); a(kvst[2*hd+1])
    a(f"s_branch L_q\nL_v:\ns_add_u32 {sKVo}, {sKVo}, 2048\ns_add_u32 {sQo}, {sKVo}, {64*4096}")
    a.nvm = n0
    for hd in range(2):
        finish((ACA, ACB)[hd], PK+8*hd)
        a(f"v_cndmask_b32 {vr(PK+8*hd+6)}, {vr(PK+8*hd+6)}, v2, {MHI}\nv_cndmask_b32 {vr(PK+8*hd+7)}, {vr(PK+8*hd+7)}, {vr(FM+3)}, {MHI}")
        if hd:
            a.wait(ds="tv0")
            a(f"v_min_u32 {vr(PK+16)}, -2, {vr(PK+16)}\nv_min_u32 {vr(PK+20)}, -2, {vr(PK+20)}")
        for i in range(4): a(f"ds_write_b64 {vr(vTW)}, {vr(PK+8*hd+2*i,2)} offset:{hd*4096 + i*16}")
        for j in range(2):
            for e in range(2):
                a(f"ds_read_b64_tr_b16 {vr(PK+16+8*hd+4*j+2*e,2)}, {vr(vTR)} offset:{hd*4096 + (16*j+8*e)*72}")
        a.mark(f"tv{hd}")
    for hd in range(2):
        if hd:
            a.wait(ds="tv1")
            a(f"v_min_u32 {vr(PK+24)}, -2, {vr(PK+24)}\nv_min_u32 {vr(PK+28)}, -2, {vr(PK+28)}")
        a(kvst[2*hd]); a(kvst[2*hd+1])
    a("L_q:")
    if H1 == 2: kvhint()
    stamp(a, "p1_kvst")
    a.wait(vm="wq"); a("s_barrier")
    order = [(c, 0) for c in range(7)] + [(c, q) for q in range(1, 4) for c in range(7)]
    NB = 7
    def qrd(i):
        c, q = order[i]
        b = WF + 4*(i % 8)
        a(f"ds_read_b64_tr_b16 {vr(b,2)}, {vr(vQR[q])} offset:{c*4096}\nds_read_b64_tr_b16 {vr(b+2,2)}, {vr(vQR[q])} offset:{c*4096+256}", tag=f"q{i}")
    for i in range(NB - 1): qrd(i)
    a(f"s_mul_i32 s3, {sW}, {14*8*896}\ns_lshl_b32 {sT}, {sDB}, 7\ns_add_u32 {sT}, {sT}, s3")
    wo = [((m0set("s79", n*1024) + "\n" + (f"s_add_u32 {sT}, {sT}, {32*896}\n" if n else "")) if n % 4 == 0 else "") + dmai(vr(vWO[n % 4]), RWO, sT, (n % 4)*1024) for n in range(15)]
    for i in range(28):
        c, q = order[i]
        a.wait(ds=f"q{i}")
        b = vr(WF + 4*(i % 8), 4)
        if q == 0:
            for e in range(2): a(m4(CSB+4*e, vr(ONES,2), vr(WF + 4*(i % 8) + 2*e, 2), "0" if i == 0 else None))
        a(mf(vr(ACA,16), b, ar(16*c+4*q,4), "0" if i == 0 else None))
        if i + NB - 1 < 28: qrd(i + NB - 1)
        if i < optv("wo1", 8): a(wo.pop(0))
        if i == 9: a(f"v_add_f32 {vr(CSB)}, {vr(CSB)}, {vr(CSB+4)}\nds_write_b32 {vr(vCW)}, {vr(CSB)} offset:2048", tag="csq")
        if i == 13:
            a.wait(ds="csq"); a("s_barrier")
            a(f"ds_read_b128 {vr(CSB,4)}, {vr(vCR)} offset:2048", tag="csr")
        if i == 17:
            a.wait(ds="csr"); a(f"v_add_f32 v2, {vr(CSB)}, {vr(CSB+1)}\nv_add_f32 v3, {vr(CSB+2)}, {vr(CSB+3)}\nv_add_f32 v2, v2, v3")
            sp = splitA(FA, "v2", "v8", "v9") + [f"v_mul_f32 {vr(RS)}, {fhex(DH**-0.5 * math.log2(math.e))}, {vr(RS)}"]
        if i in (18, 19, 20):
            for t in sp[3*(i-18):3*(i-17)]: a(t)
        if i == 8: a(f"s_add_u32 s3, {sO}, 4096\ns_add_u32 s54, s12, s3\ns_addc_u32 s55, s13, 0")
        if EK and i == EK - 2: a.wait(vm="p0"); a("v_cmp_ne_u32 vcc, 1, v206")
        if EK and EK <= i < EK + 8:
            l = a.lab("ek"); t_, p_ = (i - EK) // 4, (i - EK) % 4
            a(f"s_cbranch_vccnz {l}\n{kvld(t_, p_)}\n{l}:", tag=f"kv{t_}_{p_}")
        if i == optv("pl1", 2 if EK else 24): a(p1ld, tag="p0")
    a(mf(vr(ACA,16), vr(FA,4), vr(FM,4)))
    if EK:
        a("s_sub_u32 s50, s14, s50")
        for x in kvst: a(x, tag="kvl")
    finish(ACA, Q+24)
    a(f"v_cndmask_b32 {vr(Q+30)}, {vr(Q+30)}, {vr(FM+3)}, {MHI}\nv_cndmask_b32 {vr(Q+31)}, {vr(Q+31)}, {vr(FM+3)}, {MHI}")
    a(f"ds_write_b128 v210, {vr(Q+24,4)}\nds_write_b128 v210, {vr(Q+28,4)} offset:1024")
    stamp(a, "p1_q")
    a(f"s_cmp_eq_u32 {sW}, 0\ns_cselect_b32 s22, s14, 0\ns_waitcnt {'' if EK else 'vmcnt(0) '}lgkmcnt(0)\ns_barrier")
    landed = f"s_mov_b64 exec, 1\nbuffer_store_dword {vr(GATE)}, off, {RWQ}, {sKF} offset:48 sc1\ns_mov_b64 exec, -1"
    if not EK: a("v_cmp_ne_u32 vcc, 1, v206")
    for j in range(3): a(f"ds_read_b128 {vr(Q+8*j,4)}, {vr(Q+8*j+4)}\nds_read_b128 {vr(Q+8*j+4,4)}, {vr(Q+8*j+4)} offset:1024")
    a("s_cbranch_vccnz L_flw\nL_flo:")
    b = Asm()
    b(f"L_flw:\n{p1ld}\n{'' if EK else landed}\ns_waitcnt vmcnt({0 if EK else 1})\nL_fl:\nv_cmp_ne_u32 vcc, 1, v206\ns_cbranch_vccz L_fl2")
    b(f"{SPIN}\n{p1ld}\ns_waitcnt vmcnt(0)\ns_branch L_fl\nL_fl2:")
    if EK:
        for i in range(8): b(kvld(i // 4, i % 4))
        b("s_waitcnt vmcnt(0)")
    b("s_branch L_flo")
    stubs.extend(b.L)
    stamp(a, "p1_flag")
    return wo, landed

def p2(a, stubs, wo, landed):
    KB, WB1 = "s[54:55]", "s[60:61]"
    class LD:
        def __init__(s_, t, part):
            s_.t, s_.part = t, part
            s_.pre = "s_add_u32 s54, s54, 8192\ns_addc_u32 s55, s55, 0" if (part == 0 and t and t % 2 == 0) else None
        def __call__(s_):
            a(kvld(s_.t, s_.part), tag=f"kv{s_.t}_{s_.part}")
    ld = LD
    gdma = lambda i: f"global_load_lds_dwordx4 {vr(vW1[i])}, {WB1} offset:{i*1024}"
    z = vr(PZ, 4)
    pz = [f"s_mov_b64 exec, 63\nbuffer_store_dword {vr(PZ)}, {vr(vHI)}, {RWQ}, 0 offen sc1\ns_mov_b64 exec, -1",
          f"buffer_store_dwordx4 {z}, {vL16}, {WS}, {sOo} offen sc1", f"buffer_store_dwordx4 {z}, {vL16}, {WS}, {sOo} offen offset:1024 sc1",
          f"buffer_store_dword {vr(PZ)}, {vr(vL4)}, {WS3}, {sSo} offen sc1",
          f"buffer_store_dwordx4 {z}, {vHS}, {WS3}, {sHo} offen sc1", f"buffer_store_dwordx4 {z}, {vHS}, {WS3}, {sHo} offen offset:1024 sc1",
          f"buffer_store_dwordx4 {z}, {vL16}, {WS4}, {sUo} offen sc1", f"buffer_store_dwordx4 {z}, {vL16}, {WS4}, {sU2} offen sc1"]
    pz = [(lambda x=x: a(x, tag="poison")) for x in pz]
    side = [f"buffer_load_dwordx4 {vr(XR+4*t,4)}, {vr(XR+4)}, {RX}, {sXR} offen offset:{t*64}" for t in range(2)]
    side += [f"buffer_load_dwordx2 {vr(B1+2*i,2)}, {vr(B1+2)}, {RB1}, {sB1} offen offset:{i*16}" for i in range(2)]
    side += [f"buffer_load_ushort {vr(B2)}, {vr(B2)}, {RB2}, {sB2} offen"]
    pflag = lambda: (a.wait(vm="poison"), a(f"s_mov_b64 exec, 7\nbuffer_store_dword {vr(PZ)}, {vr(vPF)}, {WS}, {sW4} offen offset:16 sc1\ns_mov_b64 exec, -1"))
    cntld = f"buffer_load_dwordx4 {vr(CNT,4)}, {vr(vCN)}, {WS}, {sCN} offen sc1"
    cntck = f"v_min3_u32 v2, {vr(CNT)}, {vr(CNT+1)}, {vr(CNT+2)}\nv_min_u32 v2, v2, {vr(CNT+3)}\nv_cmp_ne_u32 vcc, -1, v2"
    TAIL = optv("tl", 4)
    units = [(t, j) for t in range(16-TAIL) for j in range(4)] + [(t, j) for j in range(4) for t in range(16-TAIL, 16)]
    nu = len(units)
    slots = {}
    def put(u, sl, x, who="both", front=False):
        l = slots.setdefault((u, sl), [])
        l.insert(0 if front else len(l), (who, x))
    def lay(u0, items, who, rate=2):
        for i, x in enumerate(items):
            u, sl = u0 + i//rate, ((0, 2) if rate == 2 else (0, 1, 2))[i % rate]
            pre = getattr(x, "pre", None)
            if pre:
                if sl == 0 and u: put(u - 1, 3, pre, who)
                elif sl == 2 and rate == 2: put(u, 1, pre, who)
                else: put(u, sl, pre, who)
            put(u, sl, x, who)
        return u0 + -(-len(items) // rate)
    EK = optv("ek", 0)
    NP0 = optv("np0", 2 if EK else 3); K0 = optv("k0", 8)
    tiles = lambda t0, t1: [ld(t, p_) for t in range(t0, t1) for p_ in range(4)]
    early = tiles(NP0, 4) + wo + pz
    ne = min(len(early), 2*K0)
    lay(0, early[:ne], "both"); early = early[ne:]
    kvl = tiles(4, 16); q = []; ex = early + side
    XE = optv("xe", 3)
    while kvl or ex:
        if ex and len(q) >= 4 and (len(q) % XE == 0 or not kvl): q.append(ex.pop(0))
        else: q.append(kvl.pop(0))
    lastp = max([i for i, x in enumerate(q) if x in pz], default=0)
    A3 = optv("a3", 20)
    AEND = lay(lay(K0, q[:A3], "stg"), q[A3:], "stg", 3)
    put(K0 + lastp//2 + 7, 3, pflag, "stg")
    tch = [f"buffer_load_dword v5, {vr(vIT)}, {RW1}, {sI1} offen\ns_add_u32 {sI1}, {sI1}, {128*3584}" for i in range(4)]
    tch += [f"buffer_load_dword v5, {vr(vIT+1)}, {RW2}, {sI2} offen\ns_add_u32 {sI2}, {sI2}, {112*4096}" for i in range(4)]
    IK = optv("ik", 7); u_ = K0; NT = optv("nt", 6); tch = tch[:NT]
    if IK >= 0:
        u_ = lay(K0, tiles(4, 4 + IK), "idle", 3)
        put(u_, 0, tch.pop(0), "idle"); u_ += optv("ip", 5)
    else: IK = 0
    qi = tiles(4 + IK, 6 + IK) + early + tiles(6 + IK, 16) + side
    ue = lay(u_, qi, "idle", 3)
    put(u_ + (8 + len(early))//3 + 6, 3, pflag, "idle")
    for i, x in enumerate(tch): put(min(nu - 2, ue + i*optv("is", 3)), 1, x, "idle")
    b = Asm()
    b(f"L_refkv:\n{SPIN}\ns_lshl2_add_u32 s3, {sH}, {sW}\ns_lshl_b32 s3, s3, 16")
    for t in range(4):
        for p_ in range(4): b(f"buffer_load_dwordx4 {kvr(t, 4*p_, 4)}, {vL16}, {WS}, s3 offen offset:{p_*1024} sc1")
        b("s_add_u32 s3, s3, 4096")
    b("s_waitcnt vmcnt(0)\ns_setpc_b64 s[76:77]")
    stubs.extend(b.L)
    def kvtag(x, t):
        for p_ in range(4): x(f"v_accvgpr_read_b32 v{(2, 3, 4, 10)[p_]}, {kvr(t, 4*p_, 1)}")
        x("v_max3_u32 v2, v2, v3, v4\nv_max_u32 v2, v2, v10\nv_cmp_eq_u32 vcc, -1, v2")
    def kvpost(t):
        lb = a.lab("kck"); ls = a.lab("krt")
        a(f"s_cbranch_vccnz {ls}\n{lb}:")
        b = Asm(); b(f"{ls}:\ns_call_b64 s[76:77], L_refkv"); kvtag(b, t); b(f"s_cbranch_vccnz {ls}\ns_branch {lb}")
        stubs.extend(b.L)
    for t in range(1, 16):
        uf = min(u for u, (tt, j) in enumerate(units) if tt == t)
        put(uf - 2, 1 if t < 4 else 3, (lambda t=t: a.wait(vm=f"kv{t}_3")), front=True)
        if t < 4:
            put(uf - 2, 1, lambda t=t: kvtag(a, t)); put(uf - 2, 3, lambda t=t: kvpost(t), front=True)
    def spin(name, load, cmp_):
        lb = a.lab(name); ls = a.lab(name + "r")
        a(f"s_cbranch_vccnz {ls}\n{lb}:")
        b = Asm(); b(f"{ls}:\n{SPIN}\n{load}\ns_waitcnt vmcnt(0)\n{cmp_}\ns_cbranch_vccnz {ls}\ns_branch {lb}")
        stubs.extend(b.L)
    fl2 = f"buffer_load_dword v11, {vr(vFL)}, {WS}, 0 offen offset:48 sc1"
    put(K0 - optv("pl2", 3), 1, lambda: a(fl2, tag="fl2"))
    assert (K0 - 1) % 4 != 2
    put(K0 - 1, 1, lambda: (a.wait(vm="fl2"), a("v_cmp_ne_u32 vcc, 1, v11")))
    put(K0 - 1, 3, lambda: spin("f2", fl2, "v_cmp_ne_u32 vcc, 1, v11"), front=True)
    put(optv("cntu", 53), 1, lambda: a(cntld, tag="cnt"), "stg")
    put(optv("cnti", 40), 0, lambda: a(cntld, tag="cnt"), "idle")
    WBLK = [12, 13, 14, 15] + TBLK
    RSL = []
    def w1rd(n):
        return [f"ds_read_b64_tr_b16 {ar(16*WBLK[n]+8*k+4*sl+2*e,2)}, {vr(vT1[sl])} offset:{RSL[n]*4096+k*2048+e*512}" for k in range(2) for sl in range(2) for e in range(2)]
    late = []
    LAG = optv("lag", 6)
    free = [0]*6; owner = [None]*6; u0 = optv("b0", AEND)
    adv = f"s_add_u32 {sG}, {sG}, {32*3584}"
    for n in range(16):
        S5 = "s5" in OPT
        cand = [x for x in range(6) if x < 3 or max(u0, free[x]) + LAG + 1 <= (60 if S5 and x == 5 else 55)]
        sl_ = min(cand, key=lambda x: (max(u0, free[x]), (3, 4, 5, 2, 1, 0).index(x) if S5 else -x))
        u0 = max(u0, free[sl_]); RSL.append(sl_)
        if u0 + 1 >= nu - 1 or n >= optv("w1n", 16):
            def mk(n=n):
                dma_ = lambda slot: [m0set(sAR, slot*4096) + f"\ns_add_u32 s59, {sG}, {n*32*3584}\n" + dmai(vr(vW1[0]), RW1, "s59")] + [dmai(vr(vW1[i]), RW1, "s59", i*1024) for i in range(1, 4)]
                def rd_(slot):
                    RSL[n] = slot; return w1rd(n)
                return dma_, rd_
            late.append(("d", mk())); u0 = 99
            continue
        if owner[sl_] is not None: put(u0 - 1, 1, (lambda m=owner[sl_]: a.wait(ds=f"w1r{m}")), "stg", front=True)
        owner[sl_] = n
        put(u0 - 1, 3, m0set(sAR, sl_*4096), "stg")
        bp = (60, 62)[n & 1]; bq = (60, 62)[~n & 1]
        if u0 < 60: put(u0, 1, f"s_add_u32 s{bq}, s{bp}, {32*3584}", "stg"); put(u0, 3, f"s_addc_u32 s{bq+1}, s{bp+1}, 0", "stg", front=True)
        for i in range(4): put(u0 + i//2, 2*(i & 1), (lambda n=n, i=i, bp=bp: a(gdma(i).replace(WB1, f"s[{bp}:{bp+1}]"), tag=f"g{n}")), "stg", front=True)
        rdi = [lambda n=n: a.wait(vm=f"g{n}")] + [(lambda x=x, n=n: a(x, tag=f"w1r{n}")) for x in w1rd(n)]
        ur = u0 + LAG
        assert n < 4 or ur > 4*(n - 4) + 5
        if ur + 1 < nu - 3:
            put(ur - 2, 3, rdi[0], "stg", front=True) if LAG % 2 == 0 and "wearly" in OPT else put(ur - 1, 1, rdi[0], "stg", front=True)
            for i, x in enumerate(rdi[1:]): put(ur + i//4, 2*((i >> 1) & 1), x, "stg")
            if sl_ >= 3 and ur + 1 <= 55: lastn = n
            free[sl_] = ur + 3
        else:
            late.append(("r", rdi)); free[sl_] = 70 + n
        u0 += 2
    put(56, 3, lambda: a.wait(ds=f"w1r{lastn}"), "stg")
    put(56, 3, "s_barrier")
    wr = lambda j, i: f"ds_write_b128 {vr(vIW+j)}, {vr(O+16*j+4*i,4)} offset:{j*4096+i*1024}"
    rdi_ = lambda i: f"ds_read_b128 {vr(O+4*i,4)}, {vr(vIW+3)} offset:{INB+i*1024}"
    if TAIL == 3:
        for j in range(3):
            for i in range(4):
                uu, sl = ((61, 3) if i == 0 else (62, i - 1)) if j == 2 else (57 + 2*j, i)
                put(uu, sl, wr(j, i))
        for i in range(12): put(nu - 1, i // 4, rdi_(i))
    else:
        for n in range(12): put(57 + n//2, 1 + 2*(n & 1) - (1 if n >= 10 else 0), wr(n // 4, n % 4))
        if "nor2b" not in OPT:
            if S5: put(61, 0, "s_waitcnt lgkmcnt(0)\ns_barrier")
            else: put(61, 2, lambda: (a("s_waitcnt lgkmcnt(1)"), a("s_barrier")))
            for i in range(8): put(62, 1 + 2*(i // 4), rdi_(i))
            for i in range(8, 12): put(nu - 1, 1, rdi_(i))
        else:
            for i in range(12): put(nu - 1, 1 if i < 8 else 3, rdi_(i))
    put(61, 0, lambda: (a.wait(vm="cnt"), a(cntck)))
    put(61, 1, (lambda: spin("cn", cntld, cntck)), front=True)
    put(nu - 1, 0 if TAIL == 3 else 1, "s_waitcnt lgkmcnt(0)\ns_barrier", front=True)

    H2 = optv("h2", 62)
    if H2 < 64: put(H2, 3, hint(sH2))
    if not EK:
        for x in tiles(0, 1): x()
        a(landed)
    else: put(optv("lu", 4), 3, lambda: (a.wait(vm="kvl"), a("s_barrier\n" + landed)))
    a(f"s_add_u32 s60, s28, {sG}\ns_addc_u32 s61, s29, 0")
    if "perm" in OPT: a("s_mov_b32 s56, 0x07060302")
    for x in tiles(2 if EK else 1, NP0):
        if x.pre: a(x.pre)
        x()
    a.wait(vm="kv0_3")
    kvtag(a, 0); a("s_waitcnt lgkmcnt(0)"); kvpost(0)
    a(mf(vr(SS,16), kvr(0,0,4), vr(Q,4), "0")); a(mf(vr(SS,16), kvr(0,4,4), vr(Q+4,4)))
    stamp(a, "p2_loop")
    def emit_units(me):
        a.smart = True; a.dvm = a.dds = -1
        emit_units_(me)
        a.smart = False
    def emit_units_(me):
        for u in range(nu):
            t, j = units[u]
            sc, sn = SS + 16*(u & 1), SS + 16*((u+1) & 1)
            def valu(g):
                for who, x in slots.get((u, g), []):
                    if who in ("both", me): x() if callable(x) else a(x)
                for i in range(4): a(f"v_exp_f32 {vr(sc+4*g+i)}, {vr(sc+4*g+i)}")
                for i in range(2):
                    if "perm" in OPT: a(f"v_perm_b32 {vr(P+2*g+i)}, {vr(sc+4*g+2*i+1)}, {vr(sc+4*g+2*i)}, s56")
                    else: a(f"v_cvt_pk_bf16_f32 {vr(P+2*g+i)}, {vr(sc+4*g+2*i)}, {vr(sc+4*g+2*i+1)}")
            nx = units[u+1] if u + 1 < nu else None
            pv = units[u-1] if u else None
            if "p2st" in OPT and u and (u <= 14 if "head" in OPT else u % 8 == 0 if "tail" not in OPT else u >= 54): stamp(a, f"t{u}")
            if nx: a(mf(vr(sn,16), kvr(nx[0],0,4), vr(Q+8*nx[1],4), "0"))
            valu(0)
            if pv: a(mf(vr(O+16*pv[1],16), kvr(pv[0],12,4), vr(P+4,4)))
            valu(1)
            if nx: a(mf(vr(sn,16), kvr(nx[0],4,4), vr(Q+8*nx[1]+4,4)))
            valu(2)
            a(mf(vr(O+16*j,16), kvr(t,8,4), vr(P,4), None if u >= 4 else "0"))
            valu(3)
    assert all(0 <= u < nu for u, g in slots)
    a("s_cmp_eq_u32 s30, 0\ns_cbranch_scc1 L_idle")
    keep = (a.L, a.nvm, a.nds, dict(a.tags))
    a.L = []
    a(f"L_idle:\ns_mov_b32 s30, {S*F*2}"); emit_units("idle"); a("s_mov_b32 s30, 0\ns_branch L_att_end\nL_nopad:")
    stubs[:0] = a.L
    a.L, a.nvm, a.nds, a.tags = keep
    emit_units("stg")
    a("L_att_end:")
    a(mf(vr(O+48,16), kvr(15,12,4), vr(P+4,4)))
    stamp(a, "p2_loopend")
    if H2 == 64: a(hint(sH2))
    if optv("p2p", 1) == 0: a(f"buffer_load_dword v6, {vr(vL7)}, {WS}, {sP2} offen sc1", tag="h2")
    a("s_waitcnt lgkmcnt(0)")
    for i in range(8): a(f"v_pk_add_f32 {vr(O+2*i,2)}, {vr(O+2*i,2)}, {vr(O+16+2*i,2)}")
    for i in range(8): a(f"v_pk_add_f32 {vr(O+2*i,2)}, {vr(O+2*i,2)}, {vr(O+32+2*i,2)}")
    fin = [f"v_pk_add_f32 {vr(O+48+2*i,2)}, {vr(O+48+2*i,2)}, {vr(O+2*i,2)}" for i in (6, 0, 1, 2, 3, 4, 5, 7)]
    a(fin[0]); a(f"v_mov_b32 v2, {vr(O+48+12)}\nv_mov_b32 v4, {vr(O+48+12)}\nv_mov_b32 v3, {fhex(2.0**60)}"); a(fin[1])
    a(f"v_permlane32_swap_b32 v2, v4\nv_med3_f32 v2, v4, {sLO}, v3\nv_cmp_neq_f32 vcc, v2, v4")
    for x in fin[2:]: a(x)
    a("s_cbranch_vccnz L_safe\nL_safe_done:\nv_rcp_f32 v4, v4\nv_mov_b32 v3, 0")
    if H2 == 65: a(hint(sH2))
    safe_path(stubs)
    OP = 176
    for hlf in range(2):
        for i in range(4*hlf, 4*hlf+4): a(f"v_pk_mul_f32 {vr(O+48+2*i,2)}, {vr(O+48+2*i,2)}, v[4:5] op_sel_hi:[1,0]")
        for i in range(4*hlf, 4*hlf+4): a(f"v_cvt_pk_bf16_f32 {vr(OP+i)}, {vr(O+48+2*i)}, {vr(O+48+2*i+1)}")
        if hlf: a(f"v_cndmask_b32 {vr(OP+6)}, {vr(OP+6)}, v3, {MHI}\nv_cndmask_b32 {vr(OP+7)}, {vr(OP+7)}, v3, {MHI}")
        a(f"v_min_u32 {vr(OP+4*hlf)}, -2, {vr(OP+4*hlf)}")
        a(f"buffer_store_dwordx4 {vr(OP+4*hlf,4)}, {vL16}, {WS}, {sOo} offen offset:{1024*hlf} sc1")
    if H2 == 99: a(hint(sH2))
    stamp(a, "p2_end")
    a(f"s_cmp_ge_u32 {sDB}, 7\ns_cbranch_scc1 L_tail")
    b = Asm()
    b(f"L_tail:\ns_mul_i32 s3, {sW}, 448\ns_and_b32 s56, {sSB}, 3\ns_mul_i32 s56, s56, 28\ns_add_u32 s3, s3, s56\ns_lshl_b32 s3, s3, 12\ns_lshr_b32 s56, {sSB}, 2\ns_lshl_b32 s56, s56, 9\ns_add_u32 s3, s3, s56")
    if "notaildr" not in OPT: b("s_waitcnt vmcnt(0)")
    for i in range(NT - 4, 4 if "notail" not in OPT else 0):
        for k in range(2): b(f"s_add_u32 s56, s3, {(112*i + 12*k)*4096}\nbuffer_load_dword v5, {vr(vIT+1)}, {RW2}, s56 offen")
    b("s_waitcnt vmcnt(0)\ns_branch L_fin")
    stubs.extend(b.L)
    return late, WBLK

def safe_path(stubs):
    b = Asm(); b.uid = 900000
    QS = Q + 24; OO = O + 48; K_ = KVB
    def ldt(n):
        for p_ in range(n): b(f"buffer_load_dwordx4 {vr(K_+4*p_,4)}, {vL16}, {WS}, s54 offen offset:{p_*1024} sc1")
        b("s_add_u32 s54, s54, 4096\ns_waitcnt vmcnt(0)")
        b(mf(vr(SS,16), vr(K_,4), vr(QS,4), "0")); b(mf(vr(SS,16), vr(K_+4,4), vr(QS+4,4)))
    b(f"L_safe:\ns_lshl_b32 s54, {sH}, 18\ns_add_u32 s3, s54, {64*4096}\nv_mov_b32 v2, 0xff800000")
    b("L_safe_max:")
    ldt(2)
    for i in range(8): b(f"v_max3_f32 v2, v2, {vr(SS+2*i)}, {vr(SS+2*i+1)}")
    b("s_cmp_lt_u32 s54, s3\ns_cbranch_scc1 L_safe_max")
    b("v_mov_b32 v4, v2\nv_permlane32_swap_b32 v2, v4\nv_max_f32 v2, v2, v4\nv_sub_f32 v2, 0, v2")
    for t in split3("v2", "v4", "v5"): b(t)
    b(f"s_mov_b32 s54, 0x07060302\nv_perm_b32 v2, v4, v2, s54\nv_lshrrev_b32 v5, 16, v5")
    b(f"v_cndmask_b32 {vr(QS+6)}, {vr(QS+6)}, v2, {MHI}\nv_cndmask_b32 {vr(QS+7)}, {vr(QS+7)}, v5, {MHI}")
    for i in range(16): b(f"v_mov_b32 {vr(OO+i)}, 0")
    b(f"s_lshl_b32 s54, {sH}, 18")
    b("L_safe_pv:")
    ldt(4)
    for i in range(16): b(f"v_exp_f32 {vr(SS+i)}, {vr(SS+i)}")
    for i in range(8): b(f"v_cvt_pk_bf16_f32 {vr(P+i)}, {vr(SS+2*i)}, {vr(SS+2*i+1)}")
    b(mf(vr(OO,16), vr(K_+8,4), vr(P,4))); b(mf(vr(OO,16), vr(K_+12,4), vr(P+4,4)))
    b("s_nop 7\ns_cmp_lt_u32 s54, s3\ns_cbranch_scc1 L_safe_pv")
    b(f"v_mov_b32 v2, {vr(OO+12)}\nv_mov_b32 v4, {vr(OO+12)}\nv_permlane32_swap_b32 v2, v4\ns_branch L_safe_done")
    stubs.extend(b.L)

vW2 = [8, 9, 10, 11]; vT2 = [12, 13]; vT3 = [246, 247]
sG2 = "s54"; sXA = "s61"
RED = 0
def slot_m0(slot): return m0set(sAR, slot*4096) if slot < 6 else m0set(sXA, (slot-6)*4096)
def slot_rd(slot): return (vT2, slot*4096) if slot < 6 else (vT3, (slot-6)*4096)
def w2dma(g, slot):
    if "now2" in OPT: return ["s_nop 0"] * 4
    return [(slot_m0(slot) + f"\ns_add_u32 s59, {sG2}, {g*32*4096}\n" if i == 0 else "") + dmai(vr(vW2[i]), RW2, "s59", i*1024) for i in range(4)]
def w2rd(dst, va, off):
    return [f"ds_read_b64_tr_b16 {dst(4*sl+2*e)}, {vr(va[sl])} offset:{off+e*1024}" for sl in range(2) for e in range(2)]

def tagcheck(a, regs, t="v2"):
    regs = list(regs)
    a(f"v_max3_u32 {t}, {vr(regs[0])}, {vr(regs[1])}, {vr(regs[2])}"); regs = regs[3:]
    while len(regs) >= 2:
        a(f"v_max3_u32 {t}, {t}, {vr(regs[0])}, {vr(regs[1])}"); regs = regs[2:]
    if regs: a(f"v_max_u32 {t}, {t}, {vr(regs[0])}")
    a(f"v_cmp_eq_u32 vcc, -1, {t}")

def p3(a, w1rd, stubs):
    OF = RING; AC = AC0; WFB = [176, 184, 224, 232]
    vT0, vT1_ = 4, 5
    EXO = TRB = 5*4096
    def em(x): x() if callable(x) else a(x)
    T = [it for kind, it in w1rd if kind == "d"]; NL = len(T)
    if "-v" in OPT: print("; late W1 groups", NL)
    for g in range(6):
        T.append((lambda slot, g=g: w2dma(g, slot),
                  lambda slot, g=g: sum([w2rd(lambda o, k=k: vr(PARK+16*g+8*k+o, 2), slot_rd(slot)[0], slot_rd(slot)[1] + k*2048) for k in range(2)], [])))
    RES = []
    def res(slot):
        RES.append(slot); return w2dma(5 + len(RES), slot)
    NA = max(optv("na", 4), NL); NB = min(optv("nb", 3), len(T) - NA); NX = len(T) - NA - NB
    assert NX <= 2 and NA <= 5
    asl = [3, 4, 0, 1, 2]; bsl = (asl[NA:] + asl)[:NB]
    def w2setup():
        swz128(a, vr(vW2[0]), 4096)
        for i in range(1, 4): a(f"v_add_u32 {vr(vW2[i])}, {i*(8*4096-1024)}, {vr(vW2[0])}")
        a(f"s_mul_i32 {sG2}, {sW}, {448*4096}\ns_lshl_b32 s3, {sSB}, 7\ns_add_u32 {sG2}, {sG2}, s3")
    A = a
    a(f"v_readlane_b32 s55, {vr(vHI)}, 3")
    if NL == 0: w2setup()
    its = []
    for i in range(NA):
        l = [(lambda x=x: A(x, tag="wa")) for x in T[i][0](asl[i])]
        if i == 2: l[0] = (lambda f=l[0]: (A.wait(ds="lr"), f()))
        its += l
    a = Weaver(A, its, optv("ga", 10))
    if NL: w2setup()
    for kind, items in w1rd:
        if kind == "r":
            for x in items: x(); a.n += 1; a.kick()
    A.mark("lr")
    assert len(a.items) >= len(its) - 8 and (not NL or True)
    a(f"v_bfe_u32 v15, {vL}, 4, 1\nv_lshlrev_b32 v15, 5, v15\nv_and_b32 v5, 3, {vL}\nv_lshl_add_u32 v15, v5, 3, v15\ns_lshl_b32 s3, {sST}, 6\nv_add_u32 v5, s3, v15")
    trbase(a, vr(vT2[0]), 4, "v5")
    a(f"v_add_u32 {vr(vT2[0])}, {sAR}, {vr(vT2[0])}\nv_xor_b32 {vr(vT2[1])}, 64, {vr(vT2[0])}")
    a(f"v_and_b32 v5, 32, v15\ns_lshl_b32 s3, {sKH}, 5\nv_add3_u32 v15, v15, v5, s3")
    trbase(a, vr(vT0), 4, "v15", sw=5)
    a(f"s_mul_i32 s3, {sKH}, {224*128}\nv_add_u32 {vr(vT0)}, s3, {vr(vT0)}\nv_xor_b32 {vr(vT1_)}, 32, {vr(vT0)}")
    def rd(k):
        hh, j = k >> 1, k & 1
        for t, va in enumerate((vT0, vT1_)):
            for e in range(2):
                a(f"ds_read_b64_tr_b16 {vr(WFB[k&3]+4*t+2*e,2)}, {vr(va)} offset:{(28*hh+16*j+8*e)*128}")
        a.mark(f"wo{k}")
    if "g2" in OPT: a(f"buffer_load_dword v254, {vr(vL7)}, {WS}, {sP2} offen sc1")
    if optv("p2p", 1) == 1: a(f"buffer_load_dword v6, {vr(vL7)}, {WS}, {sP2} offen sc1", tag="h2")
    rd(0); rd(1)
    a(f"v_min_u32 v2, 6, {vL}\nv_lshlrev_b32 v15, 12, v2\ns_lshl_b32 s60, {sSB}, 7\ns_add_u32 s60, s60, {HT + 32768}")
    for t in range(2):
        for i in range(2): a(f"v_permlane32_swap_b32 {vr(XR+4*t+i)}, {vr(XR+4*t+2+i)}")
    for t in range(2):
        for i in range(4): a(f"v_lshlrev_b32 {vr(AC+8*t+2*i)}, 16, {vr(XR+4*t+i)}\nv_and_b32 {vr(AC+8*t+2*i+1)}, 0xffff0000, {vr(XR+4*t+i)}")
    if optv("p2p", 1) == 2: a(f"buffer_load_dword v6, {vr(vL7)}, {WS}, {sP2} offen sc1", tag="h2")
    vEW, vER, vSA = XR+3, XR+4, XR+5
    a(f"v_add_u32 {vr(vEW)}, {sAR}, {vL16}\ns_xor_b32 s3, {sW}, 2\ns_mul_i32 s3, s3, {ARENA}\ns_add_u32 s3, s3, {ARENA0}\nv_add_u32 {vr(vER)}, s3, {vL16}")
    a(f"v_lshlrev_b32 {vr(vSA)}, 3, {vL}\ns_lshl_b32 s62, {sTile}, 12\ns_add_u32 s62, s62, {ST}")
    a(f"s_lshl_b32 {sXA}, {sW}, 13\ns_add_u32 {sXA}, {sXA}, {RED + 24576}\ns_sub_u32 s3, {sXA}, {sAR}\nv_add_u32 {vr(vT3[0])}, s3, {vr(vT2[0])}\nv_xor_b32 {vr(vT3[1])}, 64, {vr(vT3[0])}")
    a(f"v_and_b32 v2, 31, {vL}\nv_mul_u32_u24 v2, 72, v2\nv_lshrrev_b32 v3, 5, {vL}\nv_lshl_add_u32 v2, v3, 3, v2\nv_add_u32 {vr(XR)}, {sAR}, v2")
    a(f"v_bfe_u32 v2, {vL}, 2, 2\nv_lshl_add_u32 v2, v3, 3, v2\nv_mul_u32_u24 v2, 72, v2\nv_bfe_u32 v3, {vL}, 4, 1\nv_lshl_add_u32 v2, v3, 5, v2\nv_and_b32 v3, 3, {vL}\nv_lshl_add_u32 v2, v3, 3, v2\nv_add_u32 {vr(XR+1)}, {sAR}, v2")
    a(f"s_lshl1_add_u32 s63, {sTile}, {sKH}\ns_lshl_b32 s63, s63, 14\ns_add_u32 s63, s63, {OB}")
    a.flush(); a = A
    tour(a, 1)
    if optv("p2p", 1) == 3: a(f"buffer_load_dword v6, {vr(vL7)}, {WS}, {sP2} offen sc1", tag="h2")
    def old(x, masked=False, fill=[]):
        x("s_mov_b32 s3, s63")
        for k in range(16):
            if k and k % 4 == 0: x("s_add_u32 s3, s3, 4096")
            if masked: x(f"s_mov_b64 exec, -1\nv_cmpx_eq_u32 vcc, -1, {vr(OF+4*k)}")
            x(f"buffer_load_dwordx4 {vr(OF+4*k,4)}, {vL16}, {WS}, s3 offen offset:{(k%4)*1024} sc1", tag=f"o{k}")
            if k >= 6:
                for _ in range(6):
                    if fill: em(fill.pop(0))
        assert not fill
    if "g2" in OPT: gate2(a, "h2", "v6", "v254", vr(vL7), sP2, "h2")
    else: gate(a, "h2", "v6", vr(vL7), sP2, "h2")
    stamp(a, "p3_gate")
    fl = [lambda: rd(2), lambda: a.wait(vm="wa")] + sum([T[i][1](asl[i]) for i in range(NA)], []) + [lambda: a.mark("pr")]
    old(a, fill=fl)
    b = Asm()
    b(f"L_refo:\n{SPIN}\ns_waitcnt vmcnt(0)")
    old(b, True)
    b("s_mov_b64 exec, -1\ns_waitcnt vmcnt(0)\ns_setpc_b64 s[76:77]")
    stubs.extend(b.L)
    def ocheck(g):
        lb = a.lab("ock"); ls = a.lab("ort"); regs = [OF+16*g+4*i for i in range(4)]
        def pre(): a.wait(vm=f"o{4*g+3}"); tagcheck(a, regs)
        def post():
            a(f"s_cbranch_vccnz {ls}\n{lb}:")
            b = Asm(); b(f"{ls}:\ns_call_b64 s[76:77], L_refo"); tagcheck(b, regs); b(f"s_cbranch_vccnz {ls}\ns_branch {lb}")
            stubs.extend(b.L)
        return pre, post
    pre, post = ocheck(0); pre(); a.wait(ds="pr"); post()
    stamp(a, "p3_o")
    fill = sum([T[NA+i][0](bsl[i]) for i in range(NB)], [])
    F0 = min(optv("f0", 0), 16 - len(fill))
    mm = lambda k, t: mf(vr(AC+16*t,16), vr(WFB[k&3]+4*t,4), vr(OF+4*k,4), "0" if (k == 0 and t == 1) else None)
    SK3 = optv("sk3", 0)
    for k in range(16 - SK3):
        a.wait(ds=f"wo{k}")
        ck = ocheck((k+1)//4) if (k % 4 == 3 and k < 15) else None
        for t in range(2):
            a(mm(k, t))
            if t == 0 and k + 3 < 16: rd(k+3)
            if t == 0 and ck: ck[0]()
            if t == 0 and k == optv("hsk", 10): a(("s_barrier\n" if "nohsb" not in OPT else "") + hintn())
            if t == 1 and k >= F0 and fill: a(fill.pop(0), tag="b2")
        if ck: ck[1]()
    exw = [f"ds_write_b128 {vr(vEW)}, {vr(AC+16+4*i,4)} offset:{EXO+i*1024}" for i in range(4)]
    for k in range(16 - SK3, 16):
        a.wait(ds=f"wo{k}"); a(mm(k, 1))
        if k == 12: rd(15)
        if fill: a(fill.pop(0), tag="b2")
    for k in range(16 - SK3, 16):
        a(mm(k, 0))
        if k >= 16 - SK3 + 1: a(exw.pop(0))
    assert not fill
    stamp(a, "p3_mm")
    for x in exw: a(x)
    a("s_waitcnt lgkmcnt(0)\ns_barrier")
    for i in range(4): a(f"ds_read_b128 {vr(HH+4*i,4)}, {vr(vER)} offset:{EXO+i*1024}", tag=f"ex{i}")
    a(f"buffer_load_dword {vr(XR+2)}, v15, {WS}, s60 offen sc1", tag="hs")
    for i in range(8):
        if i % 2 == 0: a.wait(ds=f"ex{i//2}")
        a(f"v_pk_add_f32 {vr(HH+2*i,2)}, {vr(HH+2*i,2)}, {vr(AC+2*i,2)}")
        if i == 1: a(f"v_pk_add_f32 v[2:3], {vr(HH,2)}, {vr(HH+2,2)}\nv_pk_mul_f32 v[4:5], {vr(HH,2)}, {vr(HH,2)}\nv_pk_fma_f32 v[4:5], {vr(HH+2,2)}, {vr(HH+2,2)}, v[4:5]")
        if i > 1: a(f"v_pk_add_f32 v[2:3], v[2:3], {vr(HH+2*i,2)}\nv_pk_fma_f32 v[4:5], {vr(HH+2*i,2)}, {vr(HH+2*i,2)}, v[4:5]")
    a("v_add_f32 v2, v2, v3\nv_add_f32 v3, v4, v5\nv_mov_b32 v4, v2\nv_mov_b32 v5, v3\ns_mov_b32 exec_hi, -1\nv_permlane32_swap_b32 v4, v2\nv_permlane32_swap_b32 v5, v3\nv_pk_add_f32 v[2:3], v[2:3], v[4:5]\nv_min_u32 v3, -2, v3")
    a(f"s_mov_b32 exec_hi, 0\nbuffer_store_dwordx2 v[2:3], {vr(vSA)}, {WS}, {sSo} offen sc1\ns_mov_b32 exec_hi, -1", tag="st")
    stamp(a, "p3_stpub")
    NC1 = max(optv("nc1", 2), NX)
    a = Weaver(A, [(lambda x=x: A(x, tag="c1")) for i in range(NC1) for x in (T[NA+NB+i][0](6+i) if i < NX else res(6+i))], optv("gc", 4))
    def sld(masked=False):
        for i in range(7):
            if masked: a(f"s_mov_b64 exec, -1\nv_cmpx_eq_u32 vcc, -1, {vr(OF+2*i+1)}")
            a(f"buffer_load_dwordx2 {vr(OF+2*i,2)}, {vr(vSA)}, {WS}, s62 offen offset:{i*512} sc1")
    if NB: a.wait(vm="b2")
    for i in range(NB):
        for x in T[NA+i][1](bsl[i]): a(x)
    a.flush(); a = A
    if "nodr" not in OPT: a.wait(vm="st")
    gate(a, "hs", vr(XR+2), "v15", "s60", "hs")
    stamp(a, "p3_sgate")
    sld(); a.mark("sl")
    a(f"v_min_u32 v2, 7, {vL}\nv_lshlrev_b32 v15, 7, v2\ns_cmp_eq_u32 {sD4}, 7\ns_cselect_b32 s60, 3, {sD4}\ns_lshl2_add_u32 s60, s60, {sW}\ns_lshl_b32 s60, s60, 10\ns_add_u32 s60, s60, {HT + 2*32768}")
    def xreads():
        if NX:
            a.wait(vm="c1")
            for i in range(NX):
                for x in T[NA+NB+i][1](6+i): a(x)
    CF = "cf" in OPT
    if not CF: xreads()
    pool = [i for i in (0, 1, 2, 3, 4, 6, 7, 5) if i not in RES]
    NC = optv("nc", 1); ND = optv("nd", 3); NE = optv("ne", 3)
    if NC: a("s_waitcnt lgkmcnt(0)")
    for i in range(NC):
        if optv("h3p", 2) == 1 and i == optv("h3i", 1): a("s_barrier\n" + hintn())
        for x in res(pool.pop(0)): a(x)
    if CF: xreads()
    d1 = sum([res(pool.pop(0)) for i in range(min(ND, len(pool)))], [])
    d2 = sum([res(pool.pop(0)) for i in range(max(0, len(pool) - NE))], [])
    d3 = sum([res(pool.pop(0)) for i in range(len(pool))], [])
    lp = a.lab("s"); lo = a.lab("so")
    a(f"s_mov_b32 s3, {fhex(1.0 + 1e-5)}\nv_mov_b32 v6, {fhex(1e-10)}")
    if optv("h3p", 2) == 2: a("s_barrier\n" + hintn())
    a.wait(vm="sl")
    tagcheck(a, [OF+2*i+1 for i in range(7)])
    b = Asm(); keep = a.L; a.L = []; nv = a.nvm
    a(f"{lp}:\n{SPIN}"); sld(True); a("s_mov_b64 exec, -1\ns_waitcnt vmcnt(0)"); tagcheck(a, [OF+2*i+1 for i in range(7)]); a(f"s_cbranch_vccnz {lp}\ns_branch {lo}")
    stubs.extend(a.L); a.L = keep; a.nvm = nv
    a(f"s_cbranch_vccnz {lp}\n{lo}:")
    if optv("h3p", 2) == 3: a("s_barrier\n" + hintn())
    stamp(a, "p3_stats")
    for i, k in ((0, 1), (2, 3), (4, 5), (0, 2), (4, 6), (0, 4)):
        a(f"v_pk_add_f32 {vr(OF+2*i,2)}, {vr(OF+2*i,2)}, {vr(OF+2*k,2)}")
    a(f"v_mov_b32 v4, {vr(OF)}\nv_mov_b32 v5, {vr(OF+1)}\nv_permlane32_swap_b32 v4, {vr(OF)}\nv_permlane32_swap_b32 v5, {vr(OF+1)}\nv_pk_add_f32 v[2:3], {vr(OF,2)}, v[4:5]")
    a(f"v_mul_f32 v2, {fhex(-1.0/D)}, v2\nv_mul_f32 v3, {fhex(1.0/D)}, v3\nv_fma_f32 v3, -v2, v2, v3\nv_max_f32 v3, 0, v3\nv_fma_f32 v3, v3, s3, v6\nv_rsq_f32 v4, v3\nv_mul_f32 v2, v2, v4")
    for t in range(2):
        for i in range(4*t, 4*t+4): a(f"v_pk_fma_f32 {vr(AC+2*i,2)}, {vr(HH+2*i,2)}, v[4:5], v[2:3] op_sel_hi:[1,0,0]")
        for i in range(4*t, 4*t+4): a(f"v_cvt_pk_bf16_f32 {vr(AC+16+i)}, {vr(AC+2*i)}, {vr(AC+2*i+1)}")
        for i in range(2): a(f"ds_write_b64 {vr(XR)}, {vr(AC+16+4*t+2*i,2)} offset:{TRB+t*32+i*16}")
    for j in range(2):
        for e in range(2): a(f"ds_read_b64_tr_b16 {vr(AC1+4*j+2*e,2)}, {vr(XR+1)} offset:{TRB+(16*j+4*e)*72}")
    for j in range(2):
        a(f"s_waitcnt lgkmcnt({2-2*j})\nv_min_u32 {vr(AC1+4*j)}, -2, {vr(AC1+4*j)}")
        a(f"buffer_store_dwordx4 {vr(AC1+4*j,4)}, {vHS}, {WS}, {sHo} offen offset:{j*1024} sc1", tag="hst")
    if optv("h3p", 2) == 4: a("s_barrier\n" + hintn())
    stamp(a, "p3_end")
    return d1, d2, RES, d3

def p45(a, stubs, WBLK, rest):
    vRW = [240, 241, 242]; vRW5 = [241, 240, 242]; vRR = 243; vU = 244; vOUT = 245
    sB = ["s64", "s65", "s66", "s67"]; sOUT = "s68"; sL = "s69"
    d1, rest, RES, d3 = rest
    NDEF = len(d3) // 2
    vH4, vHP = vr(vU), "v3"
    A = a
    if optv("p3i", -1) >= 0: d1.insert(optv("p3i", -1), lambda: A(f"buffer_load_dword v6, v15, {WS}, s60 offen sc1", tag="h3"))
    a = Weaver(A, d1, optv("gd", 5))
    a(f"v_min_u32 v2, 7, {vL}\nv_cmp_ne_u32 vcc, {LI}, v2\nv_cndmask_b32 v2, 0, v2, vcc\nv_lshlrev_b32 {vH4}, 7, v2")
    a(f"s_cmp_eq_u32 {sD4}, 7\ns_cselect_b32 s3, 3, {sD4}\ns_lshl3_add_u32 s3, s3, {sW}\ns_lshl_b32 {sB[0]}, s3, 15\ns_add_u32 {sB[0]}, {sB[0]}, {HN}\ns_add_u32 {sB[1]}, {sB[0]}, {128*1024}\ns_lshl3_add_u32 s3, {sDB}, {sW}\ns_mov_b32 {sH3}, s55")
    a(f"s_mul_i32 {sB[2]}, s3, {28*1024}\ns_add_u32 {sB[2]}, {sB[2]}, {UB}\ns_add_u32 {sB[3]}, {sB[2]}, {112*1024}")
    if "real4" not in OPT: a(f"s_cmp_lt_u32 {sD4}, 7\ns_cselect_b32 {sB[0]}, {sB[0]}, s14\ns_cselect_b32 {sB[1]}, {sB[1]}, s14")
    a(f"s_cmp_ge_u32 {sFB}, 14\ns_cselect_b32 s3, 256, 0\nv_xor_b32 {vr(vUS)}, s3, {vL16}")
    nks = [32, 32, 28, 28]
    wa = lambda k: 16*WBLK[k >> 1] + 8*(k & 1)
    steps = [(p, k) for p in range(4) for k in range(nks[p])]
    NS = len(steps); DEP = 12; GS = 4
    sLg = ["s71", "s72", "s73"]
    def ld(i):
        p, k = steps[i]
        sl_ = sLg[(i // 4) % 3]
        if k % 4 == 0:
            a(f"s_add_u32 {sl_}, {sB[p]}, {k*1024}")
        a(f"buffer_load_dwordx4 {vr(RING+4*(i%DEP),4)}, {vL16}, {WS}, {sl_} offen offset:{(k%4)*1024} sc1", tag=f"f{i}")
    b = Asm()
    b(f"L_refresh:\n{SPIN}\ns_waitcnt vmcnt(0)")
    for i in range(DEP):
        b(f"v_cmpx_eq_u32 vcc, -1, {vr(RING+4*i)}\nbuffer_load_dwordx4 {vr(RING+4*i,4)}, {vL16}, {WS}, {sLg[i//4]} offen offset:{(i%4)*1024} sc1\ns_mov_b64 exec, -1")
    b("s_waitcnt vmcnt(0)\ns_setpc_b64 s[76:77]")
    stubs.extend(b.L)
    def check(i0):
        idx = list(range(i0, i0+GS))
        lb = a.lab("ck"); ls = a.lab("rt")
        regs = [RING+4*(i % DEP) for i in idx]
        def pre():
            a.wait(vm=f"f{idx[-1]}")
            tagcheck(a, regs)
        def post():
            a(f"s_cbranch_vccnz {ls}\n{lb}:")
            b = Asm()
            b(f"{ls}:\ns_call_b64 s[76:77], L_refresh")
            tagcheck(b, regs)
            b(f"s_cbranch_vccnz {ls}\ns_branch {lb}")
            stubs.extend(b.L)
        return pre, post
    for p_ in range(1, 4):
        a(f"s_xor_b32 s3, {sW}, {p_}\ns_mul_i32 s3, s3, 6144\nv_add_u32 {vr(vRW[p_-1])}, s3, {vL16}")
    a(f"s_mul_i32 s3, {sW}, 6144\nv_add_u32 {vr(vRR)}, s3, {vL16}")
    OUTB = ARENA0
    HALF = "ohalf" in OPT
    a(f"v_and_b32 v2, 31, {vL}\nv_mul_u32_u24 {vr(vOUT)}, 144, v2\nv_lshrrev_b32 v4, 5, {vL}\nv_lshl_add_u32 {vr(vOUT)}, v4, 4, {vr(vOUT)}")
    a(f"s_mul_i32 s3, {sST}, {32*144}\ns_lshl_b32 {sOUT}, {sKH}, 5\ns_add_u32 s3, s3, {sOUT}\nv_add_u32 {vr(vOUT)}, s3, {vr(vOUT)}")
    a(f"s_lshl2_add_u32 s3, {sSB}, {sW}\ns_mul_i32 {sOUT}, s3, {16*896}\ns_lshl_b32 s3, {sDB}, 7\ns_add_u32 {sOUT}, {sOUT}, s3")
    a(f"v_lshlrev_b32 {vr(B2)}, 16, {vr(B2)}")
    for i in range(8): a(f"v_pk_add_f32 {vr(HH+2*i,2)}, {vr(HH+2*i,2)}, {vr(B2,2)} op_sel_hi:[1,0]")
    a.flush(); a = A
    if optv("inj", 0):
        a(f"s_or_b32 s3, {sDB}, {sSB}\ns_or_b32 s3, s3, {sW}\ns_cselect_b32 s3, 0, {fhex(optv('inj', 0)/1000)}\ns_mov_b64 exec, 1\nv_add_f32 {vr(HH)}, s3, {vr(HH)}\ns_mov_b64 exec, -1")
    c0 = -2.0*math.sqrt(2.0/math.pi)*math.log2(math.e); c1 = c0*0.044715
    def writes(p):
        x = (AC0, AC1)[p & 1]; rw = vRW if p < 2 else vRW5
        return [f"ds_write_b128 {vr(rw[p_-1])}, {vr(x+8*p_+4*i,4)} offset:{RED+(p_-1)*2048+i*1024}" for p_ in (2, 3, 1) for i in range(2)]
    def own(p):
        x = (AC0, AC1)[p & 1]; t = p & 1
        if p >= 2: return [f"v_pk_add_f32 {vr(x+2*i,2)}, {vr(x+2*i,2)}, {vr(HH+8*t+2*i,2)}" for i in range(4)]
        return sum([[f"v_lshlrev_b32 v4, 16, {vr(B1+i)}", f"v_and_b32 v5, 0xffff0000, {vr(B1+i)}", f"v_pk_add_f32 {vr(x+2*i,2)}, {vr(x+2*i,2)}, v[4:5]"] for i in range(4)], [])
    def reads(p):
        x = (AC0, AC1)[p & 1]
        return [(lambda i=i: a(f"ds_read_b128 {vr(x+8+4*i,4)}, {vr(vRR)} offset:{RED+i*1024}", tag=f"rr{i}")) for i in range(6)]
    def finish(p):
        x = (AC0, AC1)[p & 1]; t = p & 1; it = []
        for p_ in range(1, 4):
            it.append(lambda p_=p_: a.wait(ds=f"rr{2*p_-1}"))
            it += [f"v_pk_add_f32 {vr(x+2*i,2)}, {vr(x+2*i,2)}, {vr(x+8*p_+2*i,2)}" for i in range(4)]
        if p < 2:
            it += [f"v_pk_mul_f32 {vr(x+8+2*i,2)}, {vr(x+2*i,2)}, {vr(x+2*i,2)}" for i in range(4)]
            it += [f"v_pk_fma_f32 {vr(x+8+2*i,2)}, {vr(x+8+2*i,2)}, v[14:15], v[14:15] op_sel:[0,0,1] op_sel_hi:[1,0,1]" for i in range(4)]
            it += [f"v_pk_mul_f32 {vr(x+8+2*i,2)}, {vr(x+8+2*i,2)}, {vr(x+2*i,2)}" for i in range(4)]
            it += [f"v_exp_f32 {vr(x+8+i)}, {vr(x+8+i)}" for i in range(8)]
            it += [f"v_pk_add_f32 {vr(x+8+2*i,2)}, {vr(x+8+2*i,2)}, 1.0 op_sel_hi:[1,0]" for i in range(4)]
            it += [f"v_rcp_f32 {vr(x+8+i)}, {vr(x+8+i)}" for i in range(8)]
            it += [f"v_pk_mul_f32 {vr(x+2*i,2)}, {vr(x+2*i,2)}, {vr(x+8+2*i,2)}" for i in range(4)]
            it += [f"v_cvt_pk_bf16_f32 {vr(x+16+i)}, {vr(x+2*i)}, {vr(x+2*i+1)}" for i in range(4)]
            it.append(f"v_min_u32 {vr(x+16)}, -2, {vr(x+16)}")
            it.append(f"buffer_store_dwordx4 {vr(x+16,4)}, {vr(vUS)}, {WS4}, {(sUo, sU2)[t]} offen sc1")
        else:
            it += [f"v_cvt_pk_bf16_f32 {vr(x+16+i)}, {vr(x+2*i)}, {vr(x+2*i+1)}" for i in (0, 2, 1, 3)]
            it += [f"v_permlane32_swap_b32 {vr(x+16)}, {vr(x+18)}", f"v_permlane32_swap_b32 {vr(x+17)}, {vr(x+19)}"]
            it.append(f"ds_write_b128 {vr(vOUT)}, {vr(x+16,4)} offset:{OUTB + t*64}")
            sh, m = (2, 3) if HALF else (3, 7)
            if t == 0:
                it += [f"v_lshrrev_b32 v4, {sh}, {vL}", f"v_and_b32 v5, {m}, {vL}", "v_mul_u32_u24 v8, 144, v4", "v_mul_u32_u24 v9, 896, v4",
                       "v_lshl_add_u32 v8, v5, 4, v8", "v_lshl_add_u32 v9, v5, 4, v9", f"s_mul_i32 s3, {sW}, {16*144}\nv_add_u32 v8, s3, v8", f"v_add_u32 v10, {8*896}, v9"]
            if HALF:
                it += [("D", 2), "s_waitcnt lgkmcnt(0)\ns_barrier", f"ds_read_b128 {vr(x,4)}, v8 offset:{OUTB + t*64}", ("D", 4),
                       "s_waitcnt lgkmcnt(0)", f"buffer_store_dwordx4 {vr(x,4)}, v9, {ROUT}, {sOUT} offen offset:{t*64} sc1"]
            elif t:
                it += ["s_waitcnt lgkmcnt(0)\ns_barrier", f"ds_read_b128 {vr(x,4)}, v8 offset:{OUTB}", f"ds_read_b128 {vr(x+4,4)}, v8 offset:{OUTB + 8*144}",
                       "s_waitcnt lgkmcnt(1)", f"buffer_store_dwordx4 {vr(x,4)}, v9, {ROUT}, {sOUT} offen sc1",
                       "s_waitcnt lgkmcnt(0)", f"buffer_store_dwordx4 {vr(x+4,4)}, v10, {ROUT}, {sOUT} offen sc1"]
        return it
    def unpk(items):
        import re
        out = []
        for x in items:
            m = re.fullmatch(r"v_pk_(add|mul)_f32 v\[(\d+):\d+\], v\[(\d+):\d+\], v\[(\d+):\d+\]", x) if isinstance(x, str) else None
            if m:
                d, p_, q_ = int(m.group(2)), int(m.group(3)), int(m.group(4))
                out += [f"v_{m.group(1)}_f32 v{d+i}, v{p_+i}, v{q_+i}" for i in range(2)]
            elif isinstance(x, str) and x.startswith("v_pk_fma_f32"):
                d = int(re.search(r"v\[(\d+):", x).group(1)); out += [f"v_fma_f32 v{d+i}, v{d+i}, v14, v15" for i in range(2)]
            elif isinstance(x, str) and x.startswith("v_pk_add_f32") and "1.0" in x:
                d = int(re.search(r"v\[(\d+):", x).group(1)); out += [f"v_add_f32 v{d+i}, 1.0, v{d+i}" for i in range(2)]
            else: out.append(x)
        return out
    def woven(p):
        o = unpk(own(p)); it = ["s_barrier"] if p else []
        WD = optv("wd", 1) if p == 0 else optv("wdd", 2); n = -(-len(o) // 6)
        for w_ in writes(p):
            it += [w_] + o[:n] + [("D", WD)]; o = o[n:]
        it += [("D", optv("bd", 1)), "s_waitcnt lgkmcnt(0)\ns_barrier"]
        r = reads(p)
        it += r[:3] + [("D", 1)] + r[3:] + [("D", optv("rd", 3))]
        return it + (unpk(finish(p)) if "pk" not in OPT else finish(p))
    def emit(x):
        if isinstance(x, tuple): return
        x() if callable(x) else a(x)
    def cost(x):
        if callable(x): return 1
        if x.startswith("ds_write"): return 2
        if x.startswith(("v_exp", "v_rcp")): return 2
        return 1
    if optv("p3i", -1) < 0:
        a.wait(vm="hst")
        a(f"buffer_load_dword v6, v15, {WS}, s60 offen sc1", tag="h3")
    ng = min(len(rest), 4*optv("ng", 0))
    for x in rest[:ng]: a(x)
    rest = rest[ng:]
    gate(a, "h3", "v6", "v15", "s60", "h3")
    stamp(a, "p4_gate")
    if "noskip4" not in OPT:
        assert optv("nmb", 0) == 0
        a(f"s_cmp_eq_u32 {sD4}, 7\ns_cbranch_scc1 L_no4")
        b = Asm()
        b("L_no4:")
        if "pf3" in OPT:
            b(f"s_lshr_b32 s3, {sLQ}, 2\ns_and_b32 s3, s3, {sLQ}\ns_lshr_b32 s56, {sLQ}, 1\ns_sub_u32 s56, s56, s3\ns_min_u32 s56, s56, 2\nv_lshlrev_b32 v2, 7, {vL}")
            for k in range(optv("pf0", 2), 8, 3):
                b(f"s_add_u32 s3, s56, {k}\ns_min_u32 s3, s3, 7\ns_lshr_b32 s59, s3, 2\ns_mul_i32 s59, s59, 12\ns_add_u32 s3, s3, s59\ns_lshl2_add_u32 s3, {sW}, s3\ns_lshl_b32 s3, s3, 13\ns_add_u32 s3, s3, {HN + 6*128*1024}")
                b(f"buffer_load_dword v4, v2, {WS}, s3 offen sc1")
        for x in rest + d3: b(x)
        b(f"s_lshl2_add_u32 s3, {sDB}, {sW}\ns_lshl_b32 s3, s3, 10\ns_add_u32 s60, s3, {HT + 3*32768}\ns_add_u32 s3, s60, {2*32768}")
        b(f"L_no4w:\n{SPIN}\nbuffer_load_dword {vHP}, {vH4}, {WS}, s3 offen sc1\ns_waitcnt vmcnt(0)\nv_cmp_eq_u32 vcc, -1, {vHP}\ns_cbranch_vccnz L_no4w\ns_branch L_wait4")
        stubs.extend(b.L)
    for i in range(DEP): ld(i)
    a(f"v_mov_b32 v14, {fhex(c1)}\nv_mov_b32 v15, {fhex(c0)}")
    a(f"s_lshl2_add_u32 s3, {sDB}, {sW}\ns_lshl_b32 s3, s3, 10\ns_add_u32 s60, s3, {HT + 2*32768}")
    for x in rest: a(x)
    a.mark("w2all")
    pre, post = check(0)
    pre(); post()
    stamp(a, "p4_first")
    poll = lambda tg: (lambda: a(f"s_add_u32 s60, s60, 32768\nbuffer_load_dword {vHP}, {vH4}, {WS}, s60 offen sc1", tag=tg))
    UG = optv("ug", 64)
    SK = optv("sk", 8); MV2 = optv("mv2", 4)
    NMB = min(optv("nmb", 0), 16 - NDEF)
    base = [0, 32, 64, 92]
    for p in range(4):
        n = nks[p]; acc = (AC0, AC1)[p & 1]
        sk = SK if p & 1 else 0
        seq = [(k, sl) for k in range(n - sk) for sl in range(2)] + [(k, 1) for k in range(n - sk, n)] + [(k, 0) for k in range(n - sk, n)]
        before = {}; after = {}
        def bf(g, x): before.setdefault(g, []).append(x)
        def af(g, x, c=1): after.setdefault(g, []).append((x, c))
        first = {k: min(g for g, (kk, sl) in enumerate(seq) if kk == k) for k in range(n)}
        last = {k: max(g for g, (kk, sl) in enumerate(seq) if kk == k) for k in range(n)}
        for k in range(4, n + 1, 4):
            if base[p] + k >= NS or (p == 1 and k == n): continue
            pre, post = check(base[p] + k)
            g = (first[k] if k < n else len(seq))
            af(g - 2, pre, 3); bf(g, post)
        for k in range(n):
            i = base[p] + k
            if i + DEP < NS and not (p == 1 and k + DEP >= n): af(last[k], (lambda i=i: ld(i + DEP)), 2)
        mvk = lambda kk: w2rd(lambda o: ar(wa(kk)+o, 2), slot_rd(RES[kk >> 1])[0], slot_rd(RES[kk >> 1])[1] + (kk & 1)*2048)
        prime = []
        HUA = optv("hua", 60)
        G4A = "nog4a" not in OPT; G4B = "nog4b" not in OPT
        if p == 0 and not G4A: af(2, f"s_add_u32 {sH3}, {sH3}, 32768\ns_add_u32 s60, s60, 32768")
        if p == HUA // 64 and G4A: af(HUA % 64, ("s_barrier\n" if HUA < 80 else "") + hintn(), 3)
        if p == 1:
            M0 = optv("mv1", 40)
            af(M0 - 1, lambda: a.wait(vm="w2all"))
            for j, x in enumerate(sum([mvk(kk) for kk in range(NMB)], [])): af(min(63, M0 + j // optv("mvr", 2)), x)
            for j, x in enumerate(d3[:12]): af(40 + 2*j, (lambda x=x: a(x, tag="w2def")), 2)
            d3 = d3[12:]
            if "noskip4" not in OPT: af(optv("hux", 26), f"s_add_u32 s3, {sH3}, 32768\n" + hint("s3"), 3)
            if G4B: af(optv("hub", 56), hintn(), 3)
            rdy = lambda: (a.wait(vm="h4a"), a(f"v_cmp_eq_u32 s[74:75], -1, {vHP}\ns_mov_b32 s79, {sB[2]}\ns_cmp_lg_u64 s[74:75], 0\ns_cselect_b32 {sB[2]}, s14, {sB[2]}"))
            if G4A:
                af(min(UG, 64) - optv("h4ag", 14), poll("h4a"), 2)
                if UG < 64: bf(UG, rdy)
            g = UG
            for q in range(DEP):
                g = max(g, last[n - DEP + q])
                if g < 64: af(g, (lambda q=q: ld(64 + q)), 2)
                else: prime.append((lambda q=q: ld(64 + q)) if q or not G4A else (lambda: (rdy(), ld(64))))
                g += 1
        if p == 2:
            g = 0
            for kk in range(NMB, 16):
                if kk == 16 - NDEF:
                    g = max(g, 2*MV2); bf(g, lambda: a.wait(vm="w2def"))
                l = mvk(kk)
                for j, x in enumerate(l): af(g + j // 2, x if j < 3 else (lambda x=x, kk=kk: a(x, tag=f"mv{kk}")))
                g += 2
                assert g + 2 <= first[12 + kk]
                if (kk - NMB) % 4 == 0: bf(first[12 + kk], lambda kk=kk: a.wait(ds=f"mv{min(15, kk + 3)}"))
            if G4B:
                af(2*optv("h4bk", 6), poll("h4b"), 2)
                bf(2*(n - DEP), lambda: gate(a, "h4b", vHP, vH4, "s60", "h4b"))
        wr = []
        if p & 1:
            wr = writes(p)
            if sk:
                for j in range(4):
                    g = len(seq) - sk + 2 + (j * (sk - 2)) // 4
                    af(g, wr.pop(0), 2)
        fill = woven(p - 1) if p & 1 else []
        hold = 2; barr = not (p & 1)
        for g, (k, sl) in enumerate(seq):
            for x in before.get(g, []): emit(x)
            if "bst" in OPT and g and g % 16 == 0: stamp(a, f"{'abcd'[p]}{g//2}")
            av = vr(RING+4*((base[p] + k) % DEP), 4)
            if p < 2: A_, B_ = ar(wa(k)+4*sl, 4), av
            else: A_, B_ = av, (vr(PARK+8*k+4*sl, 4) if k < 12 else ar(wa(k-12)+4*sl, 4))
            a(mf(vr(acc+16*sl,16), A_, B_, "0" if k == 0 else None))
            budget = optv("bud", 7) if p < 3 else optv("budd", 5)
            for x, c in after.get(g, []):
                if isinstance(x, str) and x.startswith("ds_write"): assert barr
                emit(x); budget -= c
            if hold: hold -= 1
            while fill and budget > 0 and not hold:
                x = fill.pop(0)
                if isinstance(x, tuple): hold = x[1]; break
                emit(x); budget -= cost(x)
            if not fill and not barr:
                a("s_barrier"); barr = True
        for x in before.get(len(seq), []): emit(x)
        assert not fill and barr
        if p & 1:
            stamp(a, "subB_end" if p == 1 else "p5_mm")
            mem = prime + [(lambda x=x: a(x, tag="w2def")) for x in (d3 if p == 1 else [])]
            m1, m2 = optv("m1", 0), optv("m2", 4)
            for x in mem[:m1]: x()
            mem = mem[m1:]
            for x in wr + own(p): emit(x)
            for x in mem[:m2]: x()
            mem = mem[m2:]
            a("s_waitcnt lgkmcnt(0)\ns_barrier")
            for x in reads(p): emit(x)
            for x in mem[:2]: x()
            mem = mem[2:]
            fin = finish(p); every = max(1, (len(fin) - 8) // max(1, len(mem)))
            for j, x in enumerate(fin):
                emit(x)
                if mem and j % every == every - 1: mem.pop(0)()
            assert not mem
        if p == 1 and not G4A:
            pre, post = check(64); pre(); post()
        if p == 1 and G4A:
            lj = a.lab("nj")
            a(f"s_mov_b32 {sB[2]}, s79\ns_cmp_eq_u64 s[74:75], 0\ns_cbranch_scc1 {lj}")
            nv = a.nvm; tg = dict(a.tags)
            a("L_wait4:")
            a.mark("now"); gate(a, "h4a", vHP, vH4, "s60", "now")
            for q in range(DEP): ld(64 + q)
            a("s_waitcnt vmcnt(0)")
            a.nvm = nv; a.tags = tg
            a(f"{lj}:")
            pre, post = check(64); pre(); post()
        if p < 3: stamp(a, f"sub{p+1}")

DOC = """;
; One persistent launch, 256 workgroups x 4 waves (one workgroup per CU), five phases:
;  P1  K/V (two heads) and Q (one head) of 128 rows.  LayerNorm is folded in: the GEMM runs on raw x, then
;      (acc - mean * colsum(W)) * rsqrt(var + eps) per row.
;  P2  attention, 128 queries x 1 head; each wave takes a quarter of the keys.  P = exp2(s) without a shift; the row
;      sum l comes from a ones row of V.  Guard: if any l of a wave's rows leaves [2^-30, 2^60] (or is NaN) that wave
;      recomputes its rows with the true row maximum subtracted (L_safe).
;  P3  h = x + o Wo (64x64 tile), row statistics exchanged between the 7 tiles of a row block,
;  P4  u = gelu_tanh(W1^T LN(LN(h)) + b1),  P5  out = h + (u W2 + b2)^T; weights are staged in registers / LDS ahead.
; Hand-offs through d_ws use write-through (sc1) stores and sc1 loads only and do not depend on placement or on what
; d_ws held: flags are cleared in this launch (published through d_debug), payload words are first marked all-ones by
; their producer (confirmed by those flags) and re-read until the mark is gone; "hint" words only time the first read.
; Every spin is bounded.
"""
def build():
    hdr = open("cdna_kernels/" + NAME + ".s.ref").read().split("; Override launch")[0]
    kn = NAME + "_kernel"
    out = hdr + f"; @launch grid=(256,1,1) block=(256,1,1) lds={LDS_TOTAL}\n"
    out += DOC + '.amdgcn_target "amdgcn-amd-amdhsa--gfx950"\n'
    a = Asm()
    if PROFILE: a("s_memrealtime s[90:91]\ns_memtime s[94:95]")
    prologue(a, "L_end", "L_last")
    if PROFILE: STAMPS.append("entry")
    stubs = []
    wo, landed = p1(a, stubs)
    w1rd, WBLK = p2(a, stubs, wo, landed)
    b3 = p3(a, w1rd, stubs)
    p45(a, stubs, WBLK, b3)
    stamp(a, "issued")
    if PROFILE and "lite" not in OPT: a("s_waitcnt vmcnt(0)")
    stamp(a, "end")
    if SPINAT:
        a("L_spin:\ns_memrealtime s[88:89]\ns_waitcnt lgkmcnt(0)\ns_sub_u32 s88, s88, s90\ns_cmp_lt_u32 s88, 6000\ns_cbranch_scc1 L_spin")
    a("L_fin:")
    if PROFILE: a("v_writelane_b32 v255, s90, 0\nv_writelane_b32 v255, s94, 32")
    stamp_flush(a)
    a("L_end:\ns_endpgm")
    a.L += stubs
    if TOUR: a("\n".join(f"L_pad{k}:" for k in range(8)))
    a("L_last:\ns_endpgm")
    import re
    L = [x.text for x in a.L]
    for i, l in enumerate(L):
        if l.startswith("s_addc_u32"):
            j = i - 1
            while not re.match(r"s_(add|sub|cmp|and|or|xor|lsh|cbranch|call|bcnt|min|max)", L[j]) and not L[j].endswith(":"): j -= 1
            assert L[j].startswith("s_add_u32 s%d," % (int(re.match(r"s_addc_u32 s(\d+)", l).group(1)) - 1)), (L[j], l)
    a.hazard_pass(verbose=("-v" in OPT))
    if TOUR: add_pads(a, kn)
    out += kernel_head(kn) + a.text() + kernel_desc(kn, 256, 256)
    return out

if __name__ == "__main__":
    open(sys.argv[1], "w").write(build())
    if PROFILE: open("stamps.txt", "w").write(" ".join(STAMPS))
```
